```python
import torch

def _softmax(x, axis=-1):
    return torch.softmax(x, dim=axis)
def _gelu(x):
    return torch.nn.functional.gelu(x, approximate="tanh")
def _silu(x):
    return torch.nn.functional.silu(x)
def _sigmoid(x):
    return torch.sigmoid(x)
def _layernorm(x, axis=-1, eps=1e-5):
    m = x.mean(dim=axis, keepdim=True)
    v = x.var(dim=axis, keepdim=True, unbiased=False)
    return (x - m) / torch.sqrt(v + eps)
def _scatter_add(tgt, idx, src, axis=0):
    return tgt.clone().index_add_(axis, idx, src)
def _segment_sum(src, seg, n):
    out = torch.zeros((n,) + src.shape[1:], dtype=src.dtype)
    return out.index_add_(0, seg, src)
def _pad(x, pw):
    flat = tuple(v for pair in reversed(pw) for v in pair)
    return torch.nn.functional.pad(x, flat)

kernel_name = 'gated_mix__sliding_local_dilated__swiglu_ffn__prompt'

def setup_inputs():

    _w = (lambda a: (lambda t: t.to(torch.bfloat16) if t.is_floating_point() else t)(torch.as_tensor(a)))
    def _A_setup():
        B, S, D = 1, 2048, 448
        return {
            "x": _w((lambda *s: torch.randn(*s, dtype=torch.bfloat16) * 0.05)(B, S, D)),
            "wqkv": _w((lambda *s: torch.randn(*s, dtype=torch.bfloat16) * 0.8)(D, 3 * D)),
            "wo": _w((lambda *s: torch.randn(*s, dtype=torch.bfloat16) * 0.05)(D, D)),
        }
    _A_in = _A_setup()

    def _B_setup():
        B, S, D, F = 1, 2048, 448, 1792
        return {
            "x": _w((lambda *s: torch.randn(*s, dtype=torch.bfloat16) * 0.05)(B, S, D)),
            "w_gate": _w((lambda *s: torch.randn(*s, dtype=torch.bfloat16) * 0.2)(D, F)),
            "w_up": _w((lambda *s: torch.randn(*s, dtype=torch.bfloat16) * 0.2)(D, F)),
            "w_down": _w((lambda *s: torch.randn(*s, dtype=torch.bfloat16) * 0.2)(F, D)),
        }
    _B_in = _B_setup()

    return {
        "A_x": _A_in["x"],
        "A_wqkv": _A_in["wqkv"],
        "A_wo": _A_in["wo"],
        "B_x": _B_in["x"],
        "B_w_gate": _B_in["w_gate"],
        "B_w_up": _B_in["w_up"],
        "B_w_down": _B_in["w_down"],
        "gate_w": _w((lambda *s: torch.randn(*s, dtype=torch.bfloat16) * 0.05)(448) * 16.0),
    }

def reference(A_x, A_wqkv, A_wo, B_x, B_w_gate, B_w_up, B_w_down, gate_w):
    def _A_ref(x, wqkv, wo):
        B, S, D = x.shape
        H = 16; Dh = D // H
        W, dil = 8, 2
        qkv = (lambda x, *d: x.permute(*d))((x @ wqkv).reshape(B, S, 3, H, Dh), 2, 0, 3, 1, 4)
        q, k, v = qkv[0], qkv[1], qkv[2]
        scale = Dh ** -0.5
        pos = torch.arange(S)
        off = torch.arange(W) * dil
        idx = pos[:, None] - off[None, :]
        mask = idx >= 0
        idx_c = torch.where(mask, idx, 0).reshape(-1)
        kg = k[:, :, idx_c, :].reshape(B, H, S, W, Dh)
        vg = v[:, :, idx_c, :].reshape(B, H, S, W, Dh)
        logits = torch.einsum("bhsd,bhswd->bhsw", q, kg) * scale
        logits = torch.where(mask[None, None, :, :], logits, -1e9)
        attn = _softmax(logits, axis=-1)
        o = torch.einsum("bhsw,bhswd->bhsd", attn, vg)
        return (lambda x, *d: x.permute(*d))(o, 0, 2, 1, 3).reshape(B, S, D) @ wo

    def _B_ref(x, w_gate, w_up, w_down):
        g = _silu(x @ w_gate)
        u = x @ w_up
        return (g * u) @ w_down

    x = A_x
    g = _sigmoid((x * gate_w).sum(-1, keepdims=True))
    a = _A_ref(x, A_wqkv, A_wo)
    b = _B_ref(x, B_w_gate, B_w_up, B_w_down)
    return g * a + (1 - g) * b
```

```python
import re

TRANS = ("v_exp_f32", "v_log_f32", "v_rcp_f32", "v_rsq_f32", "v_sqrt_f32", "v_sin_f32", "v_cos_f32")


def _expand(tok):
    tok = tok.strip()
    tok = tok.lstrip("-")
    if tok.startswith("abs(") and tok.endswith(")"):
        tok = tok[4:-1]
    if tok.startswith("|") and tok.endswith("|"):
        tok = tok[1:-1]
    m = re.fullmatch(r"([vas])\[(\d+):(\d+)\]", tok)
    if m:
        return [f"{m.group(1)}{i}" for i in range(int(m.group(2)), int(m.group(3)) + 1)]
    m = re.fullmatch(r"([vas])(\d+)", tok)
    if m:
        return [tok]
    if tok in ("vcc", "exec", "m0", "scc"):
        return [tok]
    if tok in ("vcc_lo", "vcc_hi"):
        return ["vcc"]
    if tok in ("exec_lo", "exec_hi"):
        return ["exec"]
    return []


class Ins:
    def __init__(self, text, tag=None):
        self.text = text
        self.tag = tag
        self.kind = "other"
        self.w = set()
        self.r = set()
        self.srcc = set()
        self.states = 1
        self.cost = 1
        self._parse()

    def _parse(self):
        t = self.text.split(";")[0].strip()
        if t.endswith(":"):
            self.kind = "label"
            self.states = 0
            self.cost = 0
            return
        if t.startswith("."):
            self.kind = "directive"
            self.states = 0
            self.cost = 0
            return
        parts = t.split(None, 1)
        op = parts[0]
        self.op = op
        rest = parts[1] if len(parts) > 1 else ""
        ops = [x.strip() for x in rest.split(",")] if rest else []
        if ops:
            ops[-1] = ops[-1].split()[0] if ops[-1].split() else ""
        mods = rest.split()
        E = lambda xs: set(r for x in xs for r in _expand(x))
        if op == "s_nop":
            self.kind = "nop"
            self.states = int(ops[0]) + 1
            self.cost = self.states
        elif op == "s_waitcnt":
            self.kind = "wait"
        elif op == "s_barrier":
            self.kind = "barrier"
        elif op.startswith("s_cbranch") or op in ("s_branch", "s_endpgm", "s_setpc_b64"):
            self.kind = "branch"
        elif op.startswith("s_load") or op in ("s_memtime", "s_memrealtime"):
            self.kind = "smem"
            self.w = E(ops[:1])
            self.r = E(ops[1:])
        elif op.startswith("s_cmp") or op.startswith("s_bitcmp"):
            self.kind = "salu"
            self.r = E(ops)
            self.w = {"scc"}
        elif op in ("s_sleep", "s_setprio"):
            self.kind = "salu"
        elif op.startswith("s_"):
            self.kind = "salu"
            self.w = E(ops[:1])
            self.r = E(ops[1:])
            if "saveexec" in op:
                self.w |= {"exec"}
        elif op.startswith("v_mfma"):
            self.kind = "mfma"
            self.w = E(ops[:1])
            self.r = E(ops[1:])
            self.srcc = E(ops[3:4])
            self.cost = 2
        elif op.startswith("v_permlane"):
            self.kind = "perm"
            self.w = E(ops[:2])
            self.r = E(ops[:2])
        elif op.startswith("v_cmp"):
            self.kind = "valu"
            self.w = E(ops[:1])
            self.r = E(ops[1:])
        elif op.startswith("v_readfirstlane") or op.startswith("v_readlane"):
            self.kind = "valu"
            self.w = E(ops[:1])
            self.r = E(ops[1:])
        elif op.startswith("v_"):
            base = op.replace("_e32", "").replace("_e64", "")
            self.kind = "trans" if base in TRANS else "valu"
            if self.kind == "trans":
                self.cost = 2
            self.w = E(ops[:1])
            self.r = E(ops[1:])
            if base.startswith("v_fmac") or "_dpp" in op:
                self.r |= E(ops[:1])
            if "_co_" in op:
                self.w |= E(ops[1:2])
        elif op.startswith("ds_read") or op.startswith("ds_bpermute") or op.startswith("ds_swizzle"):
            self.kind = "ds"
            self.w = E(ops[:1])
            self.r = E(ops[1:])
        elif op.startswith("ds_write"):
            self.kind = "ds"
            self.r = E(ops)
        elif op.startswith("buffer_load") or op.startswith("global_load"):
            self.kind = "vmem"
            if "lds" in mods:
                self.r = E(ops) | {"m0"}
                self.lds_dma = True
            else:
                self.w = E(ops[:1])
                self.r = E(ops[1:])
        elif op.startswith("buffer_store") or op.startswith("global_store"):
            self.kind = "vmem"
            self.r = E(ops)
            self.store = True
            if op.startswith("buffer_store"):
                self.sdata = E(ops[:1])
            else:
                self.sdata = E(ops[1:2])
            self.wide = op.endswith("x4") or op.endswith("x3")
        elif op.startswith("buffer_atomic") or op.startswith("global_atomic"):
            self.kind = "vmem"
            self.r = E(ops)
            if "sc0" in mods:
                self.w = E(ops[:1])
        elif op.startswith("buffer_inv") or op.startswith("buffer_wbl2"):
            self.kind = "vmem"
        else:
            raise ValueError("unparsed instruction: " + self.text)


class Wait:
    kind = "pwait"
    cost = 1
    states = 1

    def __init__(self, vm=None, lgkm=None):
        self.vm = vm
        self.lgkm = lgkm


def I(text, tag=None):
    return Ins(text, tag)


def resolve(seq):
    vmq, lq = [], []
    out = []
    for x in seq:
        if isinstance(x, Wait):
            parts = []
            for name, q, tag, mx in (("vmcnt", vmq, x.vm, 63), ("lgkmcnt", lq, x.lgkm, 15)):
                if tag is None:
                    continue
                if tag == "all":
                    n = 0
                    done = len(q)
                else:
                    tags = tag if isinstance(tag, (list, tuple, set)) else [tag]
                    idx = [i for i, t in enumerate(q) if t in tags]
                    if not idx:
                        continue
                    n = len(q) - 1 - max(idx)
                    done = max(idx) + 1
                    if n > mx:
                        n = mx
                        done = len(q) - mx
                del q[:done]
                parts.append(f"{name}({n})")
            if parts:
                out.append(Ins("s_waitcnt " + " ".join(parts)))
            continue
        if x.kind == "vmem":
            vmq.append(x.tag)
        elif x.kind == "ds":
            lq.append(x.tag)
        elif x.kind == "smem":
            lq.append(x.tag)
        elif x.kind == "wait":
            m = re.search(r"vmcnt\((\d+)\)", x.text)
            if m:
                n = int(m.group(1))
                if len(vmq) > n:
                    del vmq[: len(vmq) - n]
            m = re.search(r"lgkmcnt\((\d+)\)", x.text)
            if m:
                n = int(m.group(1))
                if len(lq) > n:
                    del lq[: len(lq) - n]
        out.append(x)
    return out


def isv(r):
    return r[0] in "va" and r[1:].isdigit()


def iss(r):
    return (r[0] == "s" and r[1:].isdigit()) or r in ("vcc",)


def check_hazards(seq, name=""):
    probs = []
    n = len(seq)
    for i, a in enumerate(seq):
        if a.kind in ("label", "directive", "nop", "wait", "barrier", "branch", "other"):
            continue
        rules = []
        VAL = ("valu", "trans", "perm")
        if a.kind in VAL:
            wv = {r for r in a.w if isv(r)}
            ws = {r for r in a.w if iss(r)}
            if wv:
                rules.append((lambda b, wv=wv: b.kind == "mfma" and b.r & wv, 2, "valu->mfma"))
                rules.append((lambda b, wv=wv: b.kind == "perm" and b.r & wv, 2, "valu->permlane"))
                rules.append((lambda b, wv=wv: b.kind == "valu" and "_dpp" in b.op and b.r & wv, 2, "valu->dpp"))
                rules.append((lambda b, wv=wv: b.kind == "valu" and ("readfirstlane" in b.op or "readlane" in b.op) and b.r & wv, 1, "valu->readlane"))
            if a.kind == "trans":
                rules.append((lambda b, wv=wv: b.kind in ("valu", "perm") and b.r & wv, 1, "trans->valu"))
            if ws:
                rules.append((lambda b, ws=ws: b.kind in VAL and b.r & ws, 2, "valu sgpr->valu"))
                rules.append((lambda b, ws=ws: b.kind == "vmem" and b.r & ws, 5, "valu sgpr->vmem"))
            if "exec" in a.w:
                rules.append((lambda b: b.kind in ("mfma", "perm"), 4, "valu exec->mfma/perm"))
        if a.kind == "mfma":
            passes = 4 if "16x16x32" in a.op else 8
            nd = {4: 8, 8: 12}[passes]
            rules.append((lambda b, w=a.w: b.kind in VAL + ("vmem", "ds") and ((b.r | b.w) & w), nd, "mfma->valu/mem"))
            rules.append((lambda b, w=a.w: b.kind == "mfma" and ((b.r - b.srcc) & w), nd, "mfma->mfma AB"))
            rules.append((lambda b, w=a.w: b.kind == "mfma" and (b.srcc & w) and b.srcc != w, {4: 6, 8: 10}[passes], "mfma->mfma C partial"))
            rules.append((lambda b, w=a.w: b.kind == "mfma" and (b.w & w) and not (b.srcc & w), {4: 6, 8: 10}[passes], "mfma WAW"))
            if a.srcc:
                rules.append((lambda b, c=a.srcc: b.kind in VAL and (b.w & c), {4: 3, 8: 7}[passes], "mfma srcC WAR"))
        if a.kind == "salu" and "m0" in a.w:
            rules.append((lambda b: b.kind == "vmem" and getattr(b, "lds_dma", False), 1, "m0->dma"))
        if a.kind == "vmem" and getattr(a, "store", False) and a.wide:
            rules.append((lambda b, d=a.sdata: b.kind in VAL and (b.w & d), 2, "store data WAR"))
            rules.append((lambda b, d=a.sdata: b.kind in ("ds", "vmem", "mfma") and (b.w & d), 1, "store data WAR"))
        if not rules:
            continue
        mx = max(r[1] for r in rules)
        dist = 0
        j = i + 1
        while j < n and dist < mx:
            b = seq[j]
            for pred, need, what in rules:
                if dist < need and b.kind not in ("label", "directive") and pred(b):
                    probs.append(f"{name}: {what}: need {need} got {dist}: [{i}] {a.text}  ->  [{j}] {b.text}")
            dist += b.states
            j += 1
    return probs


def check_pending(seq, name=""):
    probs = []
    vmq, lq = [], []
    for i, x in enumerate(seq):
        if x.kind == "wait":
            m = re.search(r"vmcnt\((\d+)\)", x.text)
            if m:
                nn = int(m.group(1))
                if len(vmq) > nn:
                    del vmq[: len(vmq) - nn]
            m = re.search(r"lgkmcnt\((\d+)\)", x.text)
            if m:
                nn = int(m.group(1))
                if len(lq) > nn:
                    del lq[: len(lq) - nn]
            continue
        if x.kind in ("label", "directive", "nop", "barrier", "branch"):
            continue
        for q in (vmq, lq):
            for (j, w) in q:
                if w & (x.r | x.w):
                    probs.append(f"{name}: pending load [{j}] {seq[j].text} touched by [{i}] {x.text}")
        if x.kind == "vmem":
            vmq.append((i, set(x.w)))
        elif x.kind in ("ds", "smem"):
            lq.append((i, set(x.w)))
    return probs


def interleave(main, fill, per_gap=2, start=0, spread=True):
    out = []
    fill = list(fill)
    total = sum(f.cost for f in fill)
    ngaps = max(1, len(main) - start)
    rate = min(per_gap, total / ngaps) if spread else per_gap
    credit = 0.0
    k = 0
    for i, m in enumerate(main):
        out.append(m)
        if i < start:
            continue
        credit += rate
        while k < len(fill) and (fill[k].cost <= credit + 1e-9 or fill[k].cost == 0):
            out.append(fill[k])
            credit -= fill[k].cost
            k += 1
        if credit > per_gap:
            credit = per_gap
    return out, fill[k:]


def render(seq):
    L = []
    for x in seq:
        if x.kind in ("label", "directive"):
            L.append(x.text)
        else:
            L.append("    " + x.text)
    return "\n".join(L)
```

```python
import sys, os, math, struct
sys.path.insert(0, os.path.dirname(os.path.abspath(__file__)))
from asmlib import *

NAME = "gated_mix__sliding_local_dilated__swiglu_ffn__prompt"
CFG = dict(ROT=0, P1=6)
for a in sys.argv[2:]:
    k, v = a.split("=")
    CFG[k] = int(v)
ROT = CFG["ROT"]
P1 = CFG["P1"]

def f2u(x):
    return struct.unpack("<I", struct.pack("<f", x))[0]

S, D, F = 2048, 448, 1792
X_BYTES = S * D * 2
WQKV_BYTES = D * 3 * D * 2
WO_BYTES = D * D * 2
WG_BYTES = D * F * 2
NK = 72
A_OFF = 131072
A_BYTES = 128 * NK * 1024
MISC_BYTES = 131072
OOB = 0x40000000

sWV = "s3"
SRD_X, SRD_W, SRD_A, SRD_O, SRD_W2, SRD_WO, SRD_M = 28, 32, 36, 40, 44, 48, 52
def srd(n): return f"s[{n}:{n+3}]"
sK = [f"s{56+i}" for i in range(7)]
sROW0, sC, sT0, sT1, sT2, sT3 = "s63", "s64", "s65", "s66", "s67", "s68"
sM0W, sM0X, sSOFF, sAST, sNL2E = "s69", "s70", "s71", "s72", "s73"
sXROW = [f"s{74+i}" for i in range(5)]
sJ = "s79"
mODD, mC0, mC1, mC0F, mC1F, mG3 = "s[80:81]", "s[82:83]", "s[84:85]", "s[86:87]", "s[88:89]", "s[90:91]"
sSCL, sQB, sROT = "s92", "s93", "s94"

def vq(n, k=4): return f"v[{n}:{n+k-1}]"
def aq(n, k=4): return f"a[{n}:{n+k-1}]"
def rq(r, k=4):
    return f"{r[0]}[{r[1]}:{r[1]+k-1}]"

def mksrd(n, lo, size):
    return [I(f"s_mov_b32 s{n}, s{lo}"), I(f"s_mov_b32 s{n+1}, s{lo+1}"),
            I(f"s_mov_b32 s{n+2}, {size}"), I(f"s_mov_b32 s{n+3}, 0x20000")]

def mfma(d, a, b, first):
    return I(f"v_mfma_f32_16x16x32_bf16 {d}, {a}, {b}, {'0' if first else d}")

def sk_next(s):
    return [I(f"s_add_u32 {sK[s]}, {sK[s-1]}, 128"), I(f"s_cmp_eq_u32 {sK[s]}, 896"),
            I(f"s_cselect_b32 {sK[s]}, 0, {sK[s]}")]

def kernarg_loads():
    return [I("s_load_dwordx4 s[4:7], s[0:1], 0", "ka"), I("s_load_dwordx2 s[8:9], s[0:1], 16", "ka"),
            I("s_load_dwordx8 s[12:19], s[0:1], 32", "ka"), I("s_load_dwordx4 s[20:23], s[0:1], 64", "ka"),
            I("s_load_dwordx2 s[24:25], s[0:1], 80", "ka")]

def p1_prologue():
    L = [I("s_cmp_ge_u32 s2, 256"), I("s_cbranch_scc1 L_end1")]
    L += kernarg_loads()
    L += [I("v_lshrrev_b32 v1, 6, v0"), I("v_and_b32 v0, 63, v0"),
          I("s_and_b32 s10, s2, 3"),
          I("v_readfirstlane_b32 s3, v1"),
          I("s_lshr_b32 s11, s2, 3"),
          I("s_bitcmp1_b32 s2, 2"),
          I("s_cbranch_scc1 L_halfB"),
          I("s_mul_i32 s26, s10, 21"), I("s_add_u32 s26, s26, s11"),
          I(f"s_mul_i32 {sC}, s26, 43"), I(f"s_lshr_b32 {sC}, {sC}, 8"),
          I(f"s_mul_i32 s27, {sC}, 6"), I("s_sub_u32 s26, s26, s27"),
          I("s_cmp_lt_u32 s11, 21"), I("s_cbranch_scc1 L_ffn"),
          I(f"s_sub_u32 {sQB}, s11, 21"), I(f"s_cmp_lt_u32 {sQB}, 9"), I("s_cbranch_scc1 L_qkv"),
          I("s_branch L_end1"),
          I("L_halfB:"),
          I("s_mul_i32 s26, s10, 49"), I("s_add_u32 s26, s26, 1"), I("s_lshr_b32 s26, s26, 1"),
          I("s_add_u32 s26, s26, s11"),
          I(f"s_mul_i32 {sC}, s26, 147"), I(f"s_lshr_b32 {sC}, {sC}, 10"),
          I(f"s_mul_i32 s27, {sC}, 7"), I("s_sub_u32 s26, s26, s27"), I("s_add_u32 s26, s26, 6"),
          I("s_and_b32 s27, s10, 1"), I("s_sub_u32 s27, 25, s27"),
          I("s_cmp_lt_u32 s11, s27"), I("s_cbranch_scc1 L_ffn"),
          I(f"s_sub_u32 {sQB}, s11, 16"), I("s_cmp_ge_u32 s11, 25"), I("s_cbranch_scc1 L_qkv"),
          I("s_branch L_end1")]
    return L

FW_RING, FW_R = 0, 4
FX_RING = 65536
FX_SLOT = P1 * 2048
FX2 = FX_RING + 3 * FX_SLOT
NT2 = 10 - P1
assert FX2 + NT2 * 14336 <= 163840

def ffn():
    vWd = [1, 2, 3, 4]; vXd = [5, 6, 7]; vX2d = 8; vWr = [9, 10]; vXr = [11, 12]; vX2r = [13, 14]; vAst = 15
    vT = list(range(16, 24))
    XB = 24
    ACC = 72
    NXI = P1 // 2
    def accq(slot, m, t): return ACC + slot * 16 + (m * 2 + t) * 4
    def wfr(u, m, t): return (u * 4 + m * 2 + t) * 4
    L = [I("L_ffn:")]
    L += [I(f"s_mul_i32 {sROW0}, s26, 160")]
    if ROT:
        L += [I(f"s_lshl_b32 s27, {sC}, 1"), I("s_add_u32 s27, s27, s26"),
              I("s_mul_i32 s10, s27, 37"), I("s_lshr_b32 s10, s10, 8"), I("s_mul_i32 s10, s10, 7"),
              I("s_sub_u32 s27, s27, s10"), I(f"s_lshl_b32 {sK[0]}, s27, 7")]
    else:
        L += [I(f"s_mov_b32 {sK[0]}, 0")]
    r4, p16, r8, p8 = 16, 17, 18, 19
    L += [I(f"v_lshrrev_b32 v{r4}, 4, v0"), I(f"v_and_b32 v{p16}, 15, v0"),
          I(f"v_lshrrev_b32 v{r8}, 3, v0"), I(f"v_and_b32 v{p8}, 7, v0"),
          I(f"s_and_b32 s10, {sWV}, 1"), I("s_mul_i32 s10, s10, 57344"),
          I(f"s_lshl_b32 s11, {sC}, 8"), I("s_add_u32 s10, s10, s11"),
          I("s_movk_i32 s11, 3584"),
          I(f"v_mad_u32_u24 v20, v{r4}, s11, s10") if False else I(f"v_mul_u32_u24 v20, s11, v{r4}"),
          I("v_add_u32 v20, s10, v20"),
          I(f"v_lshlrev_b32 v21, 1, v{r4}"), I(f"v_xor_b32 v21, v21, v{p16}"),
          I(f"v_lshl_add_u32 v{vWd[0]}, v21, 4, v20"),
          I(f"v_add_u32 v{vWd[1]}, {4*3584-1024}, v{vWd[0]}"),
          I(f"v_xor_b32 v21, 8, v21"),
          I(f"v_lshl_add_u32 v{vWd[2]}, v21, 4, v20"),
          I(f"v_add_u32 v{vWd[2]}, {2*(4*3584-1024)}, v{vWd[2]}"),
          I(f"v_add_u32 v{vWd[3]}, {4*3584-1024}, v{vWd[2]}"),
          I(f"s_lshl_b32 {sM0W}, {sWV}, 12")]
    L += [I(f"s_mul_i32 s10, {sWV}, {NXI}"),
          I(f"s_lshl_b32 s11, s10, 3"), I(f"s_add_u32 s11, s11, {sROW0}"), I("s_mul_i32 s11, s11, 896"),
          I(f"s_lshl_b32 {sM0X}, s10, 10"), I(f"s_add_u32 {sM0X}, {sM0X}, {FX_RING}"),
          I("s_and_b32 s10, s10, 1"), I("s_lshl_b32 s10, s10, 2"),
          I("s_movk_i32 s27, 896"),
          I(f"v_mul_u32_u24 v20, s27, v{r8}"),
          I(f"v_xor_b32 v21, v{r4}, v{p8}"),
          I(f"v_lshl_add_u32 v22, v21, 4, v20"),
          I("s_lshl_b32 s10, s10, 4"),
          I(f"v_xor_b32 v{vXd[0]}, s10, v22"),
          I(f"v_add_u32 v{vXd[0]}, s11, v{vXd[0]}")]
    for i in range(1, NXI):
        L += [I(f"v_xor_b32 v{vXd[i]}, s10, v22")] if i % 2 == 0 else \
             [I(f"s_xor_b32 s27, s10, 64"), I(f"v_xor_b32 v{vXd[i]}, s27, v22")]
        L += [I(f"s_add_u32 s11, s11, {8*896-1024}"), I(f"v_add_u32 v{vXd[i]}, s11, v{vXd[i]}")]
    L += [Wait(lgkm="all")]
    L += mksrd(SRD_X, 4, X_BYTES)
    L += [I(f"s_cmp_lt_u32 {sWV}, 2"), I(f"s_cselect_b32 s{SRD_W}, s12, s14"), I(f"s_cselect_b32 s{SRD_W+1}, s13, s15"),
          I(f"s_mov_b32 s{SRD_W+2}, {WG_BYTES}"), I(f"s_mov_b32 s{SRD_W+3}, 0x20000")]

    def dmaW(u):
        s, e = divmod(u, 2)
        r = [I(f"s_mul_i32 {sSOFF}, {sK[s]}, 1792")]
        if e: r += [I(f"s_add_u32 {sSOFF}, {sSOFF}, 114688")]
        r += [I(f"s_add_u32 m0, {sM0W}, {FW_RING + (u % FW_R) * 16384}"), I("s_nop 0")] if False else \
             [I(f"s_add_u32 m0, {sM0W}, {FW_RING + (u % FW_R) * 16384}")]
        r = [r[-1]] + r[:-1]
        for i in range(4):
            r.append(I(f"buffer_load_dwordx4 v{vWd[i]}, {srd(SRD_W)}, {sSOFF} offen offset:{1024*i} lds", f"W{u}"))
        return r
    def dmaX(s):
        r = [I(f"s_add_u32 m0, {sM0X}, {(s % 3) * FX_SLOT}"), I("s_nop 0")]
        for i in range(NXI):
            r.append(I(f"buffer_load_dwordx4 v{vXd[i]}, {srd(SRD_X)}, {sK[s]} offen offset:{1024*i} lds", f"X{s}"))
        return r
    def dmaX2(p):
        r = [I(f"s_add_u32 {sT0}, {sT1}, {FX2 + p * 2 * 14336}")]
        if p: r += [I(f"v_add_u32 v{vX2d}, {32*896}, v{vX2d}")]
        for s in range(7):
            r += [I(f"s_add_u32 m0, {sT0}, {s * 2048}"), I("s_nop 0"),
                  I(f"buffer_load_dwordx4 v{vX2d}, {srd(SRD_X)}, {sK[s]} offen lds", f"X2_{p}")]
        return r
    L += dmaW(0) + dmaX(0) + dmaW(1)
    L += sk_next(1)
    L += dmaW(2)
    for s in range(2, 7): L += sk_next(s)
    L += [I(f"s_add_u32 s{SRD_A}, s24, {A_OFF}"), I(f"s_addc_u32 s{SRD_A+1}, s25, 0"),
          I(f"s_mov_b32 s{SRD_A+2}, {A_BYTES}"), I(f"s_mov_b32 s{SRD_A+3}, 0x20000"),
          I(f"s_mov_b32 {sNL2E}, {hex(f2u(-math.log2(math.e)))}"),
          I(f"s_lshr_b32 s10, {sROW0}, 4"), I(f"s_mul_i32 s10, s10, {NK}"), I(f"s_lshl_b32 s11, {sC}, 2"),
          I("s_add_u32 s10, s10, s11"), I(f"s_add_u32 s10, s10, {sWV}"), I(f"s_lshl_b32 {sAST}, s10, 10"),
          I(f"v_lshlrev_b32 v{vAst}, 4, v0"),
          I(f"v_bfe_u32 v20, v0, 2, 2"),
          I(f"v_lshl_add_u32 v21, v{r4}, 3, v20"),
          I(f"v_and_b32 v23, 1, v{r4}"), I("v_lshl_add_u32 v20, v23, 2, v20"),
          I(f"s_lshl_b32 s10, {sWV}, 1"), I("v_xor_b32 v20, s10, v20"),
          I("v_lshlrev_b32 v20, 5, v20"), I("v_lshl_add_u32 v20, v21, 8, v20"),
          I("v_and_b32 v21, 3, v0"), I(f"v_lshl_add_u32 v{vWr[0]}, v21, 3, v20"),
          I(f"v_xor_b32 v{vWr[1]}, 32, v{vWr[0]}"),
          I(f"v_lshrrev_b32 v20, 1, v{p16}"), I(f"v_xor_b32 v20, v20, v{r4}"), I("v_lshlrev_b32 v20, 4, v20"),
          I(f"v_lshl_add_u32 v20, v{p16}, 7, v20"),
          I(f"v_add_u32 v{vXr[0]}, {FX_RING}, v20"), I(f"v_xor_b32 v{vXr[1]}, 64, v{vXr[0]}"),
          I(f"v_add_u32 v{vX2r[0]}, {FX2}, v20"), I(f"v_xor_b32 v{vX2r[1]}, 64, v{vX2r[0]}"),
          I(f"s_lshl_b32 s10, {sWV}, 3"), I(f"s_add_u32 s10, s10, {sROW0}"), I(f"s_add_u32 s10, s10, {16*P1}"),
          I("s_mul_i32 s10, s10, 896"),
          I(f"s_and_b32 s11, {sWV}, 1"), I("s_lshl_b32 s27, s11, 6"),
          I(f"v_xor_b32 v{vX2d}, s27, v22"), I(f"v_add_u32 v{vX2d}, s10, v{vX2d}"),
          I("s_lshl_b32 s11, s11, 10"), I(f"s_lshr_b32 s10, {sWV}, 1"), I("s_mul_i32 s10, s10, 14336"),
          I(f"s_add_u32 {sT1}, s10, s11")]
    assert FX_RING % 128 == 0 and FX2 % 128 == 0

    def readsW(u):
        r = []
        for m in range(2):
            for t in range(2):
                for h in range(2):
                    r.append(I(f"ds_read_b64_tr_b16 {aq(wfr(u,m,t)+2*h, 2)}, v{vWr[t]} offset:{FW_RING + (u%FW_R)*16384 + m*8192 + h*1024}", f"r{u}"))
        return r
    def readsX(u):
        s, e = divmod(u, 2)
        return [I(f"ds_read_b128 {vq(XB + ((u%2)*6 + T)*4)}, v{vXr[e]} offset:{(s%3)*FX_SLOT + T*2048}", f"r{u}") for T in range(P1)]
    def mm1(u):
        return [mfma(vq(accq(T, m, t)), aq(wfr(u, m, t)), vq(XB + ((u%2)*6 + T)*4), u == 0)
                for T in range(P1) for m in range(2) for t in range(2)]
    def mix(a, b):
        o = []
        while a or b:
            if a: o.append(a.pop(0))
            if b: o.append(b.pop(0))
        return o
    NF2 = NT2 * 14
    def rd2(n):
        T, u = divmod(n, 14); s, e = divmod(u, 2)
        return I(f"ds_read_b128 {vq(XB + ((n + 4) % 12)*4)}, v{vX2r[e]} offset:{T*14336 + s*2048}", f"q{n//4}")
    for u in range(14):
        L += [Wait(vm=[f"W{u}", f"X{u//2}"], lgkm="all"), I("s_barrier")]
        dm = []
        if u == 0: dm = dmaX(1) + dmaW(3) + dmaX(2)
        else:
            if u + 3 < 14: dm += dmaW(u + 3)
            if u % 2 == 0 and u // 2 + 2 < 7: dm += dmaX(u // 2 + 2)
            if u == 11: dm += dmaX2(0)
            if u == 12 and NT2 > 2: dm += dmaX2(1)
            if u == 13 and NT2 > 4: dm += dmaX2(2)
        rd = readsX(u) + readsW(u)
        if u == 0:
            L += rd + dm
        else:
            seq, left = interleave(mm1(u - 1), dm + rd, per_gap=2, spread=False)
            L += seq + left
    def rd2b(n):
        T, u = divmod(n, 14); s, e = divmod(u, 2)
        return I(f"ds_read_b128 {vq(XB + (n % 12)*4)}, v{vX2r[e]} offset:{T*14336 + s*2048}", f"q{n//4}")
    L += [Wait(vm="X2_0", lgkm="all"), I("s_barrier")]
    m13 = mm1(13)
    seq, left = interleave(m13, [rd2b(n) for n in range(8)], per_gap=1, start=9, spread=False)
    L += seq + left
    def epi(T, slot):
        r = []
        G0 = lambda t: accq(slot, 0, t)
        U0 = lambda t: accq(slot, 1, t)
        dst = accq(slot, 0, 0)
        for t in range(2):
            for pr in range(2):
                ga, gb, ua, ub = G0(t) + 2*pr, G0(t) + 2*pr + 1, U0(t) + 2*pr, U0(t) + 2*pr + 1
                ta, tb = vT[0], vT[1]
                r += [I(f"v_mul_f32 v{ta}, {sNL2E}, v{ga}"), I(f"v_mul_f32 v{tb}, {sNL2E}, v{gb}"),
                      I(f"v_exp_f32 v{ta}, v{ta}"), I(f"v_exp_f32 v{tb}, v{tb}"),
                      I(f"v_mul_f32 v{ga}, v{ga}, v{ua}"), I(f"v_mul_f32 v{gb}, v{gb}, v{ub}"),
                      I(f"v_add_f32 v{ta}, 1.0, v{ta}"), I(f"v_add_f32 v{tb}, 1.0, v{tb}"),
                      I(f"v_rcp_f32 v{ta}, v{ta}"), I(f"v_rcp_f32 v{tb}, v{tb}"),
                      I(f"v_mul_f32 v{ga}, v{ga}, v{ta}"), I(f"v_mul_f32 v{gb}, v{gb}, v{tb}"),
                      I(f"v_cvt_pk_bf16_f32 v{dst + t*2 + pr}, v{ga}, v{gb}")]
        r += [I(f"buffer_store_dwordx4 {vq(dst)}, v{vAst}, {srd(SRD_A)}, {sAST} offen sc1", "st"),
              I(f"s_add_u32 {sAST}, {sAST}, {NK*1024}")]
        return r
    slot_of = {T: T for T in range(P1)}
    slot_of[P1] = P1
    for T in range(P1 + 1, 10): slot_of[T] = T - P1 - 1
    backlog = []
    avail = {}
    for T in range(P1): backlog += [(T, x) for x in epi(T, slot_of[T])]
    nb = (NF2 + 3) // 4
    for b in range(nb):
        main = []
        for n in range(4 * b, min(4 * b + 4, NF2)):
            T2, u = divmod(n, 14); T = P1 + T2
            main += [(T, mfma(vq(accq(slot_of[T], m, t)), aq(wfr(u, m, t)), vq(XB + (n % 12) * 4), u == 0))
                     for m in range(2) for t in range(2)]
        pre = []
        for p in range(1, NT2 // 2):
            if 4 * (b + 2) <= 28 * p < 4 * (b + 3):
                pre += [Wait(vm=f"X2_{p}"), I("s_barrier")]
        pre += [Wait(lgkm=f"q{b}")]
        L += pre
        reads = [rd2b(n) for n in range(4 * (b + 2), min(4 * (b + 3), NF2))]
        for idx, (T, ins) in enumerate(main):
            if ins.text.endswith(", 0") and T > P1:
                old = slot_of[T]
                while any(t == old for t, _ in backlog):
                    L.append(backlog.pop(0)[1])
            L.append(ins)
            budget = 2
            if reads and idx % 4 == 0:
                L.append(reads.pop(0)); budget -= 1
            while backlog and backlog[0][1].cost <= budget:
                t, x = backlog.pop(0); L.append(x); budget -= x.cost
            n_idx = 4 * b + idx // 4
            if idx % 4 == 3 and n_idx % 14 == 13:
                Tf = P1 + n_idx // 14
                e = epi(Tf, slot_of[Tf])
                if len(backlog) < 8: backlog += [(Tf, I("s_nop 7"))]
                backlog += [(Tf, x) for x in e]
    L += [x for _, x in backlog]
    return L

QW_RING, QW_SLOT = 0, 24576
QX_RING, QX_SLOT = 98304, 20480
QG = QX_RING + 3 * QX_SLOT
assert QG + 4096 <= 163840
QZ = 0

def qkv():
    vWd = [1, 2]; vXd = [3, 4]; vWr = [[5, 6], [7, 8]]; vXr = [9, 10]
    vQ1b, vQA, vQB_, vQH, vQ1 = 11, 12, 13, 14, [15, 16]
    vT = list(range(17, 48))
    K0 = 48; K1 = K0 + 36; V0 = K1 + 36; V1 = V0 + 36; Q0 = V1 + 36; Q1 = Q0 + 32
    assert Q1 + 32 == 256
    WF = 0; XF = 48
    def wf(u, sec, t): return WF + (u % 2) * 24 + (sec * 2 + t) * 4
    def xf(u, T): return XF + (u % 2) * 36 + T * 4
    r4, p16, r8, p8 = 17, 18, 19, 20
    L = [I("L_qkv:"), I(f"s_mov_b32 {sJ}, s10")]
    if ROT:
        L += [I(f"s_mul_i32 s11, {sQB}, 37"), I("s_lshr_b32 s11, s11, 8"), I("s_mul_i32 s11, s11, 7"),
              I(f"s_sub_u32 s11, {sQB}, s11"), I(f"s_lshl_b32 {sK[0]}, s11, 7")]
    else:
        L += [I(f"s_mov_b32 {sK[0]}, 0")]
    L += [I(f"v_lshrrev_b32 v{r4}, 4, v0"), I(f"v_and_b32 v{p16}, 15, v0"),
          I(f"v_lshrrev_b32 v{r8}, 3, v0"), I(f"v_and_b32 v{p8}, 7, v0"),
          I(f"s_mul_i32 s11, {sJ}, 224"), I(f"s_cmp_eq_u32 {sJ}, 3"), I("s_cselect_b32 s11, 640, s11"),
          I(f"s_mul_i32 s26, {sWV}, {8*2688}"), I("s_add_u32 s11, s11, s26"),
          I("s_movk_i32 s27, 2688"), I(f"v_mul_u32_u24 v21, s27, v{r4}"), I("v_add_u32 v21, s11, v21"),
          I(f"s_and_b32 s26, {sWV}, 1"), I("s_lshl_b32 s26, s26, 3"),
          I(f"v_lshlrev_b32 v22, 1, v{r4}"), I(f"v_sub_u32 v22, v{p16}, v22"), I("v_xor_b32 v22, s26, v22"),
          I("v_and_b32 v22, 15, v22"),
          I(f"v_lshl_add_u32 v{vWd[0]}, v22, 4, v21"),
          I(f"v_add_u32 v{vWd[1]}, {4*2688-1024}, v{vWd[0]}"),
          I(f"s_lshl_b32 {sM0W}, {sWV}, 11"),
          I("s_movk_i32 s27, 896"), I(f"v_mul_u32_u24 v21, s27, v{r8}"),
          I(f"v_xor_b32 v22, v{r4}, v{p8}"), I("v_lshl_add_u32 v21, v22, 4, v21"),
          I("s_lshl_b32 s26, s26, 3"),
          I(f"v_xor_b32 v{vXd[0]}, s26, v21"), I(f"v_xor_b32 v{vXd[1]}, 64, v{vXd[0]}"),
          I(f"s_mul_i32 {sM0X}, {sWV}, 5120"), I(f"s_add_u32 {sM0X}, {sM0X}, {QX_RING}"),
          I(f"s_lshl_b32 s26, {sQB}, 7"), I(f"s_mul_i32 s27, {sWV}, 40"), I("s_add_u32 s26, s26, s27"),
          I("s_sub_u32 s26, s26, 16")]
    for i in range(5):
        L += [I(f"s_add_u32 s27, s26, {8*i}"), I(f"s_mul_i32 {sXROW[i]}, s27, 896")]
        if i < 2:
            L += [I("s_cmp_lt_i32 s27, 0"), I(f"s_cselect_b32 {sXROW[i]}, {OOB}, {sXROW[i]}")]
        if i >= 3:
            L += [I(f"s_cmp_eq_u32 {sWV}, 3"), I(f"s_cselect_b32 {sXROW[i]}, {OOB}, {sXROW[i]}")]
    L += [Wait(lgkm="all")]
    L += mksrd(SRD_X, 4, X_BYTES) + mksrd(SRD_W, 6, WQKV_BYTES) + mksrd(SRD_M, 18, 896)
    L += [I(f"s_lshl_b32 s26, {sWV}, 7"), I("v_lshl_add_u32 v23, v0, 1, s26"),
          I(f"buffer_load_ushort v24, v23, {srd(SRD_M)}, 0 offen", "gw"),
          I(f"buffer_load_ushort v25, v23, {srd(SRD_M)}, 0 offen offset:512", "gw")]

    def dmaW(u):
        s, e = divmod(u, 2)
        r = []
        for sec in range(3):
            r += [I(f"s_add_u32 m0, {sM0W}, {QW_RING + (u % 4) * QW_SLOT + sec * 8192}")]
            if sec == 0:
                r += [I(f"s_mul_i32 {sSOFF}, {sK[s]}, 1344")]
                if e: r += [I(f"s_add_u32 {sSOFF}, {sSOFF}, 86016")]
            else:
                r += [I(f"s_add_u32 {sSOFF}, {sSOFF}, 896")]
            for i in range(2):
                r.append(I(f"buffer_load_dwordx4 v{vWd[i]}, {srd(SRD_W)}, {sSOFF} offen offset:{1024*i} lds", f"W{u}"))
        return r
    def dmaX(s):
        r = []
        for i in range(5):
            r += [I(f"s_add_u32 m0, {sM0X}, {(s % 3) * QX_SLOT + i * 1024}"), I(f"s_add_u32 {sT0}, {sXROW[i]}, {sK[s]}"),
                  I(f"buffer_load_dwordx4 v{vXd[i % 2]}, {srd(SRD_X)}, {sT0} offen lds", f"X{s}")]
        return r
    L += dmaW(0) + dmaX(0) + dmaW(1)
    for s in range(1, 7): L += sk_next(s)
    L += [I(f"s_add_u32 s{SRD_A}, s24, {A_OFF}"), I(f"s_addc_u32 s{SRD_A+1}, s25, 0"),
          I(f"s_mov_b32 s{SRD_A+2}, {A_BYTES}"), I(f"s_mov_b32 s{SRD_A+3}, 0x20000"),
          I("v_bfe_u32 v21, v0, 2, 2"), I(f"v_lshl_add_u32 v22, v{r4}, 3, v21"),
          I(f"v_and_b32 v26, 1, v{r4}"), I("v_lshl_add_u32 v21, v26, 2, v21"),
          I("v_and_b32 v26, 3, v0"), I("v_lshlrev_b32 v27, 3, v26"), I("v_lshl_add_u32 v21, v21, 5, v27"),
          I(f"s_mul_i32 s26, {sWV}, 56"), I(f"s_cmp_eq_u32 {sJ}, 3"), I("s_cselect_b32 s27, 32, 0"),
          I("s_add_u32 s26, s26, s27"), I("v_add_u32 v21, s26, v21"),
          I("v_and_b32 v27, 0xff, v21"), I(f"v_lshl_add_u32 v{vWr[0][0]}, v22, 8, v27"),
          I("v_add_u32 v21, 32, v21"), I("v_and_b32 v27, 0xff, v21"), I(f"v_lshl_add_u32 v{vWr[0][1]}, v22, 8, v27"),
          I(f"v_add_u32 v{vWr[1][0]}, {2*QW_SLOT}, v{vWr[0][0]}"), I(f"v_add_u32 v{vWr[1][1]}, {2*QW_SLOT}, v{vWr[0][1]}"),
          I("v_cmp_eq_u32 vcc, 3, v26"),
          I(f"v_lshlrev_b32 v27, 3, v22"), I(f"v_add_u32 v27, {QG}, v27"),
          I(f"v_cndmask_b32 v{vQ1b}, v{vWr[0][1]}, v27, vcc"),
          I(f"v_mov_b32 v27, 1"), I(f"v_cndmask_b32 v{vQA}, v27, 0, vcc" ) ,
          I(f"v_cndmask_b32 v{vQB_}, 0, v27, vcc"),
          I(f"v_mov_b32 v27, 0x400"), I(f"v_cndmask_b32 v{vQH}, v27, 32, vcc"),
          I(f"v_lshrrev_b32 v21, 1, v{p16}"), I(f"v_xor_b32 v21, v21, v{r4}"), I("v_lshlrev_b32 v21, 4, v21"),
          I(f"v_lshl_add_u32 v21, v{p16}, 7, v21"),
          I(f"v_add_u32 v{vXr[0]}, {QX_RING}, v21"), I(f"v_xor_b32 v{vXr[1]}, 64, v{vXr[0]}"),
          I("v_lshlrev_b32 v23, 2, v23"), I(f"v_add_u32 v23, {QG}, v23"),
          Wait(vm="gw"),
          I("ds_write_b16 v23, v24"),
          I("ds_write_b16 v23, v25 offset:2048")]
    def reads(u):
        s, e = divmod(u, 2)
        sl = u % 4
        r = [I(f"s_lshl_b32 {sT1}, {sK[s]}, 2")]
        if e: r += [I(f"s_add_u32 {sT1}, {sT1}, 256")]
        r += [I(f"s_mov_b32 {sT2}, {sl * QW_SLOT}"),
              I(f"v_mad_u32_u24 v{vQ1[0]}, v{vQB_}, {sT1}, v{vQ1b}"),
              I(f"v_mad_u32_u24 v{vQ1[0]}, v{vQA}, {sT2}, v{vQ1[0]}"),
              I(f"v_add_u32 v{vQ1[1]}, v{vQH}, v{vQ1[0]}")]
        for T in range(9):
            r.append(I(f"ds_read_b128 {aq(xf(u, T))}, v{vXr[e]} offset:{(s % 3) * QX_SLOT + T * 2048}", f"r{u}"))
        for sec in (1, 2, 0):
            for t in range(2):
                for h in range(2):
                    if sec == 0 and t == 1:
                        r.append(I(f"ds_read_b64_tr_b16 {aq(wf(u,sec,t)+2*h, 2)}, v{vQ1[h]}", f"r{u}"))
                    else:
                        r.append(I(f"ds_read_b64_tr_b16 {aq(wf(u,sec,t)+2*h, 2)}, v{vWr[sl//2][t]} offset:{(sl%2)*QW_SLOT + sec*8192 + h*1024}", f"r{u}"))
        return r
    def mm(u):
        r = []
        for T in range(9):
            r += [mfma(vq(K0 + 4*T), aq(wf(u,1,0)), aq(xf(u,T)), u == 0), mfma(vq(K1 + 4*T), aq(wf(u,1,1)), aq(xf(u,T)), u == 0)]
        for T in range(9):
            r += [mfma(vq(V0 + 4*T), aq(xf(u,T)), aq(wf(u,2,0)), u == 0), mfma(vq(V1 + 4*T), aq(xf(u,T)), aq(wf(u,2,1)), u == 0)]
        for T in range(1, 9):
            r += [mfma(vq(Q0 + 4*(T-1)), aq(wf(u,0,0)), aq(xf(u,T)), u == 0), mfma(vq(Q1 + 4*(T-1)), aq(wf(u,0,1)), aq(xf(u,T)), u == 0)]
        return r
    for u in range(14):
        L += [Wait(vm=[f"W{u}", f"X{u//2}"], lgkm="all"), I("s_barrier")]
        dm = []
        if u == 0: dm = dmaW(2) + dmaX(1) + dmaW(3) + dmaX(2)
        else:
            if u + 3 < 14: dm += dmaW(u + 3)
            if u % 2 == 0 and u // 2 + 2 < 7: dm += dmaX(u // 2 + 2)
        if u == 0:
            L += reads(0) + dm
        else:
            seq, left = interleave(mm(u - 1), dm + reads(u), per_gap=2, spread=False)
            L += seq + left
    i16, g4 = 18, 17
    sel = [21, 22, 23, 24]; vMq = 25; vSt = 26; vZw, vZr, vZb = 27, 28, 29
    RAT = 30
    TA = 38
    C = [I(f"v_and_b32 v38, 1, v{i16}"), I(f"v_cmp_eq_u32 {mODD}, 1, v38"),
         I(f"v_lshl_add_u32 v38, v{g4}, 2, v38"),
         I(f"v_cmp_le_u32 {mC0}, v38, v{i16}"), I("v_add_u32 v38, 2, v38"), I(f"v_cmp_le_u32 {mC1}, v38, v{i16}"),
         I(f"v_cmp_eq_u32 {mG3}, 3, v{g4}"),
         I("v_mov_b32 v39, 0x0c0c0100"), I("v_mov_b32 v40, 0x01000c0c"),
         I(f"v_cndmask_b32 v39, v39, v40, {mODD}"),
         I("v_mov_b32 v41, 0x0c0c0302"), I("v_mov_b32 v40, 0x03020c0c"),
         I(f"v_cndmask_b32 v41, v41, v40, {mODD}"),
         I("v_mov_b32 v40, 0x0c0c0c0c"),
         I(f"v_cndmask_b32 v{sel[0]}, v39, v40, {mC0}"), I(f"v_cndmask_b32 v{sel[1]}, v41, v40, {mC1}"),
         I(f"v_cndmask_b32 v{sel[2]}, v40, v39, {mC0}"), I(f"v_cndmask_b32 v{sel[3]}, v40, v41, {mC1}"),
         I(f"v_cndmask_b32 v{vMq}, -1, 0, {mG3}"),
         I(f"s_cmp_eq_u32 {sQB}, 0"), I(f"s_cselect_b64 {mC0F}, {mC0}, -1"), I(f"s_cselect_b64 {mC1F}, {mC1}, -1"),
         I(f"s_mov_b32 {sSCL}, {hex(f2u(28 ** -0.5 * math.log2(math.e)))}"),
         I(f"s_mov_b32 {sNL2E}, {hex(f2u(-math.log2(math.e)))}"),
         I(f"v_lshlrev_b32 v{vSt}, 4, v0"),
         I(f"s_mul_i32 s26, {sQB}, {8*NK}"), I(f"s_lshl_b32 s27, {sJ}, 2"), I("s_add_u32 s26, s26, s27"),
         I(f"s_add_u32 s26, s26, {sWV}"), I("s_add_u32 s26, s26, 56"), I(f"s_lshl_b32 {sAST}, s26, 10"),
         I(f"s_lshl_b32 s26, {sWV}, 10"), I(f"v_lshlrev_b32 v38, 5, v{i16}"), I(f"v_add_u32 v{vZb}, s26, v38"),
         I(f"v_add_u32 v38, 0x200, v{vZb}"), I(f"v_cndmask_b32 v{vZw}, v38, v{vZb}, {mG3}"),
         I(f"v_lshl_add_u32 v{vZr}, v{g4}, 2, v{vZb}")]
    C += mksrd(SRD_M, 24, MISC_BYTES)
    packK = []
    for T in range(9):
        a, b = K0 + 4*T, K1 + 4*T
        packK += [I(f"v_cvt_pk_bf16_f32 v{a}, v{a}, v{a+1}"), I(f"v_cvt_pk_bf16_f32 v{a+1}, v{a+2}, v{a+3}"),
                  I(f"v_cvt_pk_bf16_f32 v{a+2}, v{b}, v{b+1}"), I(f"v_cvt_pk_bf16_f32 v{a+3}, v{b+2}, v{b+3}")]
    VB0, VB1 = K1, K1 + 18
    packV = []
    for T in range(9):
        a, b = V0 + 4*T, V1 + 4*T
        packV += [I(f"v_cvt_pk_bf16_f32 v{VB0+2*T}, v{a}, v{a+1}"), I(f"v_cvt_pk_bf16_f32 v{VB0+2*T+1}, v{a+2}, v{a+3}"),
                  I(f"v_cvt_pk_bf16_f32 v{VB1+2*T}, v{b}, v{b+1}"), I(f"v_cvt_pk_bf16_f32 v{VB1+2*T+1}, v{b+2}, v{b+3}")]
    L += [Wait(lgkm="all"), I("s_barrier")]
    m13 = mm(13)
    seq, left = interleave(m13[:22], C, per_gap=2, spread=False)
    L += seq
    seq, left = interleave(m13[22:], left + packK + packV, per_gap=2, spread=False)
    L += seq + left
    Z = []
    for T in range(8):
        Z.append(I(f"ds_write_b32 v{vZw}, v{Q1 + 4*T} offset:{4*T}", "zw"))
    packQ = []
    for T in range(8):
        a, b = Q0 + 4*T, Q1 + 4*T
        packQ += [I(f"v_cvt_pk_bf16_f32 v{a}, v{a}, v{a+1}"), I(f"v_cvt_pk_bf16_f32 v{a+1}, v{a+2}, v{a+3}"),
                  I(f"v_cvt_pk_bf16_f32 v{a+2}, v{b}, v{b+1}"), I(f"v_cvt_pk_bf16_f32 v{a+3}, v{b+2}, v{b+3}"),
                  I(f"v_and_b32 v{a+2}, v{vMq}, v{a+2}"), I(f"v_and_b32 v{a+3}, v{vMq}, v{a+3}")]
    L += [I("s_nop 3")] + Z + [Wait(lgkm="zw"), I(f"ds_read_b32 v38, v{vZr}", "zr"), I(f"ds_read_b32 v39, v{vZr} offset:16", "zr")]
    L += packQ[:24] + [Wait(lgkm="zr")]
    G = []
    for z, g, o in ((38, 40, 42), (39, 41, 43)):
        G.append([I(f"v_cvt_pk_bf16_f32 v{z}, v{z}, v{z}"), I(f"v_and_b32 v{z}, 0xffff0000, v{z}"),
                  I(f"v_mul_f32 v{z}, {sNL2E}, v{z}"), I(f"v_exp_f32 v{z}, v{z}"), I(f"v_add_f32 v{z}, 1.0, v{z}"),
                  I(f"v_rcp_f32 v{g}, v{z}"), I(f"v_cvt_pk_bf16_f32 v{g}, v{g}, v{g}"), I(f"v_and_b32 v{g}, 0xffff0000, v{g}"),
                  I(f"v_sub_f32 v{o}, 1.0, v{g}"), I(f"v_cvt_pk_bf16_f32 v{o}, v{o}, v{o}"), I(f"v_and_b32 v{o}, 0xffff0000, v{o}"),
                  I(f"v_max_f32 v{o}, {hex(f2u(1e-30))}, v{o}"), I(f"v_rcp_f32 v{z}, v{o}"), I(f"v_mul_f32 v{g}, v{g}, v{z}")])
    for a, b in zip(*G): L += [a, b]
    L += [I(f"ds_write_b32 v{vZr}, v40", "zw2"), I(f"ds_write_b32 v{vZr}, v41 offset:16", "zw2"),
          I(f"s_lshl_b32 s26, {sJ}, 13"), I(f"s_lshl_b32 s27, {sQB}, 9"), I("s_add_u32 s26, s26, s27"),
          I(f"s_cmp_eq_u32 {sWV}, 0"), I(f"s_cselect_b32 s26, s26, {OOB}"),
          I("v_lshlrev_b32 v44, 2, v0"),
          I(f"buffer_store_dword v42, v44, {srd(SRD_M)}, s26 offen sc1", "st"),
          I(f"buffer_store_dword v43, v44, {srd(SRD_M)}, s26 offen offset:256 sc1", "st"),
          Wait(lgkm="zw2"),
          I(f"ds_read_b128 {vq(RAT)}, v{vZb}", "zr2"), I(f"ds_read_b128 {vq(RAT+4)}, v{vZb} offset:16", "zr2")]
    L += packQ[24:]
    def att(T, base):
        SP, SC, a0, a1, m, t, P = base, base + 4, base + 8, base + 9, base + 10, base + 11, base + 12
        q = Q0 + 4 * (T - 1)
        O0, O1 = V0 + 4 * T, V1 + 4 * T
        st = []
        st.append([mfma(vq(SP), vq(K0 + 4*(T-1)), vq(q), True), mfma(vq(SC), vq(K0 + 4*T), vq(q), True)])
        s = [I(f"v_cndmask_b32 v{SP}, v{SP}, v{SP+1}, {mODD}"), I(f"v_cndmask_b32 v{SP+2}, v{SP+2}, v{SP+3}, {mODD}"),
             I(f"v_cndmask_b32 v{SC}, v{SC}, v{SC+1}, {mODD}"), I(f"v_cndmask_b32 v{SC+2}, v{SC+2}, v{SC+3}, {mODD}"),
             I(f"v_cndmask_b32 v{a0}, v{SP}, v{SC}, {mC0}"), I(f"v_cndmask_b32 v{a1}, v{SP+2}, v{SC+2}, {mC1}")]
        if T == 1:
            s += [I(f"v_mov_b32 v{t}, {hex(f2u(-1e30))}"),
                  I(f"v_cndmask_b32 v{a0}, v{t}, v{a0}, {mC0F}"), I(f"v_cndmask_b32 v{a1}, v{t}, v{a1}, {mC1F}")]
        s += [I(f"v_max_f32 v{m}, v{a0}, v{a1}"), I(f"v_mov_b32 v{t}, v{m}")]
        st.append(s)
        st.append([I(f"v_permlane32_swap_b32 v{m}, v{t}"), I(f"v_max_f32 v{m}, v{m}, v{t}"), I(f"v_mov_b32 v{t}, v{m}")])
        st.append([I(f"v_permlane16_swap_b32 v{m}, v{t}"), I(f"v_max_f32 v{m}, v{m}, v{t}"),
                   I(f"v_sub_f32 v{a0}, v{a0}, v{m}"), I(f"v_sub_f32 v{a1}, v{a1}, v{m}"),
                   I(f"v_mul_f32 v{a0}, {sSCL}, v{a0}"), I(f"v_mul_f32 v{a1}, {sSCL}, v{a1}"),
                   I(f"v_exp_f32 v{a0}, v{a0}"), I(f"v_exp_f32 v{a1}, v{a1}")])
        st.append([I(f"v_cvt_pk_bf16_f32 v{SP}, v{a0}, v{a1}"), I(f"v_add_f32 v{m}, v{a0}, v{a1}"), I(f"v_mov_b32 v{t}, v{m}"),
                   I(f"v_perm_b32 v{P}, v{SP}, v{SP}, v{sel[0]}"), I(f"v_perm_b32 v{P+1}, v{SP}, v{SP}, v{sel[1]}"),
                   I(f"v_perm_b32 v{P+2}, v{SP}, v{SP}, v{sel[2]}"), I(f"v_perm_b32 v{P+3}, v{SP}, v{SP}, v{sel[3]}"),
                   I(f"v_permlane32_swap_b32 v{m}, v{t}"), I(f"v_add_f32 v{m}, v{m}, v{t}"), I(f"v_mov_b32 v{t}, v{m}")])
        st.append([mfma(vq(O0), vq(VB0 + 2*(T-1)), vq(P), True), mfma(vq(O1), vq(VB1 + 2*(T-1)), vq(P), True),
                   I(f"v_permlane16_swap_b32 v{m}, v{t}"), I(f"v_add_f32 v{m}, v{m}, v{t}"), I(f"v_rcp_f32 v{m}, v{m}")])
        st.append([I(f"v_mul_f32 v{m}, v{m}, v{RAT + T - 1}"), I(f"v_cndmask_b32 v{t}, v{m}, 0, {mG3}")])
        s = []
        for r in range(4): s.append(I(f"v_mul_f32 v{O0+r}, v{O0+r}, v{m}"))
        for r in range(4): s.append(I(f"v_mul_f32 v{O1+r}, v{O1+r}, v{t}"))
        s += [I(f"v_cvt_pk_bf16_f32 v{O0}, v{O0}, v{O0+1}"), I(f"v_cvt_pk_bf16_f32 v{O0+1}, v{O0+2}, v{O0+3}"),
              I(f"v_cvt_pk_bf16_f32 v{O0+2}, v{O1}, v{O1+1}"), I(f"v_cvt_pk_bf16_f32 v{O0+3}, v{O1+2}, v{O1+3}"),
              I(f"buffer_store_dwordx4 {vq(O0)}, v{vSt}, {srd(SRD_A)}, {sAST} offen sc1", "st"),
              I(f"s_add_u32 {sAST}, {sAST}, {NK*1024}")]
        st.append(s)
        return st
    L += [Wait(lgkm="zr2")]
    for T in range(1, 9, 2):
        A, B = att(T, Q1), att(T + 1, Q1 + 16)
        for k, (x, y) in enumerate(zip(A, B)):
            L += x + y
            if k == 0: L += [I("s_nop 4")]
            if k == 6: L += [I("s_nop 0")]
    return L

def phase2(standalone=True):
    vWd, vWr, vAl, vRed, vOut, vS = [1, 2, 3, 4], [5, 6, 7, 8], 9, 10, 11, 12
    ACC = 16
    W2V = 80
    AB = 112
    NAB = 9
    sRT, sNT, sP, sAO = "s63", "s64", "s74", "s75"
    sCH = [f"s{76+i}" for i in range(2)]
    def w2(q, t):
        return ("a", (q * 4 + t) * 4) if q < 16 else ("v", W2V + ((q - 16) * 4 + t) * 4)
    L = []
    if standalone:
        L += [I("s_cmp_ge_u32 s2, 256"), I("s_cbranch_scc1 L_end2")]
        L += kernarg_loads()
        L += [I("v_lshrrev_b32 v1, 6, v0"), I("v_and_b32 v0, 63, v0"), I("s_lshr_b32 s11, s2, 3"),
              I("v_readfirstlane_b32 s3, v1"),
              I("s_cmp_ge_u32 s11, 28"), I("s_cbranch_scc1 L_end2"),
              I("s_and_b32 s10, s2, 7"), I("s_lshl_b32 s10, s10, 2"), I("s_and_b32 s26, s11, 3"),
              I(f"s_add_u32 {sRT}, s10, s26"), I(f"s_lshr_b32 {sNT}, s11, 2")]
    r8, p8 = 13, 14
    L += [I(f"v_lshrrev_b32 v{r8}, 3, v0"), I(f"v_and_b32 v{p8}, 7, v0"),
          I("s_movk_i32 s27, 896"), I(f"v_mul_u32_u24 v15, s27, v{r8}"),
          I(f"v_and_b32 v{r8}, 6, v{r8}"), I(f"v_xor_b32 v{p8}, v{p8}, v{r8}"),
          I(f"v_lshl_add_u32 v15, v{p8}, 4, v15"),
          I(f"s_lshl_b32 s26, {sNT}, 7"), I(f"v_add_u32 v{vWd[0]}, s26, v15")]
    for i in range(1, 4):
        L += [I(f"v_add_u32 v{vWd[i]}, {8*896-1024}, v{vWd[i-1]}")]
    SL = 9
    L += [I(f"s_mul_i32 {sM0W}, {sWV}, {SL*4096}"),
          I(f"s_lshl_b32 {sP}, {sNT}, 1")]
    if standalone:
        L += [Wait(lgkm="all")]
        L += [I(f"s_add_u32 s{SRD_A}, s24, {A_OFF}"), I(f"s_addc_u32 s{SRD_A+1}, s25, 0"),
              I(f"s_mov_b32 s{SRD_A+2}, {A_BYTES}"), I(f"s_mov_b32 s{SRD_A+3}, 0x20000")]
    L += mksrd(SRD_W2, 16, WG_BYTES) + mksrd(SRD_WO, 8, WO_BYTES)
    def nxt(reg):
        return [I(f"s_add_u32 {reg}, {reg}, 1"), I(f"s_cmp_eq_u32 {reg}, 14"), I(f"s_cselect_b32 {reg}, 0, {reg}")]
    L += [I(f"s_mov_b32 {sCH[0]}, {sP}"), I(f"s_mov_b32 {sCH[1]}, {sP}"),
          I(f"s_mul_i32 {sT2}, {sWV}, {32*896}"),
          I(f"s_mul_i32 {sT3}, {sWV}, {4*28*896}")]
    def dmaW2(q):
        r = [I(f"s_add_u32 m0, {sM0W}, {(q % SL) * 4096}")]
        if q < 14:
            r += [I(f"s_mul_i32 {sSOFF}, {sCH[0]}, {128*896}"), I(f"s_add_u32 {sSOFF}, {sSOFF}, {sT2}")]
            sr = SRD_W2
        else:
            r += [I(f"s_add_u32 {sSOFF}, {sT3}, {(q-14)*28*896}")]
            sr = SRD_WO
        for i in range(4):
            r.append(I(f"buffer_load_dwordx4 v{vWd[i]}, {srd(sr)}, {sSOFF} offen offset:{1024*i} lds", f"W{q}"))
        if q < 13: r += nxt(sCH[0])
        return r
    def ldA(q):
        r = []
        if q < 14:
            r += [I(f"s_lshl_b32 {sT0}, {sCH[1]}, 12"), I(f"s_add_u32 {sT0}, {sT0}, {sAO}")]
        else:
            r += [I(f"s_mul_i32 {sT0}, {sWV}, 3072"), I(f"s_add_u32 {sT0}, {sT0}, {sAO}"),
                  I(f"s_add_u32 {sT0}, {sT0}, {(56 + q - 14) * 1024}")]
        for T in range(4):
            r.append(I(f"buffer_load_dwordx4 {vq(AB + (q % NAB)*16 + T*4)}, v{vAl}, {srd(SRD_A)}, {sT0} offen sc1", f"A{q}"))
            if T < 3: r.append(I(f"s_add_u32 {sT0}, {sT0}, {NK*1024}"))
        if q < 13: r += nxt(sCH[1])
        return r
    def rdW2(q):
        r = []
        for t in range(4):
            k, n = w2(q, t)
            for h in range(2):
                r.append(I(f"ds_read_b64_tr_b16 {k}[{n+2*h}:{n+2*h+1}], v{vWr[t]} offset:{(q % SL)*4096 + h*2048}", f"r{q}"))
        return r
    def mm(q):
        return [mfma(vq(ACC + (T*4+t)*4), rq(w2(q, t)), vq(AB + (q % NAB)*16 + T*4), q == 0) for T in range(4) for t in range(4)]
    L += [I(f"s_mul_i32 {sAO}, {sRT}, {4*NK*1024}"), I(f"s_lshl_b32 s26, {sWV}, 10"), I(f"s_add_u32 {sAO}, {sAO}, s26"),
          I(f"v_lshlrev_b32 v{vAl}, 4, v0")]
    PF = 4
    for q in range(PF): L += dmaW2(q) + ldA(q)
    L += [I("v_lshrrev_b32 v13, 2, v0"),
          I("v_bfe_u32 v14, v0, 3, 2"),
          I("v_lshlrev_b32 v14, 5, v14"), I("v_lshl_add_u32 v14, v13, 7, v14"),
          I("v_and_b32 v13, 3, v0"), I("v_lshl_add_u32 v14, v13, 3, v14"),
          I(f"v_add_u32 v{vWr[0]}, {sM0W}, v14")]
    for t in range(1, 4): L += [I(f"v_xor_b32 v{vWr[t]}, {32*t}, v{vWr[0]}")]
    L += mksrd(SRD_O, 20, X_BYTES) + mksrd(SRD_M, 24, MISC_BYTES)
    L += [I(f"s_lshl_b32 s26, {sWV}, 13"), I(f"s_lshl_b32 s27, {sRT}, 8"), I("s_add_u32 s26, s26, s27"),
          I(f"s_lshl_b32 s27, {sWV}, 6"), I("s_add_u32 s26, s26, s27"),
          I("v_and_b32 v13, 15, v0"), I("v_lshlrev_b32 v14, 2, v13"),
          I(f"buffer_load_dword v{vS}, v14, {srd(SRD_M)}, s26 offen sc1", "S"),
          I(f"s_lshl_b32 s26, {sRT}, 6"), I(f"s_lshl_b32 s27, {sWV}, 4"), I("s_add_u32 s26, s26, s27"),
          I("s_mul_i32 s26, s26, 896"), I(f"s_lshl_b32 s27, {sNT}, 7"), I("s_add_u32 s26, s26, s27"),
          I("s_movk_i32 s27, 896"), I("v_mul_u32_u24 v13, s27, v13"), I("v_lshrrev_b32 v14, 4, v0"),
          I(f"v_lshl_add_u32 v13, v14, 3, v13"), I(f"v_add_u32 v{vOut}, s26, v13")]
    L += [Wait(vm="W0")] + rdW2(0)
    for q in range(18):
        fill = []
        if q + 1 < 18: fill += [Wait(vm=f"W{q+1}")] + rdW2(q + 1)
        if q + PF < 18: fill += dmaW2(q + PF) + ldA(q + PF)
        L += [Wait(vm=f"A{q}", lgkm=f"r{q}")]
        seq, left = interleave(mm(q), fill, per_gap=2, spread=False)
        L += seq + left
    L += [I("s_barrier"),
          I(f"s_lshl_b32 s26, {sWV}, 12"), I(f"v_add_u32 v{vRed}, s26, v{vAl}"), I("s_nop 4")]
    for T in range(4):
        for t in range(4):
            L.append(I(f"ds_write_b128 v{vRed}, {vq(ACC + (T*4+t)*4)} offset:{T*16384 + t*1024}", "rw"))
    L += [I(f"s_lshl_b32 s26, {sWV}, 14"), I(f"v_add_u32 v{vRed}, s26, v{vAl}"),
          Wait(lgkm="all"), I("s_barrier")]
    for sw in range(4):
        for t in range(4):
            L.append(I(f"ds_read_b128 {vq(AB + (sw*4+t)*4)}, v{vRed} offset:{sw*4096 + t*1024}", f"rr{sw}"))
    L += [Wait(vm="S", lgkm="rr1")]
    for k in range(16): L.append(I(f"v_add_f32 v{AB+k}, v{AB+k}, v{AB+16+k}"))
    L += [Wait(lgkm="rr3")]
    for k in range(16): L.append(I(f"v_add_f32 v{AB+32+k}, v{AB+32+k}, v{AB+48+k}"))
    for k in range(16): L.append(I(f"v_add_f32 v{AB+k}, v{AB+k}, v{AB+32+k}"))
    for k in range(16): L.append(I(f"v_mul_f32 v{AB+k}, v{AB+k}, v{vS}"))
    for t in range(4):
        L += [I(f"v_cvt_pk_bf16_f32 v{AB+16+2*t}, v{AB+4*t}, v{AB+4*t+1}"), I(f"v_cvt_pk_bf16_f32 v{AB+16+2*t+1}, v{AB+4*t+2}, v{AB+4*t+3}"),
              I(f"buffer_store_dwordx2 v[{AB+16+2*t}:{AB+17+2*t}], v{vOut}, {srd(SRD_O)}, 0 offen offset:{32*t}", "st")]
    return L

def kd(name):
    return f""".section .rodata,"a"
.p2align 6
.amdhsa_kernel {name}
  .amdhsa_next_free_vgpr 512
  .amdhsa_next_free_sgpr 102
  .amdhsa_accum_offset 256
  .amdhsa_group_segment_fixed_size 0
  .amdhsa_kernarg_size 88
  .amdhsa_user_sgpr_count 2
  .amdhsa_user_sgpr_kernarg_segment_ptr 1
  .amdhsa_system_sgpr_workgroup_id_x 1
.end_amdhsa_kernel
.text"""

def main():
    for n in range(84): assert (n * 43) >> 8 == n // 6
    for n in range(98): assert (n * 147) >> 10 == n // 7
    pro = p1_prologue()
    def path(role):
        full = resolve(pro + role)
        return full[len(pro):], full
    f, ff = path(ffn())
    q, qf = path(qkv())
    p2 = resolve(phase2())
    probs = []
    for nm, s in (("ffn", ff), ("qkv", qf), ("p2", p2)):
        probs += check_hazards(s, nm) + check_pending(s, nm)
    for p in probs: print("HAZARD", p, file=sys.stderr)
    hdr = open(f"cdna_kernels/{NAME}.s.ref").read().split("; Override launch")[0]
    out = hdr
    out += f"; @launch kernel=p1_kernel grid=(256,1,1) block=(256,1,1) lds=163840\n"
    out += f"; @launch kernel=p2_kernel grid=(256,1,1) block=(256,1,1) lds=147456\n"
    out += '.amdgcn_target "amdgcn-amd-amdhsa--gfx950"\n.text\n'
    out += ".globl p1_kernel\n.p2align 8\n.type p1_kernel,@function\np1_kernel:\n"
    out += render(pro) + "\n" + render(f) + "\n    s_endpgm\n" + render(q) + "\nL_end1:\n    s_endpgm\n"
    out += ".globl p2_kernel\n.p2align 8\n.type p2_kernel,@function\np2_kernel:\n"
    out += render(p2) + "\nL_end2:\n    s_endpgm\n"
    out += kd("p1_kernel") + "\n" + kd("p2_kernel") + "\n"
    open(sys.argv[1], "w").write(out)
    print("instr counts: ffn", len(f), "qkv", len(q), "p2", len(p2), "hazards", len(probs))

main()
```

```python
import re

TRANS = ("v_exp_f32", "v_log_f32", "v_rcp_f32", "v_rsq_f32", "v_sqrt_f32", "v_sin_f32", "v_cos_f32")


def _expand(tok):
    tok = tok.strip()
    tok = tok.lstrip("-")
    if tok.startswith("abs(") and tok.endswith(")"):
        tok = tok[4:-1]
    if tok.startswith("|") and tok.endswith("|"):
        tok = tok[1:-1]
    m = re.fullmatch(r"([vas])\[(\d+):(\d+)\]", tok)
    if m:
        return [f"{m.group(1)}{i}" for i in range(int(m.group(2)), int(m.group(3)) + 1)]
    m = re.fullmatch(r"([vas])(\d+)", tok)
    if m:
        return [tok]
    if tok in ("vcc", "exec", "m0", "scc"):
        return [tok]
    if tok in ("vcc_lo", "vcc_hi"):
        return ["vcc"]
    if tok in ("exec_lo", "exec_hi"):
        return ["exec"]
    return []


class Ins:
    def __init__(self, text, tag=None):
        self.text = text
        self.tag = tag
        self.kind = "other"
        self.w = set()
        self.r = set()
        self.srcc = set()
        self.states = 1
        self.cost = 1
        self._parse()

    def _parse(self):
        t = self.text.split(";")[0].strip()
        if t.endswith(":"):
            self.kind = "label"
            self.states = 0
            self.cost = 0
            return
        if t.startswith("."):
            self.kind = "directive"
            self.states = 0
            self.cost = 0
            return
        parts = t.split(None, 1)
        op = parts[0]
        self.op = op
        rest = parts[1] if len(parts) > 1 else ""
        ops = [x.strip() for x in rest.split(",")] if rest else []
        if ops:
            ops[-1] = ops[-1].split()[0] if ops[-1].split() else ""
        mods = rest.split()
        E = lambda xs: set(r for x in xs for r in _expand(x))
        if op == "s_nop":
            self.kind = "nop"
            self.states = int(ops[0]) + 1
            self.cost = self.states
        elif op == "s_waitcnt":
            self.kind = "wait"
        elif op == "s_barrier":
            self.kind = "barrier"
        elif op.startswith("s_cbranch") or op in ("s_branch", "s_endpgm", "s_setpc_b64"):
            self.kind = "branch"
        elif op.startswith("s_load") or op in ("s_memtime", "s_memrealtime"):
            self.kind = "smem"
            self.w = E(ops[:1])
            self.r = E(ops[1:])
        elif op.startswith("s_cmp") or op.startswith("s_bitcmp"):
            self.kind = "salu"
            self.r = E(ops)
            self.w = {"scc"}
        elif op in ("s_sleep", "s_setprio"):
            self.kind = "salu"
        elif op.startswith("s_"):
            self.kind = "salu"
            self.w = E(ops[:1])
            self.r = E(ops[1:])
            if "saveexec" in op:
                self.w |= {"exec"}
        elif op.startswith("v_mfma"):
            self.kind = "mfma"
            self.w = E(ops[:1])
            self.r = E(ops[1:])
            self.srcc = E(ops[3:4])
            self.cost = 2
        elif op.startswith("v_permlane"):
            self.kind = "perm"
            self.w = E(ops[:2])
            self.r = E(ops[:2])
        elif op.startswith("v_cmp"):
            self.kind = "valu"
            self.w = E(ops[:1])
            self.r = E(ops[1:])
        elif op.startswith("v_readfirstlane") or op.startswith("v_readlane"):
            self.kind = "valu"
            self.w = E(ops[:1])
            self.r = E(ops[1:])
        elif op.startswith("v_"):
            base = op.replace("_e32", "").replace("_e64", "")
            self.kind = "trans" if base in TRANS else "valu"
            if self.kind == "trans":
                self.cost = 2
            self.w = E(ops[:1])
            self.r = E(ops[1:])
            if base.startswith("v_fmac") or "_dpp" in op:
                self.r |= E(ops[:1])
            if "_co_" in op:
                self.w |= E(ops[1:2])
        elif op.startswith("ds_read") or op.startswith("ds_bpermute") or op.startswith("ds_swizzle"):
            self.kind = "ds"
            self.w = E(ops[:1])
            self.r = E(ops[1:])
        elif op.startswith("ds_write"):
            self.kind = "ds"
            self.r = E(ops)
        elif op.startswith("buffer_load") or op.startswith("global_load"):
            self.kind = "vmem"
            if "lds" in mods:
                self.r = E(ops) | {"m0"}
                self.lds_dma = True
            else:
                self.w = E(ops[:1])
                self.r = E(ops[1:])
        elif op.startswith("buffer_store") or op.startswith("global_store"):
            self.kind = "vmem"
            self.r = E(ops)
            self.store = True
            if op.startswith("buffer_store"):
                self.sdata = E(ops[:1])
            else:
                self.sdata = E(ops[1:2])
            self.wide = op.endswith("x4") or op.endswith("x3")
        elif op.startswith("buffer_atomic") or op.startswith("global_atomic"):
            self.kind = "vmem"
            self.r = E(ops)
            if "sc0" in mods:
                self.w = E(ops[:1])
        elif op.startswith("buffer_inv") or op.startswith("buffer_wbl2"):
            self.kind = "vmem"
        else:
            raise ValueError("unparsed instruction: " + self.text)


class Wait:
    kind = "pwait"
    cost = 1
    states = 1

    def __init__(self, vm=None, lgkm=None):
        self.vm = vm
        self.lgkm = lgkm


def I(text, tag=None):
    return Ins(text, tag)


def resolve(seq):
    vmq, lq = [], []
    out = []
    for x in seq:
        if isinstance(x, Wait):
            parts = []
            for name, q, tag, mx in (("vmcnt", vmq, x.vm, 63), ("lgkmcnt", lq, x.lgkm, 15)):
                if tag is None:
                    continue
                if tag == "all":
                    n = 0
                    done = len(q)
                else:
                    tags = tag if isinstance(tag, (list, tuple, set)) else [tag]
                    idx = [i for i, t in enumerate(q) if t in tags]
                    if not idx:
                        continue
                    n = len(q) - 1 - max(idx)
                    done = max(idx) + 1
                    if n > mx:
                        n = mx
                        done = len(q) - mx
                del q[:done]
                parts.append(f"{name}({n})")
            if parts:
                out.append(Ins("s_waitcnt " + " ".join(parts)))
            continue
        if x.kind == "vmem":
            vmq.append(x.tag)
        elif x.kind == "ds":
            lq.append(x.tag)
        elif x.kind == "smem":
            lq.append(x.tag)
        elif x.kind == "wait":
            m = re.search(r"vmcnt\((\d+)\)", x.text)
            if m:
                n = int(m.group(1))
                if len(vmq) > n:
                    del vmq[: len(vmq) - n]
            m = re.search(r"lgkmcnt\((\d+)\)", x.text)
            if m:
                n = int(m.group(1))
                if len(lq) > n:
                    del lq[: len(lq) - n]
        out.append(x)
    return out


def isv(r):
    return r[0] in "va" and r[1:].isdigit()


def iss(r):
    return (r[0] == "s" and r[1:].isdigit()) or r in ("vcc",)


def check_hazards(seq, name=""):
    probs = []
    n = len(seq)
    for i, a in enumerate(seq):
        if a.kind in ("label", "directive", "nop", "wait", "barrier", "branch", "other"):
            continue
        rules = []
        VAL = ("valu", "trans", "perm")
        if a.kind in VAL:
            wv = {r for r in a.w if isv(r)}
            ws = {r for r in a.w if iss(r)}
            if wv:
                rules.append((lambda b, wv=wv: b.kind == "mfma" and b.r & wv, 2, "valu->mfma"))
                rules.append((lambda b, wv=wv: b.kind == "perm" and b.r & wv, 2, "valu->permlane"))
                rules.append((lambda b, wv=wv: b.kind == "valu" and "_dpp" in b.op and b.r & wv, 2, "valu->dpp"))
                rules.append((lambda b, wv=wv: b.kind == "valu" and ("readfirstlane" in b.op or "readlane" in b.op) and b.r & wv, 1, "valu->readlane"))
            if a.kind == "trans":
                rules.append((lambda b, wv=wv: b.kind in ("valu", "perm") and b.r & wv, 1, "trans->valu"))
            if ws:
                rules.append((lambda b, ws=ws: b.kind in VAL and b.r & ws, 2, "valu sgpr->valu"))
                rules.append((lambda b, ws=ws: b.kind == "vmem" and b.r & ws, 5, "valu sgpr->vmem"))
            if "exec" in a.w:
                rules.append((lambda b: b.kind in ("mfma", "perm"), 4, "valu exec->mfma/perm"))
        if a.kind == "mfma":
            passes = 4 if "16x16x32" in a.op else 8
            nd = {4: 8, 8: 12}[passes]
            rules.append((lambda b, w=a.w: b.kind in VAL + ("vmem", "ds") and ((b.r | b.w) & w), nd, "mfma->valu/mem"))
            rules.append((lambda b, w=a.w: b.kind == "mfma" and ((b.r - b.srcc) & w), nd, "mfma->mfma AB"))
            rules.append((lambda b, w=a.w: b.kind == "mfma" and (b.srcc & w) and b.srcc != w, {4: 6, 8: 10}[passes], "mfma->mfma C partial"))
            rules.append((lambda b, w=a.w: b.kind == "mfma" and (b.w & w) and not (b.srcc & w), {4: 6, 8: 10}[passes], "mfma WAW"))
            if a.srcc:
                rules.append((lambda b, c=a.srcc: b.kind in VAL and (b.w & c), {4: 3, 8: 7}[passes], "mfma srcC WAR"))
        if a.kind == "salu" and "m0" in a.w:
            rules.append((lambda b: b.kind == "vmem" and getattr(b, "lds_dma", False), 1, "m0->dma"))
        if a.kind == "vmem" and getattr(a, "store", False) and a.wide:
            rules.append((lambda b, d=a.sdata: b.kind in VAL and (b.w & d), 2, "store data WAR"))
            rules.append((lambda b, d=a.sdata: b.kind in ("ds", "vmem", "mfma") and (b.w & d), 1, "store data WAR"))
        if not rules:
            continue
        mx = max(r[1] for r in rules)
        dist = 0
        j = i + 1
        while j < n and dist < mx:
            b = seq[j]
            for pred, need, what in rules:
                if dist < need and b.kind not in ("label", "directive") and pred(b):
                    probs.append(f"{name}: {what}: need {need} got {dist}: [{i}] {a.text}  ->  [{j}] {b.text}")
            dist += b.states
            j += 1
    return probs


def check_pending(seq, name=""):
    probs = []
    vmq, lq = [], []
    for i, x in enumerate(seq):
        if x.kind == "wait":
            m = re.search(r"vmcnt\((\d+)\)", x.text)
            if m:
                nn = int(m.group(1))
                if len(vmq) > nn:
                    del vmq[: len(vmq) - nn]
            m = re.search(r"lgkmcnt\((\d+)\)", x.text)
            if m:
                nn = int(m.group(1))
                if len(lq) > nn:
                    del lq[: len(lq) - nn]
            continue
        if x.kind in ("label", "directive", "nop", "barrier", "branch"):
            continue
        for q in (vmq, lq):
            for (j, w) in q:
                if w & (x.r | x.w):
                    probs.append(f"{name}: pending load [{j}] {seq[j].text} touched by [{i}] {x.text}")
        if x.kind == "vmem":
            vmq.append((i, set(x.w)))
        elif x.kind in ("ds", "smem"):
            lq.append((i, set(x.w)))
    return probs


def interleave(main, fill, per_gap=2, start=0, spread=True):
    out = []
    fill = list(fill)
    total = sum(f.cost for f in fill)
    ngaps = max(1, len(main) - start)
    rate = min(per_gap, total / ngaps) if spread else per_gap
    credit = 0.0
    k = 0
    for i, m in enumerate(main):
        out.append(m)
        if i < start:
            continue
        credit += rate
        while k < len(fill) and (fill[k].cost <= credit + 1e-9 or fill[k].cost == 0):
            out.append(fill[k])
            credit -= fill[k].cost
            k += 1
        if credit > per_gap:
            credit = per_gap
    return out, fill[k:]


def render(seq):
    L = []
    for x in seq:
        if x.kind in ("label", "directive"):
            L.append(x.text)
        else:
            L.append("    " + x.text)
    return "\n".join(L)


def weave(main, streams):
    at = [[] for _ in main]
    tail = []
    for groups, start, end in streams:
        n = len(groups)
        if n == 0:
            continue
        end = min(end, len(main))
        for k, g in enumerate(groups):
            pos = start + (k * (end - start)) // n
            at[pos].append(g)
    out = []
    for m, gs in zip(main, at):
        out.append(m)
        for g in gs:
            out += g
    return out


def dma_groups(seq):
    groups, cur = [], []
    for x in seq:
        cur.append(x)
        if x.kind == "vmem":
            groups.append(cur)
            cur = []
    if cur:
        groups[-1] += cur
    return groups
```

```python
import sys, os, math, struct
sys.path.insert(0, os.path.dirname(os.path.abspath(__file__)))
from asmlib import *

NAME = "gated_mix__sliding_local_dilated__swiglu_ffn__prompt"
CFG = dict(ROT=0, P1=6, STAMP=0, PUB=3, PF=4)
for a in sys.argv[2:]:
    k, v = a.split("=")
    CFG[k] = int(v)
ROT, P1 = CFG["ROT"], CFG["P1"]

def f2u(x):
    return struct.unpack("<I", struct.pack("<f", x))[0]

S, D, F = 2048, 448, 1792
X_BYTES = S * D * 2
WQKV_BYTES = D * 3 * D * 2
WO_BYTES = D * D * 2
WG_BYTES = D * F * 2
NK = 72
A_OFF = 131072
A_BYTES = 128 * NK * 1024
MISC_BYTES = 131072
FLAG_OFF = 32768
OOB = 0x40000000
MASTER = 240

sWV = "s3"
SRD_X, SRD_W, SRD_A, SRD_O, SRD_W2, SRD_WO, SRD_M, SRD_D = 28, 32, 36, 40, 44, 48, 52, 96
def srd(n): return f"s[{n}:{n+3}]"
sK = [f"s{56+i}" for i in range(7)]
sROW0, sC, sT0, sT1, sT2, sT3 = "s63", "s64", "s65", "s66", "s67", "s68"
sM0W, sM0X, sSOFF, sAST, sNL2E = "s69", "s70", "s71", "s72", "s73"
sXROW = [f"s{74+i}" for i in range(5)]
sJ = "s79"
mODD, mC0, mC1, mC0F, mC1F, mG3 = "s[80:81]", "s[82:83]", "s[84:85]", "s[86:87]", "s[88:89]", "s[90:91]"
sSCL, sQB, sN2, sRB = "s92", "s93", "s94", "s95"
sRT, sNT, sAO, sCW, sCA, sM02 = "s74", "s75", "s76", "s77", "s78", "s79"

def vq(n, k=4): return f"v[{n}:{n+k-1}]"
def aq(n, k=4): return f"a[{n}:{n+k-1}]"
def rq(r, k=4): return f"{r[0]}[{r[1]}:{r[1]+k-1}]"

def mksrd(n, lo, size):
    return [I(f"s_mov_b32 s{n}, s{lo}"), I(f"s_mov_b32 s{n+1}, s{lo+1}"),
            I(f"s_mov_b32 s{n+2}, {size}"), I(f"s_mov_b32 s{n+3}, 0x20000")]

def srd_a():
    return [I(f"s_add_u32 s{SRD_A}, s24, {A_OFF}"), I(f"s_addc_u32 s{SRD_A+1}, s25, 0"),
            I(f"s_mov_b32 s{SRD_A+2}, {A_BYTES}"), I(f"s_mov_b32 s{SRD_A+3}, 0x20000")]

def mfma(d, a, b, first):
    return I(f"v_mfma_f32_16x16x32_bf16 {d}, {a}, {b}, {'0' if first else d}")

class Stamps:
    def __init__(self, regs): self.regs = regs; self.n = 0
    def __call__(self, wait=False):
        if not CFG["STAMP"]: return []
        r = self.regs[self.n]; self.n += 1
        return [I("s_memrealtime s[100:101]"), I("s_waitcnt lgkmcnt(0)"), I(f"s_mov_b32 s{r}, s100")]
    def dump(self, base, vtmp):
        if not CFG["STAMP"]: return []
        L = [I("s_waitcnt vmcnt(0)")] + self(True)
        L += [I(f"v_mov_b32 v{vtmp}, 0")]
        for k in range(self.n): L.append(I(f"v_writelane_b32 v{vtmp}, s{self.regs[k]}, {k}"))
        L += [I("s_lshl_b32 s26, s2, 6"), I(f"s_add_u32 s26, s26, {base}"), I(f"s_cmp_eq_u32 {sWV}, 0"), I(f"s_cselect_b32 s26, s26, {OOB}"),
              I(f"v_lshlrev_b32 v{vtmp+1}, 2, v0"), I("v_cmp_gt_u32 vcc, 16, v0"), I("s_nop 4"), I("s_and_saveexec_b64 s[10:11], vcc"),
              I(f"buffer_store_dword v{vtmp}, v{vtmp+1}, {srd(SRD_M)}, s26 offen")]
        if CFG["STAMP"] == 2:
            L += [I("s_cmp_eq_u32 s2, 0"), I(f"s_cselect_b32 s26, 8, {OOB}"), I(f"s_cmp_eq_u32 {sWV}, 0"), I(f"s_cselect_b32 s26, s26, {OOB}"),
                  I(f"buffer_store_dword v{vtmp}, v{vtmp+1}, {srd(SRD_D)}, s26 offen")]
        return L

def sk_next(s):
    return [I(f"s_add_u32 {sK[s]}, {sK[s-1]}, 128"), I(f"s_cmp_eq_u32 {sK[s]}, 896"),
            I(f"s_cselect_b32 {sK[s]}, 0, {sK[s]}")]

def publish(tag, vrdy, vone, scnt):
    return [Wait(vm=["st", "rdy"]), I(f"v_readfirstlane_b32 s10, v{vrdy}"), I(f"v_mov_b32 v{vone}, 1")] + spin_init() + [I("s_nop 0"),
            I("s_cmp_eq_u32 s10, 0"), I(f"s_cbranch_scc1 L_slow_{tag}"), I(f"L_back_{tag}:"),
            I("s_mov_b64 exec, 1"),
            I(f"buffer_atomic_add v{vone}, off, {srd(SRD_M)}, {scnt} sc1", "pub"),
            I("s_mov_b64 exec, -1")]

SPIN = "s11"
def spin_init(): return [I(f"s_mov_b32 {SPIN}, 0x100000")]
def spin_step(): return [I(f"s_sub_u32 {SPIN}, {SPIN}, 1"), I("s_cbranch_scc1 L_end")]

def slow(tag, vrdy):
    return [I(f"L_slow_{tag}:")] + spin_step() + [I(f"buffer_load_dword v{vrdy}, off, {srd(SRD_D)}, 0 sc1"), I("s_waitcnt vmcnt(0)"),
            I(f"v_readfirstlane_b32 s10, v{vrdy}"), I("s_nop 3"), I("s_cmp_eq_u32 s10, 0"), I(f"s_cbranch_scc1 L_slow_{tag}"),
            I(f"s_branch L_back_{tag}")]

def prologue():
    L = [I("s_cmp_ge_u32 s2, 256"), I("s_cbranch_scc1 L_end"),
         I("s_load_dwordx4 s[4:7], s[0:1], 0", "ka"), I("s_load_dwordx8 s[12:19], s[0:1], 32", "ka"),
         I("s_load_dwordx2 s[8:9], s[0:1], 16", "ka"), I("s_load_dwordx4 s[20:23], s[0:1], 64", "ka"),
         I("s_load_dwordx2 s[24:25], s[0:1], 80", "ka")]
    L += [I("v_lshrrev_b32 v1, 6, v0"), I("v_and_b32 v0, 63, v0"),
          I("s_and_b32 s10, s2, 3"),
          I("v_readfirstlane_b32 s3, v1"),
          I("s_lshr_b32 s11, s2, 3"),
          I("s_bitcmp1_b32 s2, 2"),
          I("s_cbranch_scc1 L_halfB"),
          I(f"s_mul_i32 {sN2}, s10, 21"), I(f"s_add_u32 {sN2}, {sN2}, s11"),
          I(f"s_mul_i32 {sC}, {sN2}, 43"), I(f"s_lshr_b32 {sC}, {sC}, 8"),
          I(f"s_mul_i32 s27, {sC}, 6"), I(f"s_sub_u32 {sRB}, {sN2}, s27"),
          I("s_cmp_lt_u32 s11, 21"), I("s_cbranch_scc1 L_ffn"),
          I(f"s_sub_u32 {sQB}, s11, 21"), I(f"s_cmp_lt_u32 {sQB}, 9"), I("s_cbranch_scc1 L_qkv"),
          I("s_branch L_idle"),
          I("L_halfB:"),
          I("s_mul_i32 s26, s10, 49"), I("s_add_u32 s26, s26, 1"), I("s_lshr_b32 s26, s26, 1"),
          I("s_add_u32 s26, s26, s11"), I(f"s_add_u32 {sN2}, s26, 84"),
          I(f"s_mul_i32 {sC}, s26, 147"), I(f"s_lshr_b32 {sC}, {sC}, 10"),
          I(f"s_mul_i32 s27, {sC}, 7"), I("s_sub_u32 s26, s26, s27"), I(f"s_add_u32 {sRB}, s26, 6"),
          I(f"s_sub_u32 {sQB}, s11, 16"), I("s_cmp_ge_u32 s11, 25"), I("s_cbranch_scc1 L_qkv"),
          I("s_and_b32 s27, s10, 1"), I("s_sub_u32 s27, 25, s27"),
          I("s_cmp_ge_u32 s11, s27"), I("s_cbranch_scc1 L_end")]
    return L

def idle():
    return [I("L_idle:"), I(f"s_cmp_lg_u32 s2, {MASTER}"), I("s_cbranch_scc1 L_end"),
            I(f"s_cmp_lg_u32 {sWV}, 0"), I("s_cbranch_scc1 L_end"),
            I("v_lshlrev_b32 v1, 7, v0"), I("v_mov_b32 v2, 0"), I("v_mov_b32 v3, 1"), I(f"s_mov_b32 s26, {FLAG_OFF}"),
            I(f"s_mov_b32 s27, {FLAG_OFF + 8192}"), I("s_waitcnt lgkmcnt(0)")] + \
           mksrd(SRD_M, 24, MISC_BYTES) + mksrd(SRD_D, 22, 256) + \
           [I(f"buffer_store_dword v2, v1, {srd(SRD_M)}, s26 offen sc1"), I(f"buffer_store_dword v2, v1, {srd(SRD_M)}, s27 offen sc1"),
            I("s_waitcnt vmcnt(0)"), I("s_mov_b64 exec, 1"),
            I(f"buffer_store_dword v3, off, {srd(SRD_D)}, 0 sc1")]

FW_RING, FW_R = 0, 4
FX_RING = 65536
FX_SLOT = P1 * 2048
FX2 = FX_RING + 3 * FX_SLOT
NT2 = 10 - P1
assert FX2 + NT2 * 14336 <= 163840
SL2 = 6
RED = 98304

def ffn():
    ST = Stamps(list(range(80, 93)) + [4, 5, 6])
    vWd = [1, 2, 3, 4]; vXd = [5, 6, 7]; vX2d = 8; vWr = [9, 10]; vXr = [11, 12]; vX2r = [13, 14]; vAst = 15
    vT = list(range(16, 24))
    XB = 24
    ACC = 72
    v2d = [248, 249, 250, 251]; v2r = [252, 253, 254, 255]; vRdy = 247
    NXI = P1 // 2
    def accq(slot, m, t): return ACC + slot * 16 + (m * 2 + t) * 4
    def wfr(u, m, t): return (u * 4 + m * 2 + t) * 4
    L = [I("L_ffn:")] + ST()
    L += [I(f"s_mul_i32 {sROW0}, {sRB}, 160")]
    if ROT:
        L += [I(f"s_lshl_b32 s27, {sC}, 1"), I(f"s_add_u32 s27, s27, {sRB}"),
              I("s_mul_i32 s10, s27, 37"), I("s_lshr_b32 s10, s10, 8"), I("s_mul_i32 s10, s10, 7"),
              I("s_sub_u32 s27, s27, s10"), I(f"s_lshl_b32 {sK[0]}, s27, 7")]
    else:
        L += [I(f"s_mov_b32 {sK[0]}, 0")]
    r4, p16, r8, p8 = 16, 17, 18, 19
    L += [I(f"v_lshrrev_b32 v{r4}, 4, v0"), I(f"v_and_b32 v{p16}, 15, v0"),
          I(f"v_lshrrev_b32 v{r8}, 3, v0"), I(f"v_and_b32 v{p8}, 7, v0"),
          I(f"s_and_b32 s10, {sWV}, 1"), I("s_mul_i32 s10, s10, 57344"),
          I(f"s_lshl_b32 s11, {sC}, 8"), I("s_add_u32 s10, s10, s11"),
          I("s_movk_i32 s11, 3584"), I(f"v_mul_u32_u24 v20, s11, v{r4}"), I("v_add_u32 v20, s10, v20"),
          I(f"v_lshlrev_b32 v21, 1, v{r4}"), I(f"v_xor_b32 v21, v21, v{p16}"),
          I(f"v_lshl_add_u32 v{vWd[0]}, v21, 4, v20"),
          I(f"v_add_u32 v{vWd[1]}, {4*3584-1024}, v{vWd[0]}"),
          I(f"v_xor_b32 v21, 8, v21"),
          I(f"v_lshl_add_u32 v{vWd[2]}, v21, 4, v20"),
          I(f"v_add_u32 v{vWd[2]}, {2*(4*3584-1024)}, v{vWd[2]}"),
          I(f"v_add_u32 v{vWd[3]}, {4*3584-1024}, v{vWd[2]}"),
          I(f"s_lshl_b32 {sM0W}, {sWV}, 12")]
    L += [I(f"s_mul_i32 s10, {sWV}, {NXI}"),
          I(f"s_lshl_b32 s11, s10, 3"), I(f"s_add_u32 s11, s11, {sROW0}"), I("s_mul_i32 s11, s11, 896"),
          I(f"s_lshl_b32 {sM0X}, s10, 10"), I(f"s_add_u32 {sM0X}, {sM0X}, {FX_RING}"),
          I("s_and_b32 s10, s10, 1"), I("s_lshl_b32 s10, s10, 6"),
          I("s_movk_i32 s27, 896"),
          I(f"v_mul_u32_u24 v20, s27, v{r8}"),
          I(f"v_xor_b32 v21, v{r4}, v{p8}"),
          I(f"v_lshl_add_u32 v22, v21, 4, v20"),
          I(f"v_xor_b32 v{vXd[0]}, s10, v22"),
          I(f"v_add_u32 v{vXd[0]}, s11, v{vXd[0]}")]
    for i in range(1, NXI):
        L += [I(f"v_xor_b32 v{vXd[i]}, s10, v22")] if i % 2 == 0 else \
             [I(f"s_xor_b32 s27, s10, 64"), I(f"v_xor_b32 v{vXd[i]}, s27, v22")]
        L += [I(f"s_add_u32 s11, s11, {8*896-1024}"), I(f"v_add_u32 v{vXd[i]}, s11, v{vXd[i]}")]
    L += [Wait(lgkm="all")]
    L += mksrd(SRD_X, 4, X_BYTES)
    L += [I(f"s_cmp_lt_u32 {sWV}, 2"), I(f"s_cselect_b32 s{SRD_W}, s12, s14"), I(f"s_cselect_b32 s{SRD_W+1}, s13, s15"),
          I(f"s_mov_b32 s{SRD_W+2}, {WG_BYTES}"), I(f"s_mov_b32 s{SRD_W+3}, 0x20000")]

    def dmaW(u):
        s, e = divmod(u, 2)
        r = [I(f"s_add_u32 m0, {sM0W}, {FW_RING + (u % FW_R) * 16384}"), I(f"s_mul_i32 {sSOFF}, {sK[s]}, 1792")]
        if e: r += [I(f"s_add_u32 {sSOFF}, {sSOFF}, 114688")]
        for i in range(4):
            r.append(I(f"buffer_load_dwordx4 v{vWd[i]}, {srd(SRD_W)}, {sSOFF} offen offset:{1024*i} lds", f"W{u}"))
        return r
    def dmaX(s):
        r = [I(f"s_add_u32 m0, {sM0X}, {(s % 3) * FX_SLOT}"), I("s_nop 0")]
        for i in range(NXI):
            r.append(I(f"buffer_load_dwordx4 v{vXd[i]}, {srd(SRD_X)}, {sK[s]} offen offset:{1024*i} lds", f"X{s}"))
        return r
    def dmaX2(p):
        r = [I(f"s_add_u32 m0, {sT1}, {FX2 + p * 2 * 14336}")]
        r += [I(f"v_add_u32 v{vX2d}, {32*896}, v{vX2d}")] if p else [I("s_nop 0")]
        G = []
        for s in range(7):
            r += [I(f"buffer_load_dwordx4 v{vX2d}, {srd(SRD_X)}, {sK[s]} offen lds", f"X2_{p}")]
            if s < 6: r += [I("s_add_u32 m0, m0, 2048")]
            G.append(r); r = []
        return G
    L += dmaW(0) + dmaX(0) + dmaW(1)
    L += sk_next(1)
    L += dmaW(2)
    for s in range(2, 7): L += sk_next(s)
    L += srd_a() + mksrd(SRD_M, 24, MISC_BYTES) + mksrd(SRD_D, 22, 256)
    L += [I(f"s_mov_b32 {sNL2E}, {hex(f2u(-math.log2(math.e)))}"),
          I(f"s_lshr_b32 s10, {sROW0}, 4"), I(f"s_mul_i32 s10, s10, {NK}"), I(f"s_lshl_b32 s11, {sC}, 2"),
          I("s_add_u32 s10, s10, s11"), I(f"s_add_u32 s10, s10, {sWV}"), I(f"s_lshl_b32 {sAST}, s10, 10"),
          I(f"v_lshlrev_b32 v{vAst}, 4, v0"),
          I(f"v_bfe_u32 v20, v0, 2, 2"),
          I(f"v_lshl_add_u32 v21, v{r4}, 3, v20"),
          I(f"v_and_b32 v23, 1, v{r4}"), I("v_lshl_add_u32 v20, v23, 2, v20"),
          I(f"s_lshl_b32 s10, {sWV}, 1"), I("v_xor_b32 v20, s10, v20"),
          I("v_lshlrev_b32 v20, 5, v20"), I("v_lshl_add_u32 v20, v21, 8, v20"),
          I("v_and_b32 v21, 3, v0"), I(f"v_lshl_add_u32 v{vWr[0]}, v21, 3, v20"),
          I(f"v_xor_b32 v{vWr[1]}, 32, v{vWr[0]}"),
          I(f"v_lshrrev_b32 v20, 1, v{p16}"), I(f"v_xor_b32 v20, v20, v{r4}"), I("v_lshlrev_b32 v20, 4, v20"),
          I(f"v_lshl_add_u32 v20, v{p16}, 7, v20"),
          I(f"v_add_u32 v{vXr[0]}, {FX_RING}, v20"), I(f"v_xor_b32 v{vXr[1]}, 64, v{vXr[0]}"),
          I(f"v_add_u32 v{vX2r[0]}, {FX2}, v20"), I(f"v_xor_b32 v{vX2r[1]}, 64, v{vX2r[0]}"),
          I(f"s_lshl_b32 s10, {sWV}, 3"), I(f"s_add_u32 s10, s10, {sROW0}"), I(f"s_add_u32 s10, s10, {16*P1}"),
          I("s_mul_i32 s10, s10, 896"),
          I(f"s_and_b32 s11, {sWV}, 1"), I("s_lshl_b32 s27, s11, 6"),
          I(f"v_xor_b32 v{vX2d}, s27, v22"), I(f"v_add_u32 v{vX2d}, s10, v{vX2d}"),
          I("s_lshl_b32 s11, s11, 10"), I(f"s_lshr_b32 s10, {sWV}, 1"), I("s_mul_i32 s10, s10, 14336"),
          I(f"s_add_u32 {sT1}, s10, s11")]
    L += [I(f"s_mul_i32 {sRT}, {sN2}, 147"), I(f"s_lshr_b32 {sRT}, {sRT}, 10"),
          I(f"s_mul_i32 s10, {sRT}, 7"), I(f"s_sub_u32 {sNT}, {sN2}, s10"),
          I("s_movk_i32 s27, 896"), I(f"v_mul_u32_u24 v20, s27, v{r8}"),
          I(f"v_and_b32 v21, 6, v{r8}"), I(f"v_xor_b32 v21, v21, v{p8}"),
          I(f"v_lshl_add_u32 v20, v21, 4, v20"),
          I(f"s_lshl_b32 s10, {sNT}, 7"), I(f"v_add_u32 v{v2d[0]}, s10, v20")]
    for i in range(1, 4): L += [I(f"v_add_u32 v{v2d[i]}, {8*896-1024}, v{v2d[i-1]}")]
    L += [I(f"s_mul_i32 {sM02}, {sWV}, {SL2*4096}"),
          I("v_lshrrev_b32 v20, 2, v0"), I("v_bfe_u32 v21, v0, 3, 2"), I(f"v_xor_b32 v21, {sWV}, v21"),
          I("v_lshlrev_b32 v21, 5, v21"), I("v_lshl_add_u32 v21, v20, 7, v21"),
          I("v_and_b32 v20, 3, v0"), I("v_lshl_add_u32 v21, v20, 3, v21"),
          I(f"v_add_u32 v{v2r[0]}, {sM02}, v21")]
    for t in range(1, 4): L += [I(f"v_xor_b32 v{v2r[t]}, {32*t}, v{v2r[0]}")]
    L += mksrd(SRD_W2, 16, WG_BYTES) + mksrd(SRD_WO, 8, WO_BYTES) + mksrd(SRD_O, 20, X_BYTES)
    L += [I(f"s_mul_i32 {sT2}, {sWV}, {32*896}"), I(f"s_mul_i32 {sCW}, {sNT}, {256*896}"), I(f"s_add_u32 {sCW}, {sCW}, {sT2}"),
          I(f"s_add_u32 {sT3}, {sT2}, {14*128*896}")]

    def readsW(u):
        return [I(f"ds_read_b64_tr_b16 {aq(wfr(u,m,t)+2*h, 2)}, v{vWr[t]} offset:{FW_RING + (u%FW_R)*16384 + m*8192 + h*1024}", f"r{u}")
                for m in range(2) for t in range(2) for h in range(2)]
    def readsX(u):
        s, e = divmod(u, 2)
        return [I(f"ds_read_b128 {vq(XB + ((u%2)*6 + T)*4)}, v{vXr[e]} offset:{(s%3)*FX_SLOT + T*2048}", f"r{u}") for T in range(P1)]
    def mm1(u):
        return [mfma(vq(accq(T, m, t)), aq(wfr(u, m, t)), vq(XB + ((u%2)*6 + T)*4), u == 0)
                for T in range(P1) for m in range(2) for t in range(2)]
    NM1 = 4 * P1
    for u in range(14):
        L += [Wait(vm=[f"W{u}", f"X{u//2}"], lgkm="all"), I("s_barrier")]
        if u in (0, 2, 7): L += ST()
        if u == 0:
            L += readsX(0) + readsW(0) + dmaX(1) + dmaW(3) + dmaX(2)
            continue
        G = []
        if u + 3 < 14: G += dma_groups(dmaW(u + 3))
        if u % 2 == 0 and u // 2 + 2 < 7: G += dma_groups(dmaX(u // 2 + 2))
        if u == 11: G += dmaX2(0)
        if u == 12 and NT2 > 2: G += dmaX2(1)
        if u == 13 and NT2 > 4: G += dmaX2(2)
        L += weave(mm1(u - 1), [(G, 0, NM1), ([[x] for x in readsX(u) + readsW(u)], 1, NM1 - 3)])
    NF2 = NT2 * 14
    def rd2(n):
        T, u = divmod(n, 14); s, e = divmod(u, 2)
        return I(f"ds_read_b128 {vq(XB + (n % 12)*4)}, v{vX2r[e]} offset:{T*14336 + s*2048}", f"q{n//4}")
    W2V = 96
    def w2(q, t): return ("a", (q * 4 + t) * 4) if q < 16 else ("v", W2V + ((q - 16) * 4 + t) * 4)
    def dmaW2(q):
        r = [I(f"s_add_u32 m0, {sM02}, {(q % SL2) * 4096}")]
        if q == 0: r += [I("s_nop 0")]
        elif q < 14:
            r += [I(f"s_add_u32 {sCW}, {sCW}, {128*896}"), I(f"s_cmp_eq_u32 {sCW}, {sT3}"), I(f"s_cselect_b32 {sCW}, {sT2}, {sCW}")]
        elif q == 14: r += [I(f"s_mul_i32 {sCW}, {sWV}, {4*28*896}")]
        else: r += [I(f"s_add_u32 {sCW}, {sCW}, {28*896}")]
        for i in range(4):
            r.append(I(f"buffer_load_dwordx4 v{v2d[i]}, {srd(SRD_W2 if q < 14 else SRD_WO)}, {sCW} offen offset:{1024*i} lds", f"V{q}"))
        return r
    def rdW2(q):
        r = []
        for t in range(4):
            k, n = w2(q, t)
            for h in range(2):
                r.append(I(f"ds_read_b64_tr_b16 {k}[{n+2*h}:{n+2*h+1}], v{v2r[t]} offset:{(q % SL2)*4096 + h*2048}", f"w{q}"))
        return r
    L += [Wait(vm="X2_0", lgkm="all"), I("s_barrier")] + ST()
    L += weave(mm1(13), [([[rd2(n)] for n in range(8)], 9, 20),
                         ([[I(f"buffer_load_dword v{vRdy}, off, {srd(SRD_D)}, 0 sc1", "rdy")]], 0, 1)])
    def epi(T, slot):
        r = []
        dst = accq(slot, 0, 0)
        for t in range(2):
            for pr in range(2):
                ga = accq(slot, 0, t) + 2*pr; gb = ga + 1; ua = accq(slot, 1, t) + 2*pr; ub = ua + 1
                ta, tb = vT[0], vT[1]
                r += [I(f"v_mul_f32 v{ta}, {sNL2E}, v{ga}"), I(f"v_mul_f32 v{tb}, {sNL2E}, v{gb}"),
                      I(f"v_exp_f32 v{ta}, v{ta}"), I(f"v_exp_f32 v{tb}, v{tb}"),
                      I(f"v_mul_f32 v{ga}, v{ga}, v{ua}"), I(f"v_mul_f32 v{gb}, v{gb}, v{ub}"),
                      I(f"v_add_f32 v{ta}, 1.0, v{ta}"), I(f"v_add_f32 v{tb}, 1.0, v{tb}"),
                      I(f"v_rcp_f32 v{ta}, v{ta}"), I(f"v_rcp_f32 v{tb}, v{tb}"),
                      I(f"v_mul_f32 v{ga}, v{ga}, v{ta}"), I(f"v_mul_f32 v{gb}, v{gb}, v{tb}"),
                      I(f"v_cvt_pk_bf16_f32 v{dst + t*2 + pr}, v{ga}, v{gb}")]
        r += [I(f"buffer_store_dwordx4 {vq(dst)}, v{vAst}, {srd(SRD_A)}, {sAST} offen sc1", "st"),
              I(f"s_add_u32 {sAST}, {sAST}, {NK*1024}")]
        return r
    slot_of = {T: T for T in range(P1 + 1)}
    for T in range(P1 + 1, 10): slot_of[T] = T - P1 - 1
    backlog = []
    for T in range(P1): backlog += [(T, x) for x in epi(T, slot_of[T])]
    w2g = []
    for q in range(SL2): w2g += dma_groups(dmaW2(q))
    nb = (NF2 + 3) // 4
    for b in range(nb):
        main = []
        for n in range(4 * b, min(4 * b + 4, NF2)):
            T2, u = divmod(n, 14); T = P1 + T2
            main += [(T, mfma(vq(accq(slot_of[T], m, t)), aq(wfr(u, m, t)), vq(XB + (n % 12) * 4), u == 0))
                     for m in range(2) for t in range(2)]
        for p in range(1, NT2 // 2):
            if 4 * (b + 2) <= 28 * p < 4 * (b + 3):
                L += [Wait(vm=f"X2_{p}"), I("s_barrier")]
        L += [Wait(lgkm=f"q{b}")]
        reads = [rd2(n) for n in range(4 * (b + 2), min(4 * (b + 3), NF2))]
        for idx, (T, ins) in enumerate(main):
            if ins.text.endswith(", 0") and T > P1:
                old = slot_of[T]
                while any(t == old for t, _ in backlog):
                    L.append(backlog.pop(0)[1])
            L.append(ins)
            budget = 2
            if reads and idx % 4 == 0:
                L.append(reads.pop(0)); budget -= 1
            if w2g and idx % 8 == 2:
                g = w2g.pop(0); L += g; budget -= len(g)
            while backlog and backlog[0][1].cost <= budget:
                t, x = backlog.pop(0); L.append(x); budget -= x.cost
            n_idx = 4 * b + idx // 4
            if idx % 4 == 3 and n_idx % 14 == 13:
                Tf = P1 + n_idx // 14
                if len(backlog) < 8: backlog += [(Tf, I("s_nop 7"))]
                backlog += [(Tf, x) for x in epi(Tf, slot_of[Tf])]
    assert not w2g
    L += ST()
    L += [x for _, x in backlog]
    L += ST()
    L += [I(f"s_lshl_b32 s26, {sRB}, 2"), I(f"s_add_u32 s26, s26, {sWV}"), I("s_lshl_b32 s26, s26, 7"), I(f"s_add_u32 s26, s26, {FLAG_OFF}")]
    L += [Wait(vm="V0")] + rdW2(0)
    for q in range(17):
        L += [Wait(vm=f"V{q+1}")] + rdW2(q + 1)
        if q + SL2 < 18:
            L += [Wait(lgkm=f"w{q}")] + dmaW2(q + SL2)
        if q == CFG["PUB"] - 1:
            L += publish("h", vRdy, 16, "s26") + ST()
    vAl, vRw, vRr, vOut, vF, vOf = 15, [1, 2, 3], 4, 5, 6, 7
    vS = [8, 9, 10, 11, 12]
    AC2 = 16
    AB, NAB = 128, 6
    PF = CFG["PF"]
    L += [I(f"s_mul_i32 {sAO}, {sRT}, {5*NK*1024}"), I(f"s_lshl_b32 s10, {sWV}, 10"), I(f"s_add_u32 {sAO}, {sAO}, s10"),
          I(f"s_lshl_b32 {sCA}, {sNT}, 13"), I(f"s_add_u32 {sCA}, {sCA}, {sAO}"), I(f"s_add_u32 {sT3}, {sAO}, {14*4096}"),
          I(f"s_lshr_b32 s10, {sRT}, 1"), I("s_lshl_b32 s10, s10, 2"), I(f"s_add_u32 s10, s10, {sWV}"), I("s_lshl_b32 s10, s10, 7"),
          I(f"s_add_u32 s26, s10, {FLAG_OFF}"),
          I(f"s_mul_i32 s10, {sRT}, 80"), I("s_add_u32 s11, s10, 79"), I("s_lshr_b32 s10, s10, 7"), I("s_lshr_b32 s11, s11, 7"),
          I("s_min_u32 s11, s11, 15"), I("s_lshl_b32 s10, s10, 9"), I("s_lshl_b32 s11, s11, 9"),
          I(f"v_mov_b32 v{vOf}, s11"), I(f"v_writelane_b32 v{vOf}, s10, 0"),
          I(f"s_lshl_b32 s27, {sWV}, 7"), I(f"s_add_u32 s27, s27, {FLAG_OFF + 8192}"),
          I(f"s_mul_i32 s10, {sWV}, 15360"), I(f"s_add_u32 s10, s10, {RED}"), I(f"v_add_u32 v{vRr}, s10, v{vAl}")]
    for t in range(1, 4):
        L += [I(f"s_xor_b32 s10, {sWV}, {t}"), I("s_mul_i32 s10, s10, 15360"), I(f"s_add_u32 s10, s10, {RED + (t-1)*5120}"),
              I(f"v_add_u32 v{vRw[t-1]}, s10, v{vAl}")]
    L += [I(f"s_mul_i32 s10, {sRT}, {80*896}"), I(f"s_lshl_b32 s11, {sNT}, 7"), I("s_add_u32 s10, s10, s11"),
          I(f"s_lshl_b32 s11, {sWV}, 5"), I("s_add_u32 s10, s10, s11"),
          I("v_and_b32 v13, 15, v0"), I("s_movk_i32 s11, 896"), I(f"v_mul_u32_u24 v{vOut}, s11, v13"), I("v_lshrrev_b32 v14, 4, v0"),
          I(f"v_lshl_add_u32 v{vOut}, v14, 3, v{vOut}"), I(f"v_add_u32 v{vOut}, s10, v{vOut}"),
          I("v_lshlrev_b32 v13, 2, v13"),
          Wait(lgkm="all"), I("s_barrier")] + ST()
    L += spin_init() + [I("L_poll_h:")] + spin_step() + [I(f"buffer_load_dword v{vF}, off, {srd(SRD_M)}, s26 sc1"), I("s_waitcnt vmcnt(0)"),
          I(f"v_cmp_gt_u32 vcc, 14, v{vF}"), I("s_nop 0"), I("s_cbranch_vccnz L_poll_h")] + ST()
    def ldA(q):
        if q == 0: r = [I(f"s_mov_b32 {sT0}, {sCA}")]
        elif q < 14:
            r = [I(f"s_add_u32 {sCA}, {sCA}, 4096"), I(f"s_cmp_eq_u32 {sCA}, {sT3}"), I(f"s_cselect_b32 {sCA}, {sAO}, {sCA}"),
                 I(f"s_mov_b32 {sT0}, {sCA}")]
        elif q == 14:
            r = [I(f"s_mul_i32 {sCA}, {sWV}, 3072"), I(f"s_add_u32 {sCA}, {sCA}, {sAO}"), I(f"s_add_u32 {sCA}, {sCA}, {56*1024}"),
                 I(f"s_mov_b32 {sT0}, {sCA}")]
        else: r = [I(f"s_add_u32 {sT0}, {sCA}, {(q-14)*1024}")]
        for T in range(5):
            r.append(I(f"buffer_load_dwordx4 {vq(AB + (q % NAB)*20 + T*4)}, v{vAl}, {srd(SRD_A)}, {sT0} offen sc1", f"A{q}"))
            if T < 4: r.append(I(f"s_add_u32 {sT0}, {sT0}, {NK*1024}"))
        return r
    def mm2(q, order=None):
        return [mfma(vq(AC2 + (T*4+t)*4), rq(w2(q, t)), vq(AB + (q % NAB)*20 + T*4), q == 0) for T in range(5) for t in range(4)]
    for q in range(PF): L += ldA(q)
    QO = 12
    for q in range(16):
        G = []
        if q + PF < 14: G = dma_groups(ldA(q + PF))
        if q == QO - 2:
            G = G + [[I(f"buffer_load_dword v{vF}, v{vOf}, {srd(SRD_M)}, s27 offen sc1", "of")]]
        if q == QO:
            L += [Wait(vm="of"), I(f"v_cmp_gt_u32 vcc, 4, v{vF}")] + spin_init() + [ I("s_cbranch_vccnz L_poll_o"), I("L_got_o:")] + ST()
            L += [I(f"s_lshl_b32 s10, {sWV}, 13"), I(f"s_mul_i32 s11, {sRT}, 320"), I("s_add_u32 s10, s10, s11")]
            L += ldA(14) + ldA(15)
            G = dma_groups(ldA(16))
        if q == QO + 1:
            G = dma_groups(ldA(17)) + [[I(f"buffer_load_dword v{vS[T]}, v13, {srd(SRD_M)}, s10 offen offset:{64*T} sc1", "S")] for T in range(5)]
        L += [Wait(vm=f"A{q}")]
        L += weave(mm2(q), [(G, 0, 20)])
    L += ST()
    a16, a17 = mm2(16), mm2(17)
    order = [(T, t) for t in (1, 2, 3, 0) for T in range(5)]
    main, wr = [], []
    for (T, t) in order:
        main += [a16[T*4+t], a17[T*4+t]]
    L += [Wait(vm="A17")]
    pend = []
    for k, m in enumerate(main):
        L.append(m)
        if k % 2 == 1 and order[k // 2][1] != 0:
            T, t = order[k // 2]
            pend.append((k + 9, I(f"ds_write_b128 v{vRw[t-1]}, {vq(AC2 + (T*4+t)*4)} offset:{T*1024}", "rw")))
        while pend and pend[0][0] <= k:
            L.append(pend.pop(0)[1])
    L += [x for _, x in pend]
    L += [Wait(lgkm="all"), I("s_barrier")] + ST()
    for sl in range(3):
        for T in range(5):
            L.append(I(f"ds_read_b128 {vq(AB + (sl*5+T)*4)}, v{vRr} offset:{sl*5120 + T*1024}", f"rr{T}_{sl}"))
    L += [Wait(vm="S")]
    for sl in range(3):
        for T in range(5):
            L += [Wait(lgkm=f"rr{T}_{sl}")]
            for r in range(4):
                a = AC2 + T*16 + r
                L.append(I(f"v_add_f32 v{a}, v{a}, v{AB + (sl*5+T)*4 + r}"))
            if sl == 2:
                a = AC2 + T*16
                L += [I(f"v_mul_f32 v{a+r}, v{a+r}, v{vS[T]}") for r in range(4)]
                L += [I(f"v_cvt_pk_bf16_f32 v{a}, v{a}, v{a+1}"), I(f"v_cvt_pk_bf16_f32 v{a+1}, v{a+2}, v{a+3}"),
                      I(f"s_mov_b32 s10, {T*16*896}"),
                      I(f"buffer_store_dwordx2 v[{a}:{a+1}], v{vOut}, {srd(SRD_O)}, s10 offen", "out")]
    L += ST() + ST.dump(65536, 16)
    extra = slow("h", vRdy) + [I("L_poll_o:")] + spin_step() + [I(f"buffer_load_dword v{vF}, v{vOf}, {srd(SRD_M)}, s27 offen sc1"), I("s_waitcnt vmcnt(0)"),
                               I(f"v_cmp_gt_u32 vcc, 4, v{vF}"), I("s_nop 0"), I("s_cbranch_vccnz L_poll_o"), I("s_branch L_got_o")]
    return L, extra

QW_RING, QW_SLOT = 0, 24576
QX_RING, QX_SLOT = 98304, 20480
QG = QX_RING + 3 * QX_SLOT
assert QG + 4096 <= 163840

def qkv():
    ST = Stamps([40, 41, 42, 43, 44, 45, 46, 47, 48, 49, 50, 51])
    vWd = [1, 2]; vXd = [3, 4]; vWr = [[5, 6], [7, 8]]; vXr = [9, 10]
    vQ1b, vQA, vQB_, vQH, vQ1 = 11, 12, 13, 14, [15, 16]
    vRdy = 47
    K0 = 48; K1 = K0 + 36; V0 = K1 + 36; V1 = V0 + 36; Q0 = V1 + 36; Q1 = Q0 + 32
    assert Q1 + 32 == 256
    WF = 0; XF = 48
    def wf(u, sec, t): return WF + (u % 2) * 24 + (sec * 2 + t) * 4
    def xf(u, T): return XF + (u % 2) * 36 + T * 4
    r4, p16, r8, p8 = 17, 18, 19, 20
    L = [I("L_qkv:"), I(f"s_mov_b32 {sJ}, s10")] + ST()
    if ROT:
        L += [I(f"s_mul_i32 s11, {sQB}, 37"), I("s_lshr_b32 s11, s11, 8"), I("s_mul_i32 s11, s11, 7"),
              I(f"s_sub_u32 s11, {sQB}, s11"), I(f"s_lshl_b32 {sK[0]}, s11, 7")]
    else:
        L += [I(f"s_mov_b32 {sK[0]}, 0")]
    L += [I(f"v_lshrrev_b32 v{r4}, 4, v0"), I(f"v_and_b32 v{p16}, 15, v0"),
          I(f"v_lshrrev_b32 v{r8}, 3, v0"), I(f"v_and_b32 v{p8}, 7, v0"),
          I(f"s_mul_i32 s11, {sJ}, 224"), I(f"s_cmp_eq_u32 {sJ}, 3"), I("s_cselect_b32 s11, 640, s11"),
          I(f"s_mul_i32 s26, {sWV}, {8*2688}"), I("s_add_u32 s11, s11, s26"),
          I("s_movk_i32 s27, 2688"), I(f"v_mul_u32_u24 v21, s27, v{r4}"), I("v_add_u32 v21, s11, v21"),
          I(f"s_and_b32 s26, {sWV}, 1"), I("s_lshl_b32 s26, s26, 3"),
          I(f"v_lshlrev_b32 v22, 1, v{r4}"), I(f"v_sub_u32 v22, v{p16}, v22"), I("v_xor_b32 v22, s26, v22"),
          I("v_and_b32 v22, 15, v22"),
          I(f"v_lshl_add_u32 v{vWd[0]}, v22, 4, v21"),
          I(f"v_add_u32 v{vWd[1]}, {4*2688-1024}, v{vWd[0]}"),
          I(f"s_lshl_b32 {sM0W}, {sWV}, 11"),
          I("s_movk_i32 s27, 896"), I(f"v_mul_u32_u24 v21, s27, v{r8}"),
          I(f"v_xor_b32 v22, v{r4}, v{p8}"), I("v_lshl_add_u32 v21, v22, 4, v21"),
          I("s_lshl_b32 s26, s26, 3"),
          I(f"v_xor_b32 v{vXd[0]}, s26, v21"), I(f"v_xor_b32 v{vXd[1]}, 64, v{vXd[0]}"),
          I(f"s_mul_i32 {sM0X}, {sWV}, 5120"), I(f"s_add_u32 {sM0X}, {sM0X}, {QX_RING}"),
          I(f"s_lshl_b32 s26, {sQB}, 7"), I(f"s_mul_i32 s27, {sWV}, 40"), I("s_add_u32 s26, s26, s27"),
          I("s_sub_u32 s26, s26, 16")]
    def xrow(i):
        r = [I(f"s_add_u32 s27, s26, {8*i}"), I(f"s_mul_i32 {sXROW[i]}, s27, 896")]
        if i < 2: r += [I("s_cmp_lt_i32 s27, 0"), I(f"s_cselect_b32 {sXROW[i]}, {OOB}, {sXROW[i]}")]
        if i >= 3: r += [I(f"s_cmp_eq_u32 {sWV}, 3"), I(f"s_cselect_b32 {sXROW[i]}, {OOB}, {sXROW[i]}")]
        return r
    def dmaW(u):
        s, e = divmod(u, 2)
        r = []
        for sec in range(3):
            r += [I(f"s_add_u32 m0, {sM0W}, {QW_RING + (u % 4) * QW_SLOT + sec * 8192}")]
            if sec == 0:
                r += [I(f"s_mul_i32 {sSOFF}, {sK[s]}, 1344")]
                if e: r += [I(f"s_add_u32 {sSOFF}, {sSOFF}, 86016")]
            else:
                r += [I(f"s_add_u32 {sSOFF}, {sSOFF}, 896")]
            for i in range(2):
                r.append(I(f"buffer_load_dwordx4 v{vWd[i]}, {srd(SRD_W)}, {sSOFF} offen offset:{1024*i} lds", f"W{u}"))
        return r
    def dmaX(s):
        r = []
        for i in range(5):
            r += [I(f"s_add_u32 m0, {sM0X}, {(s % 3) * QX_SLOT + i * 1024}"), I(f"s_add_u32 {sT0}, {sXROW[i]}, {sK[s]}"),
                  I(f"buffer_load_dwordx4 v{vXd[i % 2]}, {srd(SRD_X)}, {sT0} offen lds", f"X{s}")]
        return r
    L += [Wait(lgkm="all")]
    L += mksrd(SRD_W, 6, WQKV_BYTES) + dmaW(0)
    for i in range(5): L += xrow(i)
    L += mksrd(SRD_X, 4, X_BYTES) + dmaX(0) + mksrd(SRD_M, 18, 896)
    L += [I(f"s_lshl_b32 s26, {sWV}, 7"), I("v_lshl_add_u32 v23, v0, 1, s26"),
          I(f"buffer_load_ushort v24, v23, {srd(SRD_M)}, 0 offen", "gw"),
          I(f"buffer_load_ushort v25, v23, {srd(SRD_M)}, 0 offen offset:512", "gw")]
    L += dmaW(1)
    for s in range(1, 7): L += sk_next(s)
    L += srd_a() + mksrd(SRD_D, 22, 256)
    L += [I("v_bfe_u32 v21, v0, 2, 2"), I(f"v_lshl_add_u32 v22, v{r4}, 3, v21"),
          I(f"v_and_b32 v26, 1, v{r4}"), I("v_lshl_add_u32 v21, v26, 2, v21"),
          I("v_and_b32 v26, 3, v0"), I("v_lshlrev_b32 v27, 3, v26"), I("v_lshl_add_u32 v21, v21, 5, v27"),
          I(f"s_mul_i32 s26, {sWV}, 56"), I(f"s_cmp_eq_u32 {sJ}, 3"), I("s_cselect_b32 s27, 32, 0"),
          I("s_add_u32 s26, s26, s27"), I("v_add_u32 v21, s26, v21"),
          I("v_and_b32 v27, 0xff, v21"), I(f"v_lshl_add_u32 v{vWr[0][0]}, v22, 8, v27"),
          I("v_add_u32 v21, 32, v21"), I("v_and_b32 v27, 0xff, v21"), I(f"v_lshl_add_u32 v{vWr[0][1]}, v22, 8, v27"),
          I(f"v_add_u32 v{vWr[1][0]}, {2*QW_SLOT}, v{vWr[0][0]}"), I(f"v_add_u32 v{vWr[1][1]}, {2*QW_SLOT}, v{vWr[0][1]}"),
          I("v_cmp_eq_u32 vcc, 3, v26"),
          I(f"v_lshlrev_b32 v27, 3, v22"), I(f"v_add_u32 v27, {QG}, v27"),
          I(f"v_cndmask_b32 v{vQ1b}, v{vWr[0][1]}, v27, vcc"),
          I(f"v_mov_b32 v27, 1"), I(f"v_cndmask_b32 v{vQA}, v27, 0, vcc"),
          I(f"v_cndmask_b32 v{vQB_}, 0, v27, vcc"),
          I(f"v_mov_b32 v27, 0x400"), I(f"v_cndmask_b32 v{vQH}, v27, 32, vcc"),
          I(f"v_lshrrev_b32 v21, 1, v{p16}"), I(f"v_xor_b32 v21, v21, v{r4}"), I("v_lshlrev_b32 v21, 4, v21"),
          I(f"v_lshl_add_u32 v21, v{p16}, 7, v21"),
          I(f"v_add_u32 v{vXr[0]}, {QX_RING}, v21"), I(f"v_xor_b32 v{vXr[1]}, 64, v{vXr[0]}"),
          I("v_lshlrev_b32 v23, 2, v23"), I(f"v_add_u32 v23, {QG}, v23"),
          Wait(vm="gw"),
          I("ds_write_b16 v23, v24"), I("ds_write_b16 v23, v25 offset:2048")]
    def reads(u):
        s, e = divmod(u, 2)
        sl = u % 4
        a = [I(f"s_lshl_b32 {sT1}, {sK[s]}, 2")]
        if e: a += [I(f"s_add_u32 {sT1}, {sT1}, 256")]
        G = [a, [I(f"s_mov_b32 {sT2}, {sl * QW_SLOT}"), I(f"v_mad_u32_u24 v{vQ1[0]}, v{vQB_}, {sT1}, v{vQ1b}")],
             [I(f"v_mad_u32_u24 v{vQ1[0]}, v{vQA}, {sT2}, v{vQ1[0]}"), I(f"v_add_u32 v{vQ1[1]}, v{vQH}, v{vQ1[0]}")]]
        for T in range(9):
            G.append([I(f"ds_read_b128 {aq(xf(u, T))}, v{vXr[e]} offset:{(s % 3) * QX_SLOT + T * 2048}", f"r{u}")])
        for sec in (1, 2, 0):
            for t in range(2):
                for h in range(2):
                    if sec == 0 and t == 1:
                        G.append([I(f"ds_read_b64_tr_b16 {aq(wf(u,sec,t)+2*h, 2)}, v{vQ1[h]}", f"r{u}")])
                    else:
                        G.append([I(f"ds_read_b64_tr_b16 {aq(wf(u,sec,t)+2*h, 2)}, v{vWr[sl//2][t]} offset:{(sl%2)*QW_SLOT + sec*8192 + h*1024}", f"r{u}")])
        return G
    def mm(u):
        r = []
        for T in range(9):
            r += [mfma(vq(K0 + 4*T), aq(wf(u,1,0)), aq(xf(u,T)), u == 0), mfma(vq(K1 + 4*T), aq(wf(u,1,1)), aq(xf(u,T)), u == 0)]
        for T in range(9):
            r += [mfma(vq(V0 + 4*T), aq(xf(u,T)), aq(wf(u,2,0)), u == 0), mfma(vq(V1 + 4*T), aq(xf(u,T)), aq(wf(u,2,1)), u == 0)]
        for T in range(1, 9):
            r += [mfma(vq(Q0 + 4*(T-1)), aq(wf(u,0,0)), aq(xf(u,T)), u == 0), mfma(vq(Q1 + 4*(T-1)), aq(wf(u,0,1)), aq(xf(u,T)), u == 0)]
        return r
    for u in range(14):
        L += [Wait(vm=[f"W{u}", f"X{u//2}"], lgkm="all"), I("s_barrier")]
        if u in (0, 2, 7): L += ST()
        if u == 0:
            L += [x for g in reads(0) for x in g] + dmaW(2) + dmaX(1)
            continue
        G = []
        if u == 1: G += dma_groups(dmaW(3) + dmaX(2))
        if u + 3 < 14: G += dma_groups(dmaW(u + 3))
        if u % 2 == 0 and u // 2 + 2 < 7: G += dma_groups(dmaX(u // 2 + 2))
        if u == 12: G += [[I(f"buffer_load_dword v{vRdy}, off, {srd(SRD_D)}, 0 sc1", "rdy")]]
        L += weave(mm(u - 1), [(G, 0, 52), (reads(u), 1, 46)])
    i16, g4 = 18, 17
    sel = [21, 22, 23, 24]; vMq = 25; vSt = 26; vZw, vZr, vZb = 27, 28, 29
    RAT = 30
    C = [I(f"v_and_b32 v38, 1, v{i16}"), I(f"v_cmp_eq_u32 {mODD}, 1, v38"),
         I(f"v_lshl_add_u32 v38, v{g4}, 2, v38"),
         I(f"v_cmp_le_u32 {mC0}, v38, v{i16}"), I("v_add_u32 v38, 2, v38"), I(f"v_cmp_le_u32 {mC1}, v38, v{i16}"),
         I(f"v_cmp_eq_u32 {mG3}, 3, v{g4}"),
         I("v_mov_b32 v39, 0x0c0c0100"), I("v_mov_b32 v40, 0x01000c0c"),
         I(f"v_cndmask_b32 v39, v39, v40, {mODD}"),
         I("v_mov_b32 v41, 0x0c0c0302"), I("v_mov_b32 v40, 0x03020c0c"),
         I(f"v_cndmask_b32 v41, v41, v40, {mODD}"),
         I("v_mov_b32 v40, 0x0c0c0c0c"),
         I(f"v_cndmask_b32 v{sel[0]}, v39, v40, {mC0}"), I(f"v_cndmask_b32 v{sel[1]}, v41, v40, {mC1}"),
         I(f"v_cndmask_b32 v{sel[2]}, v40, v39, {mC0}"), I(f"v_cndmask_b32 v{sel[3]}, v40, v41, {mC1}"),
         I(f"v_cndmask_b32 v{vMq}, -1, 0, {mG3}"),
         I(f"s_cmp_eq_u32 {sQB}, 0"), I(f"s_cselect_b64 {mC0F}, {mC0}, -1"), I(f"s_cselect_b64 {mC1F}, {mC1}, -1"),
         I(f"s_mov_b32 {sSCL}, {hex(f2u(28 ** -0.5 * math.log2(math.e)))}"),
         I(f"s_mov_b32 {sNL2E}, {hex(f2u(-math.log2(math.e)))}"),
         I(f"v_lshlrev_b32 v{vSt}, 4, v0"),
         I(f"s_mul_i32 s26, {sQB}, {8*NK}"), I(f"s_lshl_b32 s27, {sJ}, 2"), I("s_add_u32 s26, s26, s27"),
         I(f"s_add_u32 s26, s26, {sWV}"), I("s_add_u32 s26, s26, 56"), I(f"s_lshl_b32 {sAST}, s26, 10"),
         I(f"s_lshl_b32 s26, {sWV}, 10"), I(f"v_lshlrev_b32 v38, 5, v{i16}"), I(f"v_add_u32 v{vZb}, s26, v38"),
         I(f"v_add_u32 v38, 0x200, v{vZb}"), I(f"v_cndmask_b32 v{vZw}, v38, v{vZb}, {mG3}"),
         I(f"v_lshl_add_u32 v{vZr}, v{g4}, 2, v{vZb}")]
    C += mksrd(SRD_M, 24, MISC_BYTES)
    packK = []
    for T in range(9):
        a, b = K0 + 4*T, K1 + 4*T
        packK += [I(f"v_cvt_pk_bf16_f32 v{a}, v{a}, v{a+1}"), I(f"v_cvt_pk_bf16_f32 v{a+1}, v{a+2}, v{a+3}"),
                  I(f"v_cvt_pk_bf16_f32 v{a+2}, v{b}, v{b+1}"), I(f"v_cvt_pk_bf16_f32 v{a+3}, v{b+2}, v{b+3}")]
    VB0, VB1 = K1, K1 + 18
    packV = []
    for T in range(9):
        a, b = V0 + 4*T, V1 + 4*T
        packV += [I(f"v_cvt_pk_bf16_f32 v{VB0+2*T}, v{a}, v{a+1}"), I(f"v_cvt_pk_bf16_f32 v{VB0+2*T+1}, v{a+2}, v{a+3}"),
                  I(f"v_cvt_pk_bf16_f32 v{VB1+2*T}, v{b}, v{b+1}"), I(f"v_cvt_pk_bf16_f32 v{VB1+2*T+1}, v{b+2}, v{b+3}")]
    L += [Wait(lgkm="all"), I("s_barrier")] + ST()
    m13 = mm(13)
    seq, left = interleave(m13[:22], C, per_gap=2, spread=False)
    L += seq
    seq, left = interleave(m13[22:], left + packK + packV, per_gap=2, spread=False)
    L += seq + left
    Z = [I(f"ds_write_b32 v{vZw}, v{Q1 + 4*T} offset:{4*T}", "zw") for T in range(8)]
    packQ = []
    for T in range(8):
        a, b = Q0 + 4*T, Q1 + 4*T
        packQ += [I(f"v_cvt_pk_bf16_f32 v{a}, v{a}, v{a+1}"), I(f"v_cvt_pk_bf16_f32 v{a+1}, v{a+2}, v{a+3}"),
                  I(f"v_cvt_pk_bf16_f32 v{a+2}, v{b}, v{b+1}"), I(f"v_cvt_pk_bf16_f32 v{a+3}, v{b+2}, v{b+3}"),
                  I(f"v_and_b32 v{a+2}, v{vMq}, v{a+2}"), I(f"v_and_b32 v{a+3}, v{vMq}, v{a+3}")]
    L += [I("s_nop 3")] + Z + packQ[:12] + [Wait(lgkm="zw"), I(f"ds_read_b32 v38, v{vZr}", "zr"), I(f"ds_read_b32 v39, v{vZr} offset:16", "zr")]
    L += packQ[12:30] + [Wait(lgkm="zr")]
    G = []
    for z, g, o in ((38, 40, 42), (39, 41, 43)):
        G.append([I(f"v_cvt_pk_bf16_f32 v{z}, v{z}, v{z}"), I(f"v_and_b32 v{z}, 0xffff0000, v{z}"),
                  I(f"v_mul_f32 v{z}, {sNL2E}, v{z}"), I(f"v_exp_f32 v{z}, v{z}"), I(f"v_add_f32 v{z}, 1.0, v{z}"),
                  I(f"v_rcp_f32 v{g}, v{z}"), I(f"v_cvt_pk_bf16_f32 v{g}, v{g}, v{g}"), I(f"v_and_b32 v{g}, 0xffff0000, v{g}"),
                  I(f"v_sub_f32 v{o}, 1.0, v{g}"), I(f"v_cvt_pk_bf16_f32 v{o}, v{o}, v{o}"), I(f"v_and_b32 v{o}, 0xffff0000, v{o}"),
                  I(f"v_max_f32 v{o}, {hex(f2u(1e-30))}, v{o}"), I(f"v_rcp_f32 v{z}, v{o}"), I(f"v_mul_f32 v{g}, v{g}, v{z}")])
    for a, b in zip(*G): L += [a, b]
    L += [I(f"ds_write_b32 v{vZr}, v40", "zw2"), I(f"ds_write_b32 v{vZr}, v41 offset:16", "zw2"),
          I(f"s_lshl_b32 s26, {sJ}, 13"), I(f"s_lshl_b32 s27, {sQB}, 9"), I("s_add_u32 s26, s26, s27"),
          I(f"s_cmp_eq_u32 {sWV}, 0"), I(f"s_cselect_b32 s26, s26, {OOB}"),
          I("v_lshlrev_b32 v44, 2, v0"),
          I(f"buffer_store_dword v42, v44, {srd(SRD_M)}, s26 offen sc1", "st"),
          I(f"buffer_store_dword v43, v44, {srd(SRD_M)}, s26 offen offset:256 sc1", "st"),
          Wait(lgkm="zw2"),
          I(f"ds_read_b128 {vq(RAT)}, v{vZb}", "zr2"), I(f"ds_read_b128 {vq(RAT+4)}, v{vZb} offset:16", "zr2")]
    L += packQ[30:]
    def att(T, base):
        SP, SC, a0, a1, m, t, P = base, base + 4, base + 8, base + 9, base + 10, base + 11, base + 12
        q = Q0 + 4 * (T - 1)
        O0, O1 = V0 + 4 * T, V1 + 4 * T
        st = []
        st.append([mfma(vq(SP), vq(K0 + 4*(T-1)), vq(q), True), mfma(vq(SC), vq(K0 + 4*T), vq(q), True)])
        s = [I(f"v_cndmask_b32 v{SP}, v{SP}, v{SP+1}, {mODD}"), I(f"v_cndmask_b32 v{SP+2}, v{SP+2}, v{SP+3}, {mODD}"),
             I(f"v_cndmask_b32 v{SC}, v{SC}, v{SC+1}, {mODD}"), I(f"v_cndmask_b32 v{SC+2}, v{SC+2}, v{SC+3}, {mODD}"),
             I(f"v_cndmask_b32 v{a0}, v{SP}, v{SC}, {mC0}"), I(f"v_cndmask_b32 v{a1}, v{SP+2}, v{SC+2}, {mC1}")]
        if T == 1:
            s += [I(f"v_mov_b32 v{t}, {hex(f2u(-1e30))}"),
                  I(f"v_cndmask_b32 v{a0}, v{t}, v{a0}, {mC0F}"), I(f"v_cndmask_b32 v{a1}, v{t}, v{a1}, {mC1F}")]
        s += [I(f"v_max_f32 v{m}, v{a0}, v{a1}"), I(f"v_mov_b32 v{t}, v{m}")]
        st.append(s)
        st.append([I(f"v_permlane32_swap_b32 v{m}, v{t}"), I(f"v_max_f32 v{m}, v{m}, v{t}"), I(f"v_mov_b32 v{t}, v{m}")])
        st.append([I(f"v_permlane16_swap_b32 v{m}, v{t}"), I(f"v_max_f32 v{m}, v{m}, v{t}"),
                   I(f"v_sub_f32 v{a0}, v{a0}, v{m}"), I(f"v_sub_f32 v{a1}, v{a1}, v{m}"),
                   I(f"v_mul_f32 v{a0}, {sSCL}, v{a0}"), I(f"v_mul_f32 v{a1}, {sSCL}, v{a1}"),
                   I(f"v_exp_f32 v{a0}, v{a0}"), I(f"v_exp_f32 v{a1}, v{a1}")])
        st.append([I(f"v_cvt_pk_bf16_f32 v{SP}, v{a0}, v{a1}"), I(f"v_add_f32 v{m}, v{a0}, v{a1}"), I(f"v_mov_b32 v{t}, v{m}"),
                   I(f"v_perm_b32 v{P}, v{SP}, v{SP}, v{sel[0]}"), I(f"v_perm_b32 v{P+1}, v{SP}, v{SP}, v{sel[1]}"),
                   I(f"v_perm_b32 v{P+2}, v{SP}, v{SP}, v{sel[2]}"), I(f"v_perm_b32 v{P+3}, v{SP}, v{SP}, v{sel[3]}"),
                   I(f"v_permlane32_swap_b32 v{m}, v{t}"), I(f"v_add_f32 v{m}, v{m}, v{t}"), I(f"v_mov_b32 v{t}, v{m}")])
        st.append([mfma(vq(O0), vq(VB0 + 2*(T-1)), vq(P), True), mfma(vq(O1), vq(VB1 + 2*(T-1)), vq(P), True),
                   I(f"v_permlane16_swap_b32 v{m}, v{t}"), I(f"v_add_f32 v{m}, v{m}, v{t}"), I(f"v_rcp_f32 v{m}, v{m}")])
        st.append([I(f"v_mul_f32 v{m}, v{m}, v{RAT + T - 1}"), I(f"v_cndmask_b32 v{t}, v{m}, 0, {mG3}")])
        s = []
        for r in range(4): s.append(I(f"v_mul_f32 v{O0+r}, v{O0+r}, v{m}"))
        for r in range(4): s.append(I(f"v_mul_f32 v{O1+r}, v{O1+r}, v{t}"))
        s += [I(f"v_cvt_pk_bf16_f32 v{O0}, v{O0}, v{O0+1}"), I(f"v_cvt_pk_bf16_f32 v{O0+1}, v{O0+2}, v{O0+3}"),
              I(f"v_cvt_pk_bf16_f32 v{O0+2}, v{O1}, v{O1+1}"), I(f"v_cvt_pk_bf16_f32 v{O0+3}, v{O1+2}, v{O1+3}"),
              I(f"buffer_store_dwordx4 {vq(O0)}, v{vSt}, {srd(SRD_A)}, {sAST} offen sc1", "st"),
              I(f"s_add_u32 {sAST}, {sAST}, {NK*1024}")]
        st.append(s)
        return st
    L += [Wait(lgkm="zr2")] + ST()
    for T in range(1, 9, 2):
        A, B = att(T, Q1), att(T + 1, Q1 + 16)
        for k, (x, y) in enumerate(zip(A, B)):
            L += x + y
            if k == 0: L += [I("s_nop 4")]
            if k == 6: L += [I("s_nop 0")]
    L += ST()
    L += [I(f"s_lshl_b32 s26, {sQB}, 2"), I(f"s_add_u32 s26, s26, {sJ}"), I("s_lshl_b32 s26, s26, 7"), I(f"s_add_u32 s26, s26, {FLAG_OFF + 8192}")]
    L += publish("o", vRdy, 1, "s26") + ST() + ST.dump(65536, 2)
    return L, slow("o", vRdy)

def main():
    for n in range(84): assert (n * 43) >> 8 == n // 6
    for n in range(182): assert (n * 147) >> 10 == n // 7
    pro = prologue()
    def path(role):
        full = resolve(pro + role)
        return full[len(pro):], full
    fr, fx = ffn()
    qr, qx = qkv()
    f, ff = path(fr)
    q, qf = path(qr)
    probs = []
    for nm, s in (("ffn", ff), ("qkv", qf), ("idle", pro + idle()), ("fx", fx), ("qx", qx)):
        probs += check_hazards(s, nm) + check_pending(s, nm)
    for p in probs: print("HAZARD", p, file=sys.stderr)
    ref = open(f"cdna_kernels/{NAME}.s.ref").read()
    out = ref.split("; @launch")[0]
    out += "; @launch grid=(256,1,1) block=(256,1,1) lds=163840\n"
    out += f'.amdgcn_target "amdgcn-amd-amdhsa--gfx950"\n.text\n.globl {NAME}_kernel\n.p2align 8\n.type {NAME}_kernel,@function\n{NAME}_kernel:\n'
    out += render(pro) + "\n" + render(f) + "\n    s_endpgm\n" + render(fx) + "\n" + render(q) + "\n    s_endpgm\n" + render(qx) + "\n"
    out += render(idle()) + "\nL_end:\n    s_endpgm\n"
    out += f""".section .rodata,"a"
.p2align 6
.amdhsa_kernel {NAME}_kernel
  .amdhsa_next_free_vgpr 512
  .amdhsa_next_free_sgpr 102
  .amdhsa_accum_offset 256
  .amdhsa_group_segment_fixed_size 0
  .amdhsa_kernarg_size 88
  .amdhsa_user_sgpr_count 2
  .amdhsa_user_sgpr_kernarg_segment_ptr 1
  .amdhsa_system_sgpr_workgroup_id_x 1
.end_amdhsa_kernel
"""
    open(sys.argv[1], "w").write(out)
    print("instr counts: ffn", len(f), "qkv", len(q), "hazards", len(probs))

main()
```

```python
import re

TRANS = ("v_exp_f32", "v_log_f32", "v_rcp_f32", "v_rsq_f32", "v_sqrt_f32", "v_sin_f32", "v_cos_f32")


def _expand(tok):
    tok = tok.strip()
    tok = tok.lstrip("-")
    if tok.startswith("abs(") and tok.endswith(")"):
        tok = tok[4:-1]
    if tok.startswith("|") and tok.endswith("|"):
        tok = tok[1:-1]
    m = re.fullmatch(r"([vas])\[(\d+):(\d+)\]", tok)
    if m:
        return [f"{m.group(1)}{i}" for i in range(int(m.group(2)), int(m.group(3)) + 1)]
    m = re.fullmatch(r"([vas])(\d+)", tok)
    if m:
        return [tok]
    if tok in ("vcc", "exec", "m0", "scc"):
        return [tok]
    if tok in ("vcc_lo", "vcc_hi"):
        return ["vcc"]
    if tok in ("exec_lo", "exec_hi"):
        return ["exec"]
    return []


class Ins:
    def __init__(self, text, tag=None):
        self.text = text
        self.tag = tag
        self.kind = "other"
        self.w = set()
        self.r = set()
        self.srcc = set()
        self.states = 1
        self.cost = 1
        self._parse()

    def _parse(self):
        t = self.text.split(";")[0].strip()
        if t.endswith(":"):
            self.kind = "label"
            self.states = 0
            self.cost = 0
            return
        if t.startswith("."):
            self.kind = "directive"
            self.states = 0
            self.cost = 0
            return
        parts = t.split(None, 1)
        op = parts[0]
        self.op = op
        rest = parts[1] if len(parts) > 1 else ""
        rest = re.sub(r"\s(op_sel|op_sel_hi|neg_lo|neg_hi):\[[0-9,]*\]", "", rest)
        ops = [x.strip() for x in rest.split(",")] if rest else []
        if ops:
            ops[-1] = ops[-1].split()[0] if ops[-1].split() else ""
        mods = rest.split()
        E = lambda xs: set(r for x in xs for r in _expand(x))
        if op == "s_nop":
            self.kind = "nop"
            self.states = int(ops[0]) + 1
            self.cost = self.states
        elif op == "s_waitcnt":
            self.kind = "wait"
        elif op == "s_barrier":
            self.kind = "barrier"
        elif op.startswith("s_cbranch") or op in ("s_branch", "s_endpgm", "s_setpc_b64"):
            self.kind = "branch"
        elif op.startswith("s_load") or op in ("s_memtime", "s_memrealtime"):
            self.kind = "smem"
            self.w = E(ops[:1])
            self.r = E(ops[1:])
        elif op.startswith("s_cmp") or op.startswith("s_bitcmp"):
            self.kind = "salu"
            self.r = E(ops)
            self.w = {"scc"}
        elif op in ("s_sleep", "s_setprio"):
            self.kind = "salu"
        elif op.startswith("s_"):
            self.kind = "salu"
            self.w = E(ops[:1])
            self.r = E(ops[1:])
            if "saveexec" in op:
                self.w |= {"exec"}
        elif op.startswith("v_mfma"):
            self.kind = "mfma"
            self.w = E(ops[:1])
            self.r = E(ops[1:])
            self.srcc = E(ops[3:4])
            self.cost = 2
        elif op.startswith("v_permlane"):
            self.kind = "perm"
            self.w = E(ops[:2])
            self.r = E(ops[:2])
        elif op.startswith("v_cmp"):
            self.kind = "valu"
            self.w = E(ops[:1])
            self.r = E(ops[1:])
        elif op.startswith("v_readfirstlane") or op.startswith("v_readlane"):
            self.kind = "valu"
            self.w = E(ops[:1])
            self.r = E(ops[1:])
        elif op.startswith("v_"):
            base = op.replace("_e32", "").replace("_e64", "")
            self.kind = "trans" if base in TRANS else "valu"
            if self.kind == "trans":
                self.cost = 2
            self.w = E(ops[:1])
            self.r = E(ops[1:])
            if base.startswith("v_fmac") or "_dpp" in op:
                self.r |= E(ops[:1])
            if "_co_" in op:
                self.w |= E(ops[1:2])
        elif op.startswith("ds_read") or op.startswith("ds_bpermute") or op.startswith("ds_swizzle"):
            self.kind = "ds"
            self.w = E(ops[:1])
            self.r = E(ops[1:])
        elif op.startswith("ds_write"):
            self.kind = "ds"
            self.r = E(ops)
        elif op.startswith("buffer_load") or op.startswith("global_load"):
            self.kind = "vmem"
            if "lds" in mods:
                self.r = E(ops) | {"m0"}
                self.lds_dma = True
            else:
                self.w = E(ops[:1])
                self.r = E(ops[1:])
        elif op.startswith("buffer_store") or op.startswith("global_store"):
            self.kind = "vmem"
            self.r = E(ops)
            self.store = True
            if op.startswith("buffer_store"):
                self.sdata = E(ops[:1])
            else:
                self.sdata = E(ops[1:2])
            self.wide = op.endswith("x4") or op.endswith("x3")
        elif op.startswith("buffer_atomic") or op.startswith("global_atomic"):
            self.kind = "vmem"
            self.r = E(ops)
            if "sc0" in mods:
                self.w = E(ops[:1])
        elif op.startswith("buffer_inv") or op.startswith("buffer_wbl2"):
            self.kind = "vmem"
        else:
            raise ValueError("unparsed instruction: " + self.text)


class Wait:
    kind = "pwait"
    tag = None
    cost = 1
    states = 1

    def __init__(self, vm=None, lgkm=None):
        self.vm = vm
        self.lgkm = lgkm


def I(text, tag=None):
    return Ins(text, tag)


def resolve(seq):
    vmq, lq = [], []
    out = []
    for x in seq:
        if isinstance(x, Wait):
            parts = []
            for name, q, tag, mx in (("vmcnt", vmq, x.vm, 63), ("lgkmcnt", lq, x.lgkm, 15)):
                if tag is None:
                    continue
                if tag == "all":
                    n = 0
                    done = len(q)
                else:
                    tags = tag if isinstance(tag, (list, tuple, set)) else [tag]
                    idx = [i for i, t in enumerate(q) if t in tags]
                    if not idx:
                        continue
                    n = len(q) - 1 - max(idx)
                    done = max(idx) + 1
                    if n > mx:
                        n = mx
                        done = len(q) - mx
                del q[:done]
                parts.append(f"{name}({n})")
            if parts:
                out.append(Ins("s_waitcnt " + " ".join(parts)))
            continue
        if x.kind == "vmem":
            vmq.append(x.tag)
        elif x.kind == "ds":
            lq.append(x.tag)
        elif x.kind == "smem":
            lq.append(x.tag)
        elif x.kind == "wait":
            m = re.search(r"vmcnt\((\d+)\)", x.text)
            if m:
                n = int(m.group(1))
                if len(vmq) > n:
                    del vmq[: len(vmq) - n]
            m = re.search(r"lgkmcnt\((\d+)\)", x.text)
            if m:
                n = int(m.group(1))
                if len(lq) > n:
                    del lq[: len(lq) - n]
        out.append(x)
    return out


def isv(r):
    return r[0] in "va" and r[1:].isdigit()


def iss(r):
    return (r[0] == "s" and r[1:].isdigit()) or r in ("vcc",)


def check_hazards(seq, name=""):
    probs = []
    n = len(seq)
    for i, a in enumerate(seq):
        if a.kind in ("label", "directive", "nop", "wait", "barrier", "branch", "other"):
            continue
        rules = []
        VAL = ("valu", "trans", "perm")
        if a.kind in VAL:
            wv = {r for r in a.w if isv(r)}
            ws = {r for r in a.w if iss(r)}
            if wv:
                rules.append((lambda b, wv=wv: b.kind == "mfma" and b.r & wv, 2, "valu->mfma"))
                rules.append((lambda b, wv=wv: b.kind == "perm" and b.r & wv, 2, "valu->permlane"))
                rules.append((lambda b, wv=wv: b.kind == "valu" and "_dpp" in b.op and b.r & wv, 2, "valu->dpp"))
                rules.append((lambda b, wv=wv: b.kind == "valu" and ("readfirstlane" in b.op or "readlane" in b.op) and b.r & wv, 1, "valu->readlane"))
            if a.kind == "trans":
                rules.append((lambda b, wv=wv: b.kind in ("valu", "perm") and b.r & wv, 1, "trans->valu"))
            if ws:
                rules.append((lambda b, ws=ws: b.kind in VAL and b.r & ws, 2, "valu sgpr->valu"))
                rules.append((lambda b, ws=ws: b.kind == "vmem" and b.r & ws, 5, "valu sgpr->vmem"))
            if "exec" in a.w:
                rules.append((lambda b: b.kind in ("mfma", "perm"), 4, "valu exec->mfma/perm"))
        if a.kind == "mfma":
            passes = 4 if "16x16x32" in a.op else 8
            nd = {4: 8, 8: 12}[passes]
            rules.append((lambda b, w=a.w: b.kind in VAL + ("vmem", "ds") and ((b.r | b.w) & w), nd, "mfma->valu/mem"))
            rules.append((lambda b, w=a.w: b.kind == "mfma" and ((b.r - b.srcc) & w), nd, "mfma->mfma AB"))
            rules.append((lambda b, w=a.w: b.kind == "mfma" and (b.srcc & w) and b.srcc != w, {4: 6, 8: 10}[passes], "mfma->mfma C partial"))
            rules.append((lambda b, w=a.w: b.kind == "mfma" and (b.w & w) and not (b.srcc & w), {4: 6, 8: 10}[passes], "mfma WAW"))
            if a.srcc:
                rules.append((lambda b, c=a.srcc: b.kind in VAL and (b.w & c), {4: 3, 8: 7}[passes], "mfma srcC WAR"))
        if a.kind == "salu" and "m0" in a.w:
            rules.append((lambda b: b.kind == "vmem" and getattr(b, "lds_dma", False), 1, "m0->dma"))
        if a.kind == "vmem" and getattr(a, "store", False) and a.wide:
            rules.append((lambda b, d=a.sdata: b.kind in VAL and (b.w & d), 2, "store data WAR"))
            rules.append((lambda b, d=a.sdata: b.kind in ("ds", "vmem", "mfma") and (b.w & d), 1, "store data WAR"))
        if not rules:
            continue
        mx = max(r[1] for r in rules)
        dist = 0
        j = i + 1
        while j < n and dist < mx:
            b = seq[j]
            for pred, need, what in rules:
                if dist < need and b.kind not in ("label", "directive") and pred(b):
                    probs.append(f"{name}: {what}: need {need} got {dist}: [{i}] {a.text}  ->  [{j}] {b.text}")
            dist += b.states
            j += 1
    return probs


def check_pending(seq, name=""):
    probs = []
    vmq, lq = [], []
    for i, x in enumerate(seq):
        if x.kind == "wait":
            m = re.search(r"vmcnt\((\d+)\)", x.text)
            if m:
                nn = int(m.group(1))
                if len(vmq) > nn:
                    del vmq[: len(vmq) - nn]
            m = re.search(r"lgkmcnt\((\d+)\)", x.text)
            if m:
                nn = int(m.group(1))
                if len(lq) > nn:
                    del lq[: len(lq) - nn]
            continue
        if x.kind in ("label", "directive", "nop", "barrier", "branch"):
            continue
        for q in (vmq, lq):
            for (j, w) in q:
                if w & (x.r | x.w):
                    probs.append(f"{name}: pending load [{j}] {seq[j].text} touched by [{i}] {x.text}")
        if x.kind == "vmem":
            vmq.append((i, set(x.w)))
        elif x.kind in ("ds", "smem"):
            lq.append((i, set(x.w)))
    return probs


def interleave(main, fill, per_gap=2, start=0, spread=True):
    out = []
    fill = list(fill)
    total = sum(f.cost for f in fill)
    ngaps = max(1, len(main) - start)
    rate = min(per_gap, total / ngaps) if spread else per_gap
    credit = 0.0
    k = 0
    for i, m in enumerate(main):
        out.append(m)
        if i < start:
            continue
        credit += rate
        while k < len(fill) and (fill[k].cost <= credit + 1e-9 or fill[k].cost == 0):
            out.append(fill[k])
            credit -= fill[k].cost
            k += 1
        if credit > per_gap:
            credit = per_gap
    return out, fill[k:]


def render(seq):
    L = []
    for x in seq:
        if x.kind in ("label", "directive"):
            L.append(x.text)
        else:
            L.append("    " + x.text)
    return "\n".join(L)


def weave(main, streams):
    at = [[] for _ in main]
    tail = []
    for groups, start, end in streams:
        n = len(groups)
        if n == 0:
            continue
        end = min(end, len(main))
        for k, g in enumerate(groups):
            pos = start + (k * (end - start)) // n
            at[pos].append(g)
    out = []
    for m, gs in zip(main, at):
        out.append(m)
        for g in gs:
            out += g
    return out


def dma_groups(seq):
    groups, cur = [], []
    for x in seq:
        cur.append(x)
        if x.kind == "vmem":
            groups.append(cur)
            cur = []
    if cur:
        groups[-1] += cur
    return groups


class Stream:
    def __init__(self, items=(), every=1, rate=None, ooo=0):
        self.q = list(items)
        self.ooo = ooo
        self.every = every
        self.last = -10 ** 9
        self.rate = rate
        self.credit = 0.0

    def add(self, items):
        self.q += list(items)

    def __len__(self):
        return len(self.q)


def is_scalar(x):
    return x.kind in ("salu", "wait", "pwait", "nop", "barrier", "branch", "label")


class Block:
    kind = "block"
    cost = 0
    tag = None
    def __init__(self, items): self.items = list(items)


class Sched:
    def __init__(self, out, units=2, ds=1, scal=1):
        self.out = out
        self.g = 0
        self.lock = None
        self.units = units
        self.ds = ds
        self.scal = scal

    def gap(self, streams, on_emit=None):
        out = self.out
        emit = []
        m0 = False
        nsc = 0
        for s in streams:
            while s.q and nsc < self.scal:
                if s.q[0].kind == "block":
                    b = s.q.pop(0)
                    emit += b.items
                    nsc += len(b.items)
                elif is_scalar(s.q[0]):
                    x = s.q.pop(0)
                    assert not (x.kind == "salu" and x.op.startswith("s_cmp")), "put s_cmp pairs into a Block"
                    emit.append(x)
                    nsc += 1
                else:
                    break
        m0 = bool(emit) and emit[-1].kind == "salu" and "m0" in emit[-1].w
        units, ds, vm = self.units - max(0, nsc - 1), self.ds, 1
        nfront = len(emit)
        valu_seen = False
        for s in streams:
            if s.rate is not None:
                s.credit = min(s.credit + s.rate, 2.0)
            while s.q and not is_scalar(s.q[0]) and s.q[0].kind != "block":
                x = s.q[0]
                c = 2 if x.kind == "trans" else 1
                if c > units or (x.kind == "ds" and not ds):
                    break
                if x.kind in ("ds", "vmem") and valu_seen:
                    break
                if s.rate is not None and s.credit < 1.0 - 1e-9:
                    break
                if x.kind == "vmem":
                    if not vm or self.g - s.last < s.every:
                        break
                    if m0 and getattr(x, "lds_dma", False) and len(emit) == nfront:
                        break
                    vm = 0
                    s.last = self.g
                if x.kind == "ds":
                    ds -= 1
                if x.kind in ("valu", "trans", "perm"):
                    if x.kind == "valu" and emit and emit[-1].kind == "trans" and (emit[-1].w & x.r):
                        break
                    valu_seen = True
                s.q.pop(0)
                emit.append(x)
                units -= c
                if s.rate is not None:
                    s.credit -= 1.0
        for s in streams:
            k = 1
            while units > 0 and s.ooo and k < min(s.ooo, len(s.q)):
                x = s.q[k]
                skipped = s.q[:k]
                if any(y.kind not in ("valu", "trans", "vmem", "salu") for y in skipped):
                    break
                last = emit[-1] if emit else None
                if (x.kind == "valu" or (x.kind == "trans" and units >= 2)) and not any((y.w & (x.r | x.w)) or (y.r & x.w) for y in skipped) \
                        and not (last is not None and last.kind == "trans" and last.w & x.r):
                    emit.append(s.q.pop(k))
                    units -= 2 if x.kind == "trans" else 1
                else:
                    k += 1
        for x in emit:
            out.append(x)
            if on_emit:
                on_emit(x)
        self.g += 1

    def run(self, main, streams, flush=()):
        for m in main:
            self.out.append(m)
            self.gap(streams)
        for s in flush:
            self.flush(s)

    def flush(self, s):
        prev_m0 = False
        for x in s.q:
            if x.kind == "block":
                self.out += x.items
                continue
            if prev_m0 and getattr(x, "lds_dma", False):
                self.out.append(Ins("s_nop 0"))
            self.out.append(x)
            prev_m0 = x.kind == "salu" and "m0" in x.w
        s.q = []
        if self.lock is s:
            self.lock = None


def check_scc(seq, name=""):
    probs = []
    NOSCC = ("s_mov", "s_movk", "s_mul_i32", "s_cselect", "s_nop", "s_waitcnt", "s_barrier", "s_sleep", "s_setprio", "s_getreg", "s_mul_hi")
    last = None
    for x in seq:
        if x.kind == "label":
            last = None
            continue
        op = getattr(x, "op", "")
        if op.startswith("s_cselect") or op.startswith("s_cbranch_scc") or op.startswith("s_addc"):
            ok = last is not None and (last.op.startswith("s_cmp") or last.op.startswith("s_bitcmp") or
                                       (op.startswith("s_addc") and last.op == "s_add_u32") or
                                       (op.startswith("s_cbranch") and last.op == "s_sub_u32" and "L_end" in x.text))
            if not ok:
                probs.append(f"{name}: scc consumer {x.text} after {last.text if last else None}")
        if x.kind == "salu" and not op.startswith(NOSCC):
            last = x
    return probs


def pkify(seq):
    def parse(x):
        if x.kind != "valu" or x.op not in ("v_mul_f32", "v_add_f32"):
            return None
        o = [t.strip() for t in x.text.split(None, 1)[1].split(",")]
        return x.op, o
    def num(t):
        m = re.fullmatch(r"v(\d+)", t)
        return int(m.group(1)) if m else None
    out, i = [], 0
    while i < len(seq):
        a = parse(seq[i]) if i + 1 < len(seq) else None
        b = parse(seq[i + 1]) if a else None
        done = False
        if a and b and a[0] == b[0]:
            d0, d1 = num(a[1][0]), num(b[1][0])
            if d0 is not None and d0 % 2 == 0 and d1 == d0 + 1 and not (seq[i].w & seq[i + 1].r):
                srcs, sel, selhi = [], [], []
                for p, q in zip(a[1][1:], b[1][1:]):
                    n0, n1 = num(p), num(q)
                    if n0 is not None and n1 == n0 + 1 and n0 % 2 == 0:
                        srcs.append(f"v[{n0}:{n1}]"); sel.append(0); selhi.append(1)
                    elif p == q and n0 is not None:
                        e = n0 & ~1
                        srcs.append(f"v[{e}:{e+1}]"); sel.append(n0 & 1); selhi.append(n0 & 1)
                    elif p == q and re.fullmatch(r"s\d+", p) and int(p[1:]) % 2 == 0:
                        srcs.append(f"s[{p[1:]}:{int(p[1:])+1}]"); sel.append(0); selhi.append(0)
                    elif p == q and p in ("1.0", "2.0", "0.5"):
                        srcs.append(p); sel.append(0); selhi.append(0)
                    else:
                        srcs = None
                        break
                if srcs:
                    op = a[0].replace("v_", "v_pk_")
                    out.append(Ins(f"{op} v[{d0}:{d1}], {srcs[0]}, {srcs[1]} op_sel:[{sel[0]},{sel[1]}] op_sel_hi:[{selhi[0]},{selhi[1]}]"))
                    i += 2
                    done = True
        if not done:
            out.append(seq[i])
            i += 1
    return out


def fix_trans(seq):
    seq = list(seq)
    i = 0
    while i + 1 < len(seq):
        a, b = seq[i], seq[i + 1]
        if a.kind == "trans" and b.kind in ("valu", "perm") and (a.w & b.r):
            moved = False
            for k in range(i + 2, min(i + 8, len(seq))):
                x = seq[k]
                if x.kind not in ("valu", "trans"):
                    break
                between = seq[i + 1:k]
                if not (a.w & x.r) and not any((y.w & (x.r | x.w)) or (y.r & x.w) for y in between):
                    seq.insert(i + 1, seq.pop(k))
                    moved = True
                    break
            if not moved:
                seq.insert(i + 1, Ins("s_nop 0"))
        i += 1
    return seq
```

```python
import sys, os, math, struct
sys.path.insert(0, os.path.dirname(os.path.abspath(__file__)))
from asmlib import *

NAME = "gated_mix__sliding_local_dilated__swiglu_ffn__prompt"
CFG = dict(ROT=2, P1=4, STAMP=0, PUB=3, PF=4, PAD=0, CYC=0, SET=0, G=3, GI=2, RX=0, RH=0, PRE=1, OSC=0, EV1=3, EV2=2, EVQ=4, PUBD=24)
for a in sys.argv[2:]:
    k, v = a.split("=")
    CFG[k] = int(v)
ROT, P1 = CFG["ROT"], CFG["P1"]

def f2u(x):
    return struct.unpack("<I", struct.pack("<f", x))[0]

S, D, F = 2048, 448, 1792
X_BYTES = S * D * 2
WQKV_BYTES = D * 3 * D * 2
WO_BYTES = D * D * 2
WG_BYTES = D * F * 2
NK = 72
A_OFF = 131072
A_BYTES = 128 * NK * 1024
MISC_BYTES = 131072
FLAG_OFF = 81920
OOB = 0x40000000
MASTER = 240

sWV = "s3"
SRD_X, SRD_W, SRD_A, SRD_O, SRD_W2, SRD_WO, SRD_M, SRD_D = 28, 32, 36, 40, 44, 48, 52, 96
def srd(n): return f"s[{n}:{n+3}]"
sK = [f"s{56+i}" for i in range(7)]
sROW0, sC, sT0, sT1, sT2, sT3 = "s63", "s64", "s65", "s66", "s67", "s68"
sM0W, sM0X, sSOFF, sAST, sNL2E = "s69", "s70", "s71", "s73", "s72"
sXROW = [f"s{74+i}" for i in range(5)]
sJ = "s79"
mODD, mC0, mC1, mC0F, mC1F, mG3 = "s[80:81]", "s[82:83]", "s[84:85]", "s[86:87]", "s[88:89]", "s[90:91]"
sSCL, sQB, sN2, sRB = "s92", "s93", "s94", "s95"
sRT, sNT, sAO, sCW, sCA, sM02 = "s74", "s75", "s76", "s77", "s78", "s79"

def vq(n, k=4): return f"v[{n}:{n+k-1}]"
def aq(n, k=4): return f"a[{n}:{n+k-1}]"
def rq(r, k=4): return f"{r[0]}[{r[1]}:{r[1]+k-1}]"

def mksrd(n, lo, size):
    return [I(f"s_mov_b32 s{n}, s{lo}"), I(f"s_mov_b32 s{n+1}, s{lo+1}"),
            I(f"s_mov_b32 s{n+2}, {size}"), I(f"s_mov_b32 s{n+3}, 0x20000")]

def srd_a():
    return [I(f"s_add_u32 s{SRD_A}, s24, {A_OFF}"), I(f"s_addc_u32 s{SRD_A+1}, s25, 0"),
            I(f"s_mov_b32 s{SRD_A+2}, {A_BYTES}"), I(f"s_mov_b32 s{SRD_A+3}, 0x20000")]

def mfma32(d, a, b, first):
    return I(f"v_mfma_f32_32x32x16_bf16 {d}, {a}, {b}, {'0' if first else d}")

def mfma(d, a, b, first):
    return I(f"v_mfma_f32_16x16x32_bf16 {d}, {a}, {b}, {'0' if first else d}")

class Stamps:
    def __init__(self, regs): self.regs = regs; self.n = 0
    def __call__(self, sets=(0,)):
        if not CFG["STAMP"] or not (sets is True or CFG["SET"] in sets): return []
        r = self.regs[self.n]; self.n += 1
        op = "s_memtime" if CFG["CYC"] else "s_memrealtime"
        return [I(f"{op} s[100:101]"), I("s_waitcnt lgkmcnt(0)"), I(f"s_mov_b32 s{r}, s100")]
    def dump(self, base, vtmp):
        if not CFG["STAMP"]: return []
        L = [I("s_waitcnt vmcnt(0)")] + self(True)
        L += [I(f"v_mov_b32 v{vtmp}, 0")]
        for k in range(self.n): L.append(I(f"v_writelane_b32 v{vtmp}, s{self.regs[k]}, {k}"))
        L += [I("s_lshl_b32 s26, s2, 6"), I(f"s_add_u32 s26, s26, {base}"), I(f"s_cmp_eq_u32 {sWV}, 0"), I(f"s_cselect_b32 s26, s26, {OOB}"),
              I(f"v_lshlrev_b32 v{vtmp+1}, 2, v0"), I("v_cmp_gt_u32 vcc, 16, v0"), I("s_nop 4"), I("s_and_saveexec_b64 s[10:11], vcc"),
              I(f"buffer_store_dword v{vtmp}, v{vtmp+1}, {srd(SRD_M)}, s26 offen")]
        if CFG["STAMP"] == 2:
            L += [I("s_cmp_eq_u32 s2, 0"), I(f"s_cselect_b32 s26, 8, {OOB}"), I(f"s_cmp_eq_u32 {sWV}, 0"), I(f"s_cselect_b32 s26, s26, {OOB}"),
                  I(f"buffer_store_dword v{vtmp}, v{vtmp+1}, {srd(SRD_D)}, s26 offen")]
        return L

def sk_next(s):
    return [I(f"s_add_u32 {sK[s]}, {sK[s-1]}, 128"), I(f"s_cmp_eq_u32 {sK[s]}, 896"),
            I(f"s_cselect_b32 {sK[s]}, 0, {sK[s]}")]

def rot_small(a, b):
    G, GI, RX, RH = CFG["G"], CFG["GI"], CFG["RX"], CFG["RH"]
    L = [I(f"s_add_u32 s27, {a}, {b}")] if b else [I(f"s_mov_b32 s27, {a}")]
    if G == 1: L = [I("s_mov_b32 s27, 0")]
    elif G == 2: L += [I("s_and_b32 s27, s27, 1")]
    elif G == 3: L += [I("s_mul_i32 s11, s27, 43"), I("s_lshr_b32 s11, s11, 7"), I("s_mul_i32 s11, s11, 3"), I("s_sub_u32 s27, s27, s11")]
    if G > 1 and GI != 1: L += [I(f"s_mul_i32 s27, s27, {GI}")]
    if RX: L += [I("s_and_b32 s11, s2, 3"), I(f"s_mul_i32 s11, s11, {RX}"), I("s_add_u32 s27, s27, s11")]
    if RH: L += [I("s_bfe_u32 s11, s2, 0x10002"), I(f"s_mul_i32 s11, s11, {RH}"), I("s_add_u32 s27, s27, s11")]
    if G == 7 or RX or RH:
        L += [I("s_mul_i32 s11, s27, 147"), I("s_lshr_b32 s11, s11, 10"), I("s_mul_i32 s11, s11, 7"), I("s_sub_u32 s27, s27, s11")]
    L += [I(f"s_lshl_b32 {sK[0]}, s27, 7")]
    return L

def direct(seq):
    o = []
    Sched(o).flush(Stream(seq))
    return o

def publish(tag, vrdy, vone, scnt, st="st"):
    return [Wait(vm=[st, "rdy"]), I(f"v_readfirstlane_b32 s10, v{vrdy}"), I(f"v_mov_b32 v{vone}, 1")] + spin_init() + [I("s_nop 0"),
            I("s_cmp_eq_u32 s10, 0"), I(f"s_cbranch_scc1 L_slow_{tag}"), I(f"L_back_{tag}:"),
            I("s_mov_b64 exec, 1"),
            I(f"buffer_atomic_add v{vone}, off, {srd(SRD_M)}, {scnt} sc1", "pub"),
            I("s_mov_b64 exec, -1")]

SPIN = "s11"
def spin_init(): return [I(f"s_mov_b32 {SPIN}, 0x100000")]
def spin_step(): return [I(f"s_sub_u32 {SPIN}, {SPIN}, 1"), I("s_cbranch_scc1 L_end")]

def slow(tag, vrdy):
    return [I(f"L_slow_{tag}:")] + spin_step() + [I(f"buffer_load_dword v{vrdy}, off, {srd(SRD_D)}, 0 sc1"), I("s_waitcnt vmcnt(0)"),
            I(f"v_readfirstlane_b32 s10, v{vrdy}"), I("s_nop 3"), I("s_cmp_eq_u32 s10, 0"), I(f"s_cbranch_scc1 L_slow_{tag}"),
            I(f"s_branch L_back_{tag}")]

def prologue():
    L = [I("s_cmp_ge_u32 s2, 256"), I("s_cbranch_scc1 L_end"),
         I("s_load_dwordx4 s[4:7], s[0:1], 0", "ka"), I("s_load_dwordx8 s[12:19], s[0:1], 32", "ka"),
         I("s_load_dwordx2 s[8:9], s[0:1], 16", "ka"), I("s_load_dwordx4 s[20:23], s[0:1], 64", "ka"),
         I("s_load_dwordx2 s[24:25], s[0:1], 80", "ka")]
    L += [I("v_lshrrev_b32 v1, 6, v0"), I("v_and_b32 v0, 63, v0"),
          I("s_and_b32 s10, s2, 3"),
          I("v_readfirstlane_b32 s3, v1"),
          I("s_lshr_b32 s11, s2, 3"),
          I("s_bitcmp1_b32 s2, 2"),
          I("s_cbranch_scc1 L_halfB"),
          I(f"s_mul_i32 {sN2}, s10, 21"), I(f"s_add_u32 {sN2}, {sN2}, s11"),
          I(f"s_mul_i32 {sC}, {sN2}, 43"), I(f"s_lshr_b32 {sC}, {sC}, 8"),
          I(f"s_mul_i32 s27, {sC}, 6"), I(f"s_sub_u32 {sRB}, {sN2}, s27"),
          I("s_cmp_lt_u32 s11, 21"), I("s_cbranch_scc1 L_ffn"),
          I(f"s_sub_u32 {sQB}, s11, 21"), I(f"s_cmp_lt_u32 {sQB}, 9"), I("s_cbranch_scc1 L_qkv"),
          I("s_branch L_idle"),
          I("L_halfB:"),
          I("s_mul_i32 s26, s10, 49"), I("s_add_u32 s26, s26, 1"), I("s_lshr_b32 s26, s26, 1"),
          I("s_add_u32 s26, s26, s11"), I(f"s_add_u32 {sN2}, s26, 84"),
          I(f"s_mul_i32 {sC}, s26, 147"), I(f"s_lshr_b32 {sC}, {sC}, 10"),
          I(f"s_mul_i32 s27, {sC}, 7"), I("s_sub_u32 s26, s26, s27"), I(f"s_add_u32 {sRB}, s26, 6"),
          I(f"s_sub_u32 {sQB}, s11, 16"), I("s_cmp_ge_u32 s11, 25"), I("s_cbranch_scc1 L_qkv"),
          I("s_and_b32 s27, s10, 1"), I("s_sub_u32 s27, 25, s27"),
          I("s_cmp_ge_u32 s11, s27"), I("s_cbranch_scc1 L_idle")]
    return L

def idle():
    L = [I("L_idle:"), I("v_lshlrev_b32 v1, 7, v0"), I("s_waitcnt lgkmcnt(0)"),
         I(f"s_cmp_lg_u32 s2, {MASTER}"), I("s_cbranch_scc1 L_pre"), I(f"s_cmp_lg_u32 {sWV}, 0"), I("s_cbranch_scc1 L_pre"),
         I("v_mov_b32 v2, 0"), I("v_mov_b32 v3, 1")] + mksrd(SRD_M, 24, MISC_BYTES) + mksrd(SRD_D, 22, 256)
    L += [x for k in range(5) for x in (I(f"s_mov_b32 s26, {FLAG_OFF + 8192*k}"), I(f"buffer_store_dword v2, v1, {srd(SRD_M)}, s26 offen sc1"))]
    L += [I("s_waitcnt vmcnt(0)"), I("s_mov_b64 exec, 1"), I(f"buffer_store_dword v3, off, {srd(SRD_D)}, 0 sc1"), I("s_mov_b64 exec, -1"),
          I("L_pre:")]
    if CFG["PRE"]:
        L += [I("s_sub_u32 s26, s11, 30"), I("s_lshl_b32 s26, s26, 2"), I("s_add_u32 s26, s26, s10"),
              I("s_lshr_b32 s27, s10, 1"), I("s_add_u32 s27, s27, 8"), I("s_bitcmp1_b32 s2, 2"), I("s_cselect_b32 s26, s27, s26"),
              I("s_lshl_b32 s26, s26, 2"), I(f"s_add_u32 s26, s26, {sWV}"), I("s_lshl_b32 s26, s26, 13")]
        L += mksrd(SRD_W2, 16, WG_BYTES) + mksrd(SRD_WO, 8, WO_BYTES)
        for k in range(7):
            if k == 2: L += [I(f"s_sub_u32 s26, s26, {2*327680}")]
            L += [I(f"buffer_load_dword v{4+k}, v1, {srd(SRD_WO if k < 2 else SRD_W2)}, s26 offen"), I("s_add_u32 s26, s26, 327680")]
        L += [I("s_waitcnt vmcnt(0)")]
    return L

P1 = 4
FW_RING, FW_R = 0, 4
FX_RING = 65536
FX_SLOT = P1 * 2048
FX2 = 102400
NT2 = 10 - P1
assert FX_RING + 3 * FX_SLOT <= 98304 and FX2 + 4 * 14336 <= 163840
SL2 = 6
RED = 98304
FL_LATE, FL_O = 104 * 128, 208 * 128

def ffn():
    ST = Stamps(list(range(80, 93)) + [4, 5, 6])
    vWd = [1, 2, 3, 4]; vXd = [5, 6]; vX2d = 8; vWr = [9, 10]; vXr = [11, 12, 13, 14]; vAst = 21
    vT = [16, 17, 18, 19]; vRdy = 20; vOne = 7; vHi = 22
    XB = 24
    ACC = 72; NSL = 3
    v2d = [176, 177, 178, 179]; v2r = [180, 181, 182, 183]
    W2V = 184
    sODD, sCE, sCL, sDX = "s93", "s26", "s27", "s68"
    def acc(T, ct): return ACC + (T % NSL) * 32 + ct * 16
    def wfr(k, ct): return (k * 2 + ct) * 4
    L = [I("L_ffn:")] + ST(True)
    if CFG["PAD"]: L += [I("s_memrealtime s[80:81]")]
    L += [I(f"s_mul_i32 {sROW0}, {sRB}, 160"), I(f"s_and_b32 {sODD}, {sC}, 1")]
    L += rot_small(sRB, sC)
    r4, p16, r8, p8 = 16, 17, 18, 19
    L += [I(f"v_lshrrev_b32 v{r4}, 4, v0"), I(f"v_and_b32 v{p16}, 15, v0"),
          I(f"v_lshrrev_b32 v{r8}, 3, v0"), I(f"v_and_b32 v{p8}, 7, v0"),
          I(f"s_and_b32 s10, {sWV}, 1"), I("s_mul_i32 s11, s10, 57344"),
          I(f"s_lshl_b32 s27, {sC}, 8"), I("s_add_u32 s11, s11, s27"),
          I("s_movk_i32 s27, 3584"), I(f"v_mul_u32_u24 v20, s27, v{r4}"), I("v_add_u32 v20, s11, v20"),
          I(f"v_lshlrev_b32 v21, 2, v{r4}"), I(f"v_xor_b32 v21, v21, v{p16}"),
          I(f"s_and_b32 s11, {sWV}, 2"), I("v_xor_b32 v21, s11, v21"),
          I(f"v_lshl_add_u32 v{vWd[0]}, v21, 4, v20")]
    for i in range(1, 4): L += [I(f"v_add_u32 v{vWd[i]}, {4*3584-1024}, v{vWd[i-1]}")]
    L += [I(f"s_lshl_b32 {sM0W}, {sWV}, 12"),
          I(f"s_lshr_b32 s11, {sWV}, 1"), I("s_sub_u32 s27, 4, s11"), I(f"s_cmp_eq_u32 {sODD}, 0"), I("s_cselect_b32 s11, s11, s27"),
          I("s_lshl_b32 s11, s11, 1"), I("s_add_u32 s11, s11, s10"), I("s_lshl_b32 s11, s11, 4"),
          I(f"s_add_u32 s11, s11, {sROW0}"), I("s_mul_i32 s11, s11, 896"),
          I(f"s_lshl_b32 {sM0X}, {sWV}, 11"), I(f"s_add_u32 {sM0X}, {sM0X}, {FX_RING}"),
          I("s_movk_i32 s27, 896"),
          I(f"v_mul_u32_u24 v20, s27, v{r8}"),
          I(f"v_xor_b32 v21, v{r4}, v{p8}"),
          I(f"v_lshl_add_u32 v22, v21, 4, v20"),
          I(f"v_add_u32 v{vXd[0]}, s11, v22"), I("v_xor_b32 v23, 64, v22"),
          I(f"s_add_u32 s11, s11, {8*896-1024}"), I(f"v_add_u32 v{vXd[1]}, s11, v23")]
    L += [Wait(lgkm="all")]
    L += [I(f"s_cmp_lt_u32 {sWV}, 2"), I(f"s_cselect_b32 s{SRD_W}, s12, s14"), I(f"s_cselect_b32 s{SRD_W+1}, s13, s15"),
          I(f"s_mov_b32 s{SRD_W+2}, {WG_BYTES}"), I(f"s_mov_b32 s{SRD_W+3}, 0x20000")]

    def dmaW(u):
        s, e = divmod(u, 2)
        r = [I(f"s_add_u32 m0, {sM0W}, {FW_RING + (u % FW_R) * 16384}"), I(f"s_mul_i32 {sSOFF}, {sK[s]}, 1792")]
        if e: r += [I(f"s_add_u32 {sSOFF}, {sSOFF}, 114688")]
        for i in range(4):
            r.append(I(f"buffer_load_dwordx4 v{vWd[i]}, {srd(SRD_W)}, {sSOFF} offen offset:{1024*i} lds", f"W{u}"))
        return r
    def dmaX(s):
        r = [I(f"s_add_u32 m0, {sM0X}, {(s % 3) * FX_SLOT}")]
        for i in range(2):
            r.append(I(f"buffer_load_dwordx4 v{vXd[i]}, {srd(SRD_X)}, {sK[s]} offen offset:{1024*i} lds", f"X{s}"))
        return r
    def dmaX2(p):
        r = [I(f"s_add_u32 m0, {sT1}, {FX2 + (p % 2) * 28672}")]
        if p: r += [I(f"v_add_u32 v{vX2d}, {sDX}, v{vX2d}")]
        for s in range(7):
            r += [I(f"buffer_load_dwordx4 v{vX2d}, {srd(SRD_X)}, {sK[s]} offen lds", f"X2_{p}")]
            if s < 6: r += [I("s_add_u32 m0, m0, 4096")]
        return r
    L += dmaW(0) + mksrd(SRD_X, 4, X_BYTES) + direct(dmaX(0)) + dmaW(1)
    L += sk_next(1)
    L += dmaW(2) + direct(dmaX(1))
    for s in range(2, 7): L += sk_next(s)
    L += srd_a() + mksrd(SRD_M, 24, MISC_BYTES) + mksrd(SRD_D, 22, 256)
    L += [I(f"s_mov_b32 {sNL2E}, {hex(f2u(-math.log2(math.e)))}"),
          I(f"s_and_b32 s11, {sWV}, 1"), I("s_lshl_b32 s27, s11, 6"), I("v_xor_b32 v23, s27, v22"),
          I(f"s_lshl_b32 s10, {sWV}, 3"), I(f"s_add_u32 s10, s10, {sROW0}"), I("s_add_u32 s10, s10, 64"), I("s_mul_i32 s10, s10, 896"),
          I(f"v_add_u32 v{vX2d}, s10, v23"), I(f"s_lshl_b32 {sT1}, {sWV}, 10"),
          I(f"s_mul_i32 s10, {sODD}, {64*896}"), I(f"s_sub_u32 {sDX}, {32*896}, s10"),
          I(f"s_lshl_b32 s10, {sODD}, 7"), I(f"s_add_u32 s10, s10, {sROW0}"),
          I(f"s_lshr_b32 s10, s10, 4"), I(f"s_mul_i32 s10, s10, {NK}"), I(f"s_lshl_b32 s11, {sC}, 2"),
          I("s_add_u32 s10, s10, s11"), I(f"s_add_u32 s10, s10, {sWV}"), I(f"s_lshl_b32 {sAST}, s10, 10"),
          I(f"s_mul_i32 s10, {sODD}, {4*NK*1024}"), I(f"s_sub_u32 {sT2}, {2*NK*1024}, s10"),
          I("v_lshlrev_b32 v15, 4, v0"),
          I(f"v_and_b32 v24, 1, v{r4}"), I(f"v_lshrrev_b32 v25, 5, v0"),
          I(f"s_mov_b32 s10, {NK*1024}"), I(f"v_mul_u32_u24 v20, s10, v24"), I(f"v_lshl_add_u32 v20, v25, 8, v20"),
          I(f"v_lshl_add_u32 v26, v{p16}, 4, v20"),
          I("v_bfe_u32 v20, v0, 2, 2"), I("v_lshl_add_u32 v27, v25, 3, v20"),
          I("v_lshl_add_u32 v20, v20, 1, v24"),
          I(f"s_lshl_b32 s10, {sWV}, 1"), I("v_xor_b32 v20, s10, v20"), I("v_lshlrev_b32 v20, 5, v20"),
          I("v_lshl_add_u32 v20, v27, 8, v20"), I("v_lshl_add_u32 v20, v24, 13, v20"),
          I("v_and_b32 v27, 3, v0"), I(f"v_lshl_add_u32 v{vWr[0]}, v27, 3, v20"), I(f"v_xor_b32 v{vWr[1]}, 32, v{vWr[0]}"),
          I("v_bfe_u32 v20, v0, 1, 3"), I("v_xor_b32 v20, v20, v25"), I("v_lshlrev_b32 v20, 4, v20"),
          I("v_and_b32 v27, 31, v0"), I("v_lshl_add_u32 v20, v27, 7, v20"), I(f"v_add_u32 v{vXr[0]}, {FX_RING}, v20")]
    for j in range(1, 4): L += [I(f"v_xor_b32 v{vXr[j]}, {32*j}, v{vXr[0]}")]
    L += [I(f"s_mul_i32 {sRT}, {sN2}, 147"), I(f"s_lshr_b32 {sRT}, {sRT}, 10"),
          I(f"s_mul_i32 s10, {sRT}, 7"), I(f"s_sub_u32 {sNT}, {sN2}, s10"),
          I("s_movk_i32 s27, 896"), I(f"v_mul_u32_u24 v20, s27, v{r8}"),
          I(f"v_and_b32 v21, 6, v{r8}"), I(f"v_xor_b32 v21, v21, v{p8}"),
          I(f"v_lshl_add_u32 v20, v21, 4, v20"),
          I(f"s_lshl_b32 s10, {sNT}, 7"), I(f"v_add_u32 v{v2d[0]}, s10, v20")]
    for i in range(1, 4): L += [I(f"v_add_u32 v{v2d[i]}, {8*896-1024}, v{v2d[i-1]}")]
    L += [I(f"s_mul_i32 {sM02}, {sWV}, {SL2*4096}"),
          I("v_lshrrev_b32 v20, 2, v0"), I("v_bfe_u32 v21, v0, 3, 2"), I(f"v_xor_b32 v21, {sWV}, v21"),
          I("v_lshlrev_b32 v21, 5, v21"), I("v_lshl_add_u32 v21, v20, 7, v21"),
          I("v_and_b32 v20, 3, v0"), I("v_lshl_add_u32 v21, v20, 3, v21"),
          I(f"v_add_u32 v{v2r[0]}, {sM02}, v21")]
    for t in range(1, 4): L += [I(f"v_xor_b32 v{v2r[t]}, {32*t}, v{v2r[0]}")]
    L += [I(f"v_mov_b32 v{vAst}, v26"), I(f"v_lshlrev_b32 v{vHi}, 10, v25")]
    L += mksrd(SRD_W2, 16, WG_BYTES) + mksrd(SRD_WO, 8, WO_BYTES) + mksrd(SRD_O, 20, X_BYTES)
    sPAR, sR0 = "s12", "s13"
    sWb, sAb = ["s14", "s15"], ["s18", "s19"]
    L += [I(f"s_and_b32 {sPAR}, {sRT}, 1"), I(f"s_bfe_u32 s10, {sRT}, 0x10001"), I("s_mul_i32 s10, s10, 3"),
          I(f"s_add_u32 {sR0}, {sNT}, s10"), I(f"s_sub_u32 s10, {sR0}, 7"), I(f"s_cmp_ge_u32 {sR0}, 7"), I(f"s_cselect_b32 {sR0}, s10, {sR0}"),
          I(f"s_mul_i32 s10, {sWV}, {32*896}"), I(f"s_mul_i32 s11, {sPAR}, {128*896}"),
          I(f"s_add_u32 {sWb[0]}, s10, s11"), I(f"s_sub_u32 s10, s10, s11"), I(f"s_add_u32 {sWb[1]}, s10, {128*896}"),
          I(f"s_mul_i32 {sAO}, {sRT}, {5*NK*1024}"), I(f"s_lshl_b32 s10, {sWV}, 10"), I(f"s_add_u32 {sAO}, {sAO}, s10"),
          I(f"s_lshl_b32 s11, {sPAR}, 12"), I(f"s_add_u32 {sAb[0]}, {sAO}, s11"), I(f"s_sub_u32 s10, {sAO}, s11"), I(f"s_add_u32 {sAb[1]}, s10, 4096"),
          I(f"s_mul_i32 {sCW}, {sR0}, {256*896}"), I(f"s_lshl_b32 {sCA}, {sR0}, 13"),
          I(f"s_lshl_b32 s10, {sRB}, 3"), I(f"s_add_u32 s10, s10, {sWV}"), I(f"s_lshl_b32 s11, {sODD}, 2"),
          I(f"s_add_u32 {sCE}, s10, s11"), I(f"s_lshl_b32 {sCE}, {sCE}, 7"), I(f"s_add_u32 {sCE}, {sCE}, {FLAG_OFF}"),
          I(f"s_xor_b32 {sCL}, {sCE}, 512"), I(f"s_add_u32 {sCL}, {sCL}, {FL_LATE}"),
          I(f"s_lshl_b32 s10, {sRT}, 2"), I(f"s_add_u32 s10, s10, {sWV}"), I("s_lshl_b32 s10, s10, 7"), I(f"s_add_u32 {sN2}, s10, {FLAG_OFF}")]
    sFE = sN2

    def readsW(u):
        return [I(f"ds_read_b64_tr_b16 {aq(wfr(2*u+e, ct)+2*h, 2)}, v{vWr[ct]} offset:{FW_RING + (u%FW_R)*16384 + e*4096 + h*1024}", f"r{u}")
                for e in range(2) for ct in range(2) for h in range(2)]
    def xb1(u, e, T): return XB + (4 + (u % 2) * 4 + e * 2 + T) * 4
    def readsX(u):
        s, e1 = divmod(u, 2)
        return [I(f"ds_read_b128 {vq(xb1(u, e, T))}, v{vXr[2*e1+e]} offset:{(s%3)*FX_SLOT + T*4096}", f"r{u}") for e in range(2) for T in range(2)]
    def mm1(u):
        return [mfma32(vq(acc(T, ct), 16), aq(wfr(2*u+e, ct)), vq(xb1(u, e, T)), u == 0 and e == 0)
                for e in range(2) for T in range(2) for ct in range(2)]
    SC = Sched(L, units=6, ds=2, scal=3)
    dm = Stream(every=1)
    for u in range(14):
        L += [Wait(vm=[f"W{u}", f"X{u//2}"], lgkm="all"), I("s_barrier")]
        L += ST((0, 1) if u in (0, 7) else (1,))
        if u == 0:
            L += readsX(0) + readsW(0) + dmaW(3) + direct(dmaX(2))
            continue
        if u + 3 < 14: dm.add(dmaW(u + 3))
        if u % 2 == 0 and u // 2 + 2 < 7: dm.add(dmaX(u // 2 + 2))
        if u == 11: dm.add(dmaX2(0) + dmaX2(1) + [I(f"buffer_load_dword v{vRdy}, off, {srd(SRD_D)}, 0 sc1", "rdy")])
        rd = Stream(readsX(u) + readsW(u))
        SC.run(mm1(u - 1), [dm, rd], flush=[rd] + ([dm] if u < 11 or u == 13 else []))
    NF2 = 84
    def rd2(n):
        T, k = divmod(n, 28); s, j = divmod(k, 4)
        return I(f"ds_read_b128 {vq(XB + (n % 12)*4)}, v{vXr[j]} offset:{(T % 2)*28672 + s*4096}", f"q{n//4}")
    ORD = [14, 15, 16, 17] + list(range(14))
    def slot2(q): return ORD.index(q) % SL2
    def w2(q, t): return ("a", (q * 4 + t) * 4) if q < 16 else ("v", W2V + ((q - 16) * 4 + t) * 4)
    def dmaW2(q):
        r = [I(f"s_add_u32 m0, {sM02}, {slot2(q) * 4096}")]
        if q == 14: r += [I(f"s_mul_i32 {sSOFF}, {sWV}, {4*28*896}")]
        elif q > 14: r += [I(f"s_add_u32 {sSOFF}, {sSOFF}, {28*896}")]
        else:
            if q: r += [I(f"s_add_u32 {sCW}, {sCW}, {256*896}"), Block([I(f"s_cmp_eq_u32 {sCW}, {7*256*896}"), I(f"s_cselect_b32 {sCW}, 0, {sCW}")])]
            r += [I(f"s_add_u32 {sSOFF}, {sCW}, {sWb[q >= 7]}")]
        for i in range(4):
            r.append(I(f"buffer_load_dwordx4 v{v2d[i]}, {srd(SRD_W2 if q < 14 else SRD_WO)}, {sSOFF} offen offset:{1024*i} lds", f"V{q}"))
        return r
    def rdW2(q):
        r = []
        for t in range(4):
            k, n = w2(q, t)
            for h in range(2):
                r.append(I(f"ds_read_b64_tr_b16 {k}[{n+2*h}:{n+2*h+1}], v{v2r[t]} offset:{slot2(q)*4096 + h*(2048 if q >= 14 else 1024)}", f"w{q}"))
        return r
    L += [Wait(vm="X2_0", lgkm="all"), I("s_barrier")] + ST()
    L += [I(f"v_add_u32 v{vXr[j]}, {FX2 - FX_RING}, v{vXr[j]}") for j in range(4)]
    rd = Stream([rd2(n) for n in range(8)])
    SC.run(mm1(13), [rd], flush=[rd])
    SC.ds = 2
    def epi(T):
        r = []
        for ct in range(2):
            a0 = acc(T, ct)
            for pr in range(4):
                ga = a0 + 2*pr; gb = ga + 1; ua = ga + 8; ub = ua + 1
                ta, tb = vT[2*(pr&1)], vT[2*(pr&1)+1]
                r += [I(f"v_mul_f32 v{ta}, {sNL2E}, v{ga}"), I(f"v_mul_f32 v{tb}, {sNL2E}, v{gb}"),
                      I(f"v_exp_f32 v{ta}, v{ta}"), I(f"v_exp_f32 v{tb}, v{tb}"),
                      I(f"v_mul_f32 v{ga}, v{ga}, v{ua}"), I(f"v_mul_f32 v{gb}, v{gb}, v{ub}"),
                      I(f"v_add_f32 v{ta}, 1.0, v{ta}"), I(f"v_add_f32 v{tb}, 1.0, v{tb}"),
                      I(f"v_rcp_f32 v{ta}, v{ta}"), I(f"v_rcp_f32 v{tb}, v{tb}"),
                      I(f"v_mul_f32 v{ga}, v{ga}, v{ta}"), I(f"v_mul_f32 v{gb}, v{gb}, v{tb}"),
                      I(f"v_cvt_pk_bf16_f32 v{a0 + pr}, v{ga}, v{gb}")]
            r += [I(f"buffer_store_dwordx4 {vq(a0)}, v{vAst}, {srd(SRD_A)}, {sAST} offen offset:{512*ct} sc1", f"st{T}_{ct}")]
        if T < 4: r += [I(f"s_add_u32 {sAST}, {sAST}, {sT2}")]
        return r
    for_t = {}
    bk = Stream(ooo=10)
    def add_epi(T):
        e = epi(T)
        for x in e: for_t[id(x)] = T
        bk.add(e)
    bk.add([I("s_nop 7")])
    for T in range(2): add_epi(T)
    side = Stream(every=CFG["EV2"])
    for q in (14, 15, 16, 17, 0, 1): side.add(dmaW2(q))
    late_side = []
    for k, q in enumerate((14, 15, 16, 17)):
        late_side += [Wait(vm=f"V{q}")] + rdW2(q)
        if k: late_side += [Wait(lgkm=f"w{q-1}")] + dmaW2(1 + k)
    late_side += [Wait(lgkm="w17")] + dmaW2(5)
    late_side += [I(f"v_add_u32 v{v2r[t]}, v{vHi}, v{v2r[t]}") for t in range(4)]
    state = {"pub": None}
    def seen(x):
        if x.tag == "st2_1": state["pub"] = SC.g + CFG["PUBD"]
    for b in range(21):
        if b == 5: L += [Wait(vm="X2_1"), I("s_barrier")]
        if b == 7:
            print("side at refill:", len(side))
            SC.flush(side); L += [I("s_barrier")]; side.add(dmaX2(2) + late_side); side.every = 1
        if b == 12: L += [Wait(vm="X2_2"), I("s_barrier")]
        L += [Wait(lgkm=f"q{b}")]
        reads = Stream([rd2(n) for n in range(4 * (b + 2), min(4 * (b + 3), NF2))], rate=0.5)
        reads.credit = 1.0
        for n in range(4 * b, 4 * b + 4):
            T2, k = divmod(n, 28); T = 2 + T2
            if k in (0, 14): L += ST((3,))
            if k == 0 and T == 4: print("side at last tile:", len(side))
            if k == 0 and T >= NSL:
                while any(for_t.get(id(x)) == T - NSL for x in bk.q): L.append(bk.q.pop(0))
            for ct in range(2):
                L.append(mfma32(vq(acc(T, ct), 16), aq(wfr(k, ct)), vq(XB + (n % 12) * 4), k == 0))
                SC.gap([reads, side, bk], seen)
                if state["pub"] == SC.g:
                    L += publish("h", vRdy, vOne, sCE, "st2_1") + ST(); state["pub"] = "done"
            if T == 4 and k == 1:
                side.every = 2; SC.ds = 2
                side.add([Wait(vm="V0")] + rdW2(0))
                for q in range(1, 6):
                    side.add([Wait(vm=f"V{q}")] + rdW2(q) + [Wait(lgkm=f"w{q-1}")] + dmaW2(q + 5))
                side.add([Wait(lgkm="w5")] + dmaW2(11))
            if k == 27:
                if len(bk) < 12: bk.add([I("s_nop 7"), I("s_nop 3")])
                add_epi(T)
        SC.flush(reads)
    print("side left:", len(side), "backlog after pass 2:", len(bk), "pub", state["pub"], SC.g)
    assert state["pub"] == "done"
    L += ST((0, 3))
    vF = 6
    L += [I(f"buffer_load_dword v{vF}, off, {srd(SRD_M)}, {sFE} sc1", "ef")]
    bq = fix_trans(pkify(bk.q))
    sq = direct(side.q); side.q = []
    ratio = len(sq) / max(1, len(bq) - 10)
    ac = 0.0
    for k, x in enumerate(bq):
        L.append(x)
        ac += ratio
        while ac >= 1.0 and sq:
            y = sq.pop(0); L.append(y); ac -= 1.0
            if y.kind == "salu" and y.op.startswith("s_cmp"): L.append(sq.pop(0))
    L += sq
    L += ST((0, 3))
    SC = Sched(L)
    vAl, vRw, vRr, vOut, vOf, vOu2 = 15, [1, 2, 3], 4, 5, 14, 7
    vS = [8, 9, 10, 11, 12]
    AC2 = 16
    ABUF = [216, 236, 96, 116, 136, 156]
    PF = 4
    def ab(q, T): return ABUF[q % 6] + T * 4
    def ldA(q):
        if q < 14:
            r = []
            if q: r += [I(f"s_add_u32 {sCA}, {sCA}, 8192"), Block([I(f"s_cmp_eq_u32 {sCA}, {7*8192}"), I(f"s_cselect_b32 {sCA}, 0, {sCA}")])]
            r += [I(f"s_add_u32 {sT0}, {sCA}, {sAb[q >= 7]}")]
        elif q == 14:
            r = [I(f"s_mul_i32 {sCA}, {sWV}, 3072"), I(f"s_add_u32 {sCA}, {sCA}, {sAO}"), I(f"s_add_u32 {sCA}, {sCA}, {56*1024}"),
                 I(f"s_mov_b32 {sT0}, {sCA}")]
        else: r = [I(f"s_add_u32 {sT0}, {sCA}, {(q-14)*1024}")]
        for T in range(5):
            r.append(I(f"buffer_load_dwordx4 {vq(ab(q, T))}, v{vAl}, {srd(SRD_A)}, {sT0} offen sc1", f"A{q}"))
            if T < 4: r.append(I(f"s_add_u32 {sT0}, {sT0}, {NK*1024}"))
        return r
    def mm2(q):
        return [mfma(vq(AC2 + (T*4+t)*4), rq(w2(q, t)), vq(ab(q, T)), q == 0) for T in range(5) for t in range(4)]
    def check(tag, need, name):
        return [Wait(vm=tag), I(f"v_cmp_gt_u32 vcc, {need}, v{vF}")] + spin_init() + [I(f"s_cbranch_vccnz L_poll_{name}"), I(f"L_got_{name}:")]
    def poll(name, need, ld):
        return [I(f"L_poll_{name}:")] + spin_step() + [ld, I("s_waitcnt vmcnt(0)"), I(f"v_cmp_gt_u32 vcc, {need}, v{vF}"), I("s_nop 0"),
                I(f"s_cbranch_vccnz L_poll_{name}"), I(f"s_branch L_got_{name}")]
    L += check("ef", 7, "e") + ST((0, 2))
    L += direct(ldA(0) + ldA(1) + ldA(2) + ldA(3))
    L += [Wait(vm="st4_1"), I("s_mov_b64 exec, 1"), I(f"buffer_atomic_add v{vOne}, off, {srd(SRD_M)}, {sCL} sc1", "pub"), I("s_mov_b64 exec, -1")] + ST()
    L += [I(f"s_add_u32 {sFE}, {sFE}, {FL_LATE}")]
    L += direct([Wait(vm="V7")] + rdW2(6) + rdW2(7) + [Wait(lgkm="w6")] + dmaW2(12) + [Wait(lgkm="w7")] + dmaW2(13))
    setup = [I(f"s_mul_i32 s10, {sRT}, 80"), I("s_add_u32 s11, s10, 79"), I("s_lshr_b32 s10, s10, 7"), I("s_lshr_b32 s11, s11, 7"),
             I("s_min_u32 s11, s11, 15"), I("s_lshl_b32 s10, s10, 9"), I("s_lshl_b32 s11, s11, 9"),
             I(f"v_mov_b32 v{vOf}, s11"), I(f"v_writelane_b32 v{vOf}, s10, 0"),
             I(f"s_lshl_b32 s27, {sWV}, 7"), I(f"s_add_u32 s27, s27, {FLAG_OFF + FL_O}"),
             I(f"s_mul_i32 s10, {sWV}, 15360"), I(f"s_add_u32 s10, s10, {RED}"), I(f"v_add_u32 v{vRr}, s10, v{vAl}")]
    for t in range(1, 4):
        setup += [I(f"s_xor_b32 s10, {sWV}, {t}"), I("s_mul_i32 s10, s10, 15360"), I(f"s_add_u32 s10, s10, {RED + (t-1)*5120}"),
                  I(f"v_add_u32 v{vRw[t-1]}, s10, v{vAl}")]
    setup += [I(f"s_mul_i32 s10, {sRT}, {80*896}"), I(f"s_lshl_b32 s11, {sNT}, 7"), I("s_add_u32 s10, s10, s11"),
              I(f"s_lshl_b32 s11, {sWV}, 5"), I("s_add_u32 s10, s10, s11"),
              I("v_and_b32 v13, 15, v0"), I("s_movk_i32 s11, 896"), I(f"v_mul_u32_u24 v{vOut}, s11, v13"), I(f"v_lshrrev_b32 v{vS[0]}, 4, v0"),
              I(f"v_lshl_add_u32 v{vOut}, v{vS[0]}, 3, v{vOut}"), I(f"v_add_u32 v{vOut}, s10, v{vOut}"),
              I("v_lshlrev_b32 v13, 2, v13"),
              I(f"v_and_b32 v{vS[0]}, 1, v{vS[0]}"), I(f"s_movk_i32 s11, {16*896-8}"), I(f"v_mad_u32_u24 v{vOu2}, v{vS[0]}, s11, v{vOut}"),
              I(f"s_lshl_b32 s26, {sWV}, 13"), I(f"s_mul_i32 s11, {sRT}, 320"), I("s_add_u32 s26, s26, s11")]
    ld_late = I(f"buffer_load_dword v{vF}, off, {srd(SRD_M)}, {sFE} sc1", "lf")
    ld_o = I(f"buffer_load_dword v{vF}, v{vOf}, {srd(SRD_M)}, s27 offen sc1", "of")
    QO = 12
    for q in range(16):
        G, R, U = Stream(every=2), Stream(), Stream()
        if q == 3: L += check("lf", 7, "l") + ST()
        if q == 2: G.add([ld_late])
        if q + PF < 14: G.add(ldA(q + PF))
        G.every = 3
        if q < 6: R.add([Wait(vm=f"V{q + 8}")] + rdW2(q + 8))
        if q == 7: U.add(setup[:20])
        if q == 8: U.add(setup[20:36])
        if q == 9: U.add(setup[36:])
        if q == QO - 2: G.add([ld_o])
        if q == QO:
            L += check("of", 4, "o") + ST()
            L += direct(ldA(14) + ldA(15))
            G.add(ldA(16))
        if q == QO + 1:
            G.every = 2
            G.add(ldA(17) + [I(f"buffer_load_dword v{vS[T]}, v13, {srd(SRD_M)}, s26 offen offset:{64*T} sc1", "S") for T in range(5)])
        if q == 14: L += [I("s_barrier")]
        L += [Wait(vm=f"A{q}", lgkm=f"w{q}")]
        if q < 13: L += ST((2,))
        SC.run(mm2(q), [G, R, U], flush=[G, R, U])
    L += ST()
    a16, a17 = mm2(16), mm2(17)
    order = [(T, t) for t in (1, 2, 3, 0) for T in range(5)]
    main = []
    for (T, t) in order: main += [a16[T*4+t], a17[T*4+t]]
    L += [Wait(vm="A17")]
    pend = []
    for k, m in enumerate(main):
        L.append(m)
        if k % 2 == 1 and order[k // 2][1] != 0:
            T, t = order[k // 2]
            pend.append((k + 9, I(f"ds_write_b128 v{vRw[t-1]}, {vq(AC2 + (T*4+t)*4)} offset:{T*1024}", "rw")))
        while pend and pend[0][0] <= k:
            L.append(pend.pop(0)[1])
    L += [x for _, x in pend]
    L += [Wait(lgkm="all"), I("s_barrier")] + ST()
    RB = 96
    for T in range(5):
        for sl in range(3):
            L.append(I(f"ds_read_b128 {vq(RB + (sl*5+T)*4)}, v{vRr} offset:{sl*5120 + T*1024}", f"rr{T}"))
    L += [Wait(vm="S")]
    osc = " sc1" if CFG["OSC"] else ""
    for T in range(5):
        a = AC2 + T*16
        d = AC2 + (T & ~1)*16 + 4 + 2*(T & 1)
        F = []
        for r in range(4): F.append(I(f"v_add_f32 v{RB + (5+T)*4 + r}, v{RB + (5+T)*4 + r}, v{RB + (10+T)*4 + r}"))
        for r in range(4): F.append(I(f"v_add_f32 v{a+r}, v{a+r}, v{RB + T*4 + r}"))
        for r in range(4): F.append(I(f"v_add_f32 v{a+r}, v{a+r}, v{RB + (5+T)*4 + r}"))
        for r in range(4): F.append(I(f"v_mul_f32 v{a+r}, v{a+r}, v{vS[T]}"))
        L += [Wait(lgkm=f"rr{T}")] + pkify(F)
        L += [I(f"v_cvt_pk_bf16_f32 v{d}, v{a}, v{a+1}"), I(f"v_cvt_pk_bf16_f32 v{d+1}, v{a+2}, v{a+3}")]
        if T & 1:
            q4 = d - 2
            L += [I(f"s_mov_b32 s10, {(T-1)*16*896}"), I("s_nop 0"),
                  I(f"v_permlane16_swap_b32 v{q4}, v{q4+2}"), I(f"v_permlane16_swap_b32 v{q4+1}, v{q4+3}"),
                  I(f"buffer_store_dwordx4 {vq(q4)}, v{vOu2}, {srd(SRD_O)}, s10 offen" + osc, "out")]
        elif T == 4:
            L += [I(f"s_mov_b32 s10, {T*16*896}"), I(f"buffer_store_dwordx2 v[{d}:{d+1}], v{vOut}, {srd(SRD_O)}, s10 offen" + osc, "out")]
    L += ST.dump(65536, 16)
    if CFG["PAD"]:
        L += [I("L_pad:"), I("s_memrealtime s[82:83]"), I("s_waitcnt lgkmcnt(0)"), I("s_sub_u32 s82, s82, s80"),
              I(f"s_cmp_lt_u32 s82, {CFG['PAD']}"), I("s_cbranch_scc1 L_pad")]
    extra = slow("h", vRdy) + poll("e", 7, I(f"buffer_load_dword v{vF}, off, {srd(SRD_M)}, {sFE} sc1")) + \
            poll("l", 7, I(ld_late.text)) + poll("o", 4, I(ld_o.text))
    return L, extra

QW_RING, QW_SLOT = 0, 24576
QX_RING, QX_SLOT = 98304, 20480
QG = QX_RING + 3 * QX_SLOT
assert QG + 4096 <= 163840

def qkv():
    ST = Stamps([40, 41, 42, 43, 44, 45, 46, 47, 48, 49, 50, 51])
    vWd = [1, 2]; vXd = [3, 4]; vWr = [[5, 6], [7, 8]]; vXr = [9, 10]
    vQ1b, vQA, vQB_, vQH, vQ1 = 11, 12, 13, 14, [15, 16]
    vRdy = 47
    K0 = 48; K1 = K0 + 36; V0 = K1 + 36; V1 = V0 + 36; Q0 = V1 + 36; Q1 = Q0 + 32
    assert Q1 + 32 == 256
    WF = 0; XF = 48
    def wf(u, sec, t): return WF + (u % 2) * 24 + (sec * 2 + t) * 4
    def xf(u, T): return XF + (u % 2) * 36 + T * 4
    r4, p16, r8, p8 = 17, 18, 19, 20
    L = [I("L_qkv:"), I(f"s_mov_b32 {sJ}, s10")] + ST(True)
    L += rot_small(sQB, None)
    L += [I(f"v_lshrrev_b32 v{r4}, 4, v0"), I(f"v_and_b32 v{p16}, 15, v0"),
          I(f"v_lshrrev_b32 v{r8}, 3, v0"), I(f"v_and_b32 v{p8}, 7, v0"),
          I(f"s_mul_i32 s11, {sJ}, 224"), I(f"s_cmp_eq_u32 {sJ}, 3"), I("s_cselect_b32 s11, 640, s11"),
          I(f"s_mul_i32 s26, {sWV}, {8*2688}"), I("s_add_u32 s11, s11, s26"),
          I("s_movk_i32 s27, 2688"), I(f"v_mul_u32_u24 v21, s27, v{r4}"), I("v_add_u32 v21, s11, v21"),
          I(f"s_and_b32 s26, {sWV}, 1"), I("s_lshl_b32 s26, s26, 3"),
          I(f"v_lshlrev_b32 v22, 1, v{r4}"), I(f"v_sub_u32 v22, v{p16}, v22"), I("v_xor_b32 v22, s26, v22"),
          I("v_and_b32 v22, 15, v22"),
          I(f"v_lshl_add_u32 v{vWd[0]}, v22, 4, v21"),
          I(f"v_add_u32 v{vWd[1]}, {4*2688-1024}, v{vWd[0]}"),
          I(f"s_lshl_b32 {sM0W}, {sWV}, 11"),
          I("s_movk_i32 s27, 896"), I(f"v_mul_u32_u24 v21, s27, v{r8}"),
          I(f"v_xor_b32 v22, v{r4}, v{p8}"), I("v_lshl_add_u32 v21, v22, 4, v21"),
          I("s_lshl_b32 s26, s26, 3"),
          I(f"v_xor_b32 v{vXd[0]}, s26, v21"), I(f"v_xor_b32 v{vXd[1]}, 64, v{vXd[0]}"),
          I(f"s_mul_i32 {sM0X}, {sWV}, 5120"), I(f"s_add_u32 {sM0X}, {sM0X}, {QX_RING}"),
          I(f"s_lshl_b32 s26, {sQB}, 7"), I(f"s_mul_i32 s27, {sWV}, 40"), I("s_add_u32 s26, s26, s27"),
          I("s_sub_u32 s26, s26, 16")]
    def xrow(i):
        r = [I(f"s_add_u32 s27, s26, {8*i}"), I(f"s_mul_i32 {sXROW[i]}, s27, 896")]
        if i < 2: r += [I("s_cmp_lt_i32 s27, 0"), I(f"s_cselect_b32 {sXROW[i]}, {OOB}, {sXROW[i]}")]
        if i >= 3: r += [I(f"s_cmp_eq_u32 {sWV}, 3"), I(f"s_cselect_b32 {sXROW[i]}, {OOB}, {sXROW[i]}")]
        return r
    def dmaW(u):
        s, e = divmod(u, 2)
        r = []
        for sec in range(3):
            r += [I(f"s_add_u32 m0, {sM0W}, {QW_RING + (u % 4) * QW_SLOT + sec * 8192}")]
            if sec == 0:
                r += [I(f"s_mul_i32 {sSOFF}, {sK[s]}, 1344")]
                if e: r += [I(f"s_add_u32 {sSOFF}, {sSOFF}, 86016")]
            else:
                r += [I(f"s_add_u32 {sSOFF}, {sSOFF}, 896")]
            for i in range(2):
                r.append(I(f"buffer_load_dwordx4 v{vWd[i]}, {srd(SRD_W)}, {sSOFF} offen offset:{1024*i} lds", f"W{u}"))
        return r
    def dmaX(s):
        r = []
        for i in range(5):
            r += [I(f"s_add_u32 m0, {sM0X}, {(s % 3) * QX_SLOT + i * 1024}"), I(f"s_add_u32 {sT0}, {sXROW[i]}, {sK[s]}"),
                  I(f"buffer_load_dwordx4 v{vXd[i % 2]}, {srd(SRD_X)}, {sT0} offen lds", f"X{s}")]
        return r
    L += [Wait(lgkm="all")]
    L += mksrd(SRD_W, 6, WQKV_BYTES) + dmaW(0)
    for i in range(5): L += xrow(i)
    L += mksrd(SRD_X, 4, X_BYTES) + dmaX(0) + mksrd(SRD_M, 18, 896)
    L += [I(f"s_lshl_b32 s26, {sWV}, 7"), I("v_lshl_add_u32 v23, v0, 1, s26"),
          I(f"buffer_load_ushort v24, v23, {srd(SRD_M)}, 0 offen", "gw"),
          I(f"buffer_load_ushort v25, v23, {srd(SRD_M)}, 0 offen offset:512", "gw")]
    L += dmaW(1)
    for s in range(1, 7): L += sk_next(s)
    L += srd_a() + mksrd(SRD_D, 22, 256)
    L += [I("v_bfe_u32 v21, v0, 2, 2"), I(f"v_lshl_add_u32 v22, v{r4}, 3, v21"),
          I(f"v_and_b32 v26, 1, v{r4}"), I("v_lshl_add_u32 v21, v26, 2, v21"),
          I("v_and_b32 v26, 3, v0"), I("v_lshlrev_b32 v27, 3, v26"), I("v_lshl_add_u32 v21, v21, 5, v27"),
          I(f"s_mul_i32 s26, {sWV}, 56"), I(f"s_cmp_eq_u32 {sJ}, 3"), I("s_cselect_b32 s27, 32, 0"),
          I("s_add_u32 s26, s26, s27"), I("v_add_u32 v21, s26, v21"),
          I("v_and_b32 v27, 0xff, v21"), I(f"v_lshl_add_u32 v{vWr[0][0]}, v22, 8, v27"),
          I("v_add_u32 v21, 32, v21"), I("v_and_b32 v27, 0xff, v21"), I(f"v_lshl_add_u32 v{vWr[0][1]}, v22, 8, v27"),
          I(f"v_add_u32 v{vWr[1][0]}, {2*QW_SLOT}, v{vWr[0][0]}"), I(f"v_add_u32 v{vWr[1][1]}, {2*QW_SLOT}, v{vWr[0][1]}"),
          I("v_cmp_eq_u32 vcc, 3, v26"),
          I(f"v_lshlrev_b32 v27, 3, v22"), I(f"v_add_u32 v27, {QG}, v27"),
          I(f"v_cndmask_b32 v{vQ1b}, v{vWr[0][1]}, v27, vcc"),
          I(f"v_mov_b32 v27, 1"), I(f"v_cndmask_b32 v{vQA}, v27, 0, vcc"),
          I(f"v_cndmask_b32 v{vQB_}, 0, v27, vcc"),
          I(f"v_mov_b32 v27, 0x400"), I(f"v_cndmask_b32 v{vQH}, v27, 32, vcc"),
          I(f"v_lshrrev_b32 v21, 1, v{p16}"), I(f"v_xor_b32 v21, v21, v{r4}"), I("v_lshlrev_b32 v21, 4, v21"),
          I(f"v_lshl_add_u32 v21, v{p16}, 7, v21"),
          I(f"v_add_u32 v{vXr[0]}, {QX_RING}, v21"), I(f"v_xor_b32 v{vXr[1]}, 64, v{vXr[0]}"),
          I("v_lshlrev_b32 v23, 2, v23"), I(f"v_add_u32 v23, {QG}, v23"),
          Wait(vm="gw"),
          I("ds_write_b16 v23, v24"), I("ds_write_b16 v23, v25 offset:2048")]
    def reads(u):
        s, e = divmod(u, 2)
        sl = u % 4
        a = [I(f"s_lshl_b32 {sT1}, {sK[s]}, 2")]
        if e: a += [I(f"s_add_u32 {sT1}, {sT1}, 256")]
        G = [a, [I(f"s_mov_b32 {sT2}, {sl * QW_SLOT}"), I(f"v_mad_u32_u24 v{vQ1[0]}, v{vQB_}, {sT1}, v{vQ1b}")],
             [I(f"v_mad_u32_u24 v{vQ1[0]}, v{vQA}, {sT2}, v{vQ1[0]}"), I(f"v_add_u32 v{vQ1[1]}, v{vQH}, v{vQ1[0]}")]]
        for T in range(9):
            G.append([I(f"ds_read_b128 {aq(xf(u, T))}, v{vXr[e]} offset:{(s % 3) * QX_SLOT + T * 2048}", f"r{u}")])
        for sec in (1, 2, 0):
            for t in range(2):
                for h in range(2):
                    if sec == 0 and t == 1:
                        G.append([I(f"ds_read_b64_tr_b16 {aq(wf(u,sec,t)+2*h, 2)}, v{vQ1[h]}", f"r{u}")])
                    else:
                        G.append([I(f"ds_read_b64_tr_b16 {aq(wf(u,sec,t)+2*h, 2)}, v{vWr[sl//2][t]} offset:{(sl%2)*QW_SLOT + sec*8192 + h*1024}", f"r{u}")])
        return G
    def mm(u):
        r = []
        for T in range(9):
            r += [mfma(vq(K0 + 4*T), aq(wf(u,1,0)), aq(xf(u,T)), u == 0), mfma(vq(K1 + 4*T), aq(wf(u,1,1)), aq(xf(u,T)), u == 0)]
        for T in range(9):
            r += [mfma(vq(V0 + 4*T), aq(xf(u,T)), aq(wf(u,2,0)), u == 0), mfma(vq(V1 + 4*T), aq(xf(u,T)), aq(wf(u,2,1)), u == 0)]
        for T in range(1, 9):
            r += [mfma(vq(Q0 + 4*(T-1)), aq(wf(u,0,0)), aq(xf(u,T)), u == 0), mfma(vq(Q1 + 4*(T-1)), aq(wf(u,0,1)), aq(xf(u,T)), u == 0)]
        return r
    i16, g4 = 18, 17
    sel = [21, 22, 23, 24]; vMq = 25; vSt = 26
    C = [I(f"v_and_b32 v38, 1, v{i16}"), I(f"v_cmp_eq_u32 {mODD}, 1, v38"),
         I(f"v_lshl_add_u32 v38, v{g4}, 2, v38"),
         I(f"v_cmp_le_u32 {mC0}, v38, v{i16}"), I("v_add_u32 v38, 2, v38"), I(f"v_cmp_le_u32 {mC1}, v38, v{i16}"),
         I(f"v_cmp_eq_u32 {mG3}, 3, v{g4}"),
         I("v_mov_b32 v39, 0x0c0c0100"), I("v_mov_b32 v40, 0x01000c0c"),
         I(f"v_cndmask_b32 v39, v39, v40, {mODD}"),
         I("v_mov_b32 v41, 0x0c0c0302"), I("v_mov_b32 v40, 0x03020c0c"),
         I(f"v_cndmask_b32 v41, v41, v40, {mODD}"),
         I("v_mov_b32 v40, 0x0c0c0c0c"),
         I(f"v_cndmask_b32 v{sel[0]}, v39, v40, {mC0}"), I(f"v_cndmask_b32 v{sel[1]}, v41, v40, {mC1}"),
         I(f"v_cndmask_b32 v{sel[2]}, v40, v39, {mC0}"), I(f"v_cndmask_b32 v{sel[3]}, v40, v41, {mC1}"),
         I(f"v_cndmask_b32 v{vMq}, -1, 0, {mG3}"),
         I(f"v_lshlrev_b32 v{vSt}, 4, v0"), I("v_lshlrev_b32 v44, 2, v0"),
         Block([I(f"s_cmp_eq_u32 {sQB}, 0"), I(f"s_cselect_b64 {mC0F}, {mC0}, -1"), I(f"s_cselect_b64 {mC1F}, {mC1}, -1")]),
         I(f"s_mov_b32 {sSCL}, {hex(f2u(28 ** -0.5 * math.log2(math.e)))}"),
         I(f"s_mov_b32 {sNL2E}, {hex(f2u(-math.log2(math.e)))}"),
         I(f"s_mul_i32 s26, {sQB}, {8*NK}"), I(f"s_lshl_b32 s27, {sJ}, 2"), I("s_add_u32 s26, s26, s27"),
         I(f"s_add_u32 s26, s26, {sWV}"), I("s_add_u32 s26, s26, 56"), I(f"s_lshl_b32 {sAST}, s26, 10"),
         I(f"s_lshl_b32 s26, {sJ}, 13"), I(f"s_lshl_b32 s27, {sQB}, 9"), I("s_add_u32 s26, s26, s27"),
         Block([I(f"s_cmp_eq_u32 {sWV}, 0"), I(f"s_cselect_b32 s26, s26, {OOB}")])]
    C += mksrd(SRD_M, 24, MISC_BYTES)
    SC = Sched(L)
    for u in range(14):
        L += [Wait(vm=[f"W{u}", f"X{u//2}"], lgkm="all"), I("s_barrier")]
        if u in (0, 2, 7): L += ST((0, 1, 2))
        elif u in (1, 3, 4, 5, 9, 11, 13): L += ST((1,))
        if u == 0:
            L += [x for g in reads(0) for x in g] + dmaW(2) + dmaX(1)
            continue
        G = Stream(every=CFG["EVQ"] if u > 1 else 3)
        if u == 1: G.add(dmaW(3) + dmaX(2))
        if u + 3 < 14: G.add(dmaW(u + 3))
        if u % 2 == 0 and u // 2 + 2 < 7: G.add(dmaX(u // 2 + 2))
        if u == 12: G.add([I(f"buffer_load_dword v{vRdy}, off, {srd(SRD_D)}, 0 sc1", "rdy")])
        R = Stream([x for g in reads(u) for x in g], rate=0.55)
        U = Stream(C if u == 13 else [])
        SC.run(mm(u - 1), [G, R, U], flush=[G, R, U])
    VB0, VB1 = K1, K1 + 18
    def pk4(d, a, b):
        return [I(f"v_cvt_pk_bf16_f32 v{d[0]}, v{a}, v{a+1}"), I(f"v_cvt_pk_bf16_f32 v{d[1]}, v{a+2}, v{a+3}"),
                I(f"v_cvt_pk_bf16_f32 v{d[2]}, v{b}, v{b+1}"), I(f"v_cvt_pk_bf16_f32 v{d[3]}, v{b+2}, v{b+3}")]
    packK, packV, packQ = [], [], []
    for T in range(9):
        a = K0 + 4*T; packK += pk4([a, a+1, a+2, a+3], a, K1 + 4*T)
        packV += pk4([VB0+2*T, VB0+2*T+1, VB1+2*T, VB1+2*T+1], V0 + 4*T, V1 + 4*T)
    for T in range(8):
        a = Q0 + 4*T
        packQ += pk4([a, a+1, a+2, a+3], a, Q1 + 4*T) + [I(f"v_and_b32 v{a+2}, v{vMq}, v{a+2}"), I(f"v_and_b32 v{a+3}, v{vMq}, v{a+3}")]
    L += [Wait(lgkm="all")] + ST()
    m13 = mm(13)
    m13 = m13[36:] + m13[:36]
    F = Stream(packQ + packK)
    SC.run(m13[:8], [])
    SC.run(m13[8:], [F], flush=[F])
    def sw(n, a, b): return I(f"v_permlane{n}_swap_b32 v{a}, v{b}")
    Z = [Q1 + 12, Q1 + 28]
    L += [sw(32, Q1, Q1 + 8), sw(32, Q1 + 4, Q1 + 12), sw(32, Q1 + 16, Q1 + 24), sw(32, Q1 + 20, Q1 + 28)] + packV[:2]
    L += [sw(16, Q1 + 8, Q1 + 12), sw(16, Q1 + 24, Q1 + 28)]
    G = []
    for z0, z, g, o in ((Z[0], 38, 40, 42), (Z[1], 39, 41, 43)):
        G.append([I(f"v_cvt_pk_bf16_f32 v{z}, v{z0}, v{z0}"), I(f"v_and_b32 v{z}, 0xffff0000, v{z}"),
                  I(f"v_mul_f32 v{z}, {sNL2E}, v{z}"), I(f"v_exp_f32 v{z}, v{z}"), I(f"v_add_f32 v{z}, 1.0, v{z}"),
                  I(f"v_rcp_f32 v{g}, v{z}"), I(f"v_cvt_pk_bf16_f32 v{g}, v{g}, v{g}"), I(f"v_and_b32 v{g}, 0xffff0000, v{g}"),
                  I(f"v_sub_f32 v{o}, 1.0, v{g}"), I(f"v_cvt_pk_bf16_f32 v{o}, v{o}, v{o}"), I(f"v_and_b32 v{o}, 0xffff0000, v{o}"),
                  I(f"v_max_f32 v{o}, {hex(f2u(1e-30))}, v{o}"), I(f"v_rcp_f32 v{z}, v{o}"), I(f"v_mul_f32 v{g}, v{g}, v{z}")])
    sig = [x for ab in zip(*G) for x in ab]
    sig += [I(f"buffer_store_dword v42, v44, {srd(SRD_M)}, s26 offen sc1", "st"),
            I(f"buffer_store_dword v43, v44, {srd(SRD_M)}, s26 offen offset:256 sc1", "st")]
    def smm(gr):
        r = []
        for k in range(4):
            T = 1 + 4*gr + k; b = Q1 + 8*k; q = Q0 + 4*(T-1)
            r += [mfma(vq(b), vq(K0 + 4*(T-1)), vq(q), True), mfma(vq(b + 4), vq(K0 + 4*T), vq(q), True)]
        return r
    def reduce4(op, m, mid):
        return [sw(32, m[0], m[2]), sw(32, m[1], m[3]), I(f"{op} v{m[0]}, v{m[0]}, v{m[2]}"), I(f"{op} v{m[1]}, v{m[1]}, v{m[3]}"), None,
                sw(16, m[0], m[1]), I(f"{op} v{m[0]}, v{m[0]}, v{m[1]}")] + mid + \
               [I(f"v_mov_b32 v{m[1]}, v{m[0]}"), None, sw(16, m[0], m[1]), I(f"v_mov_b32 v{m[2]}, v{m[0]}"), I(f"v_mov_b32 v{m[3]}, v{m[1]}"), None,
                sw(32, m[0], m[2]), sw(32, m[1], m[3])]
    def fillnone(seq, fill):
        o = []
        for x in seq:
            if x is None:
                o += [fill.pop(0), fill.pop(0)] if len(fill) >= 2 else [I("s_nop 1")]
            else: o.append(x)
        return o
    def outs(gr):
        r = []
        for k in range(4):
            T = 1 + 4*gr + k; O0, O1 = V0 + 4*T, V1 + 4*T; m = MS[gr] + 2*k
            r += [I(f"v_cndmask_b32 v{m+1}, v{m}, 0, {mG3}")]
            r += pkify([I(f"v_mul_f32 v{O0+j}, v{O0+j}, v{m}") for j in range(4)] + [I(f"v_mul_f32 v{O1+j}, v{O1+j}, v{m+1}") for j in range(4)])
            r += pk4([O0, O0+1, O0+2, O0+3], O0, O1)
            r += [I(f"buffer_store_dwordx4 {vq(O0)}, v{vSt}, {srd(SRD_A)}, {sAST} offen sc1", "st"), I(f"s_add_u32 {sAST}, {sAST}, {NK*1024}")]
        return r
    MS = [2, 30]
    def att(gr, fill):
        B = [Q1 + 8*k for k in range(4)]
        r = []
        for k in range(4):
            SP, SC_ = B[k], B[k] + 4
            r += [I(f"v_cndmask_b32 v{SP}, v{SP}, v{SP+1}, {mODD}"), I(f"v_cndmask_b32 v{SP+1}, v{SP+2}, v{SP+3}, {mODD}"),
                  I(f"v_cndmask_b32 v{SC_}, v{SC_}, v{SC_+1}, {mODD}"), I(f"v_cndmask_b32 v{SC_+1}, v{SC_+2}, v{SC_+3}, {mODD}"),
                  I(f"v_cndmask_b32 v{SP}, v{SP}, v{SC_}, {mC0}"), I(f"v_cndmask_b32 v{SP+1}, v{SP+1}, v{SC_+1}, {mC1}")]
            if gr == 0 and k == 0:
                r += [I(f"v_mov_b32 v{SP+3}, {hex(f2u(-1e30))}"),
                      I(f"v_cndmask_b32 v{SP}, v{SP+3}, v{SP}, {mC0F}"), I(f"v_cndmask_b32 v{SP+1}, v{SP+3}, v{SP+1}, {mC1F}")]
            r += [I(f"v_max_f32 v{SP+2}, v{SP}, v{SP+1}")]
        m = [b + 2 for b in B]
        r += fillnone([None] + reduce4("v_max_f32", m, [I(f"v_mul_f32 v{m[0]}, {sSCL}, v{m[0]}")]), fill)
        for b in B:
            r += [I(f"v_pk_fma_f32 v[{b}:{b+1}], v[{b}:{b+1}], s[92:93], v[{b+2}:{b+3}] op_sel_hi:[1,0,0] neg_lo:[0,0,1] neg_hi:[0,0,1]")]
        for b in B: r += [I(f"v_exp_f32 v{b}, v{b}"), I(f"v_exp_f32 v{b+1}, v{b+1}")]
        ms = [MS[gr] + 2*k for k in range(4)]
        for k, b in enumerate(B): r += [I(f"v_cvt_pk_bf16_f32 v{b+3}, v{b}, v{b+1}"), I(f"v_add_f32 v{ms[k]}, v{b}, v{b+1}")]
        for b in B: r += [I(f"v_perm_b32 v{b+4+j}, v{b+3}, v{b+3}, v{sel[j]}") for j in range(4)]
        red = reduce4("v_add_f32", ms, [I(f"v_rcp_f32 v{ms[0]}, v{ms[0]}"), I("s_nop 0"), I(f"v_mul_f32 v{ms[0]}, v{ms[0]}, v{40 + gr}")])
        pv = []
        for k, b in enumerate(B):
            T = 1 + 4*gr + k
            pv += [mfma(vq(V0 + 4*T), vq(VB0 + 2*(T-1)), vq(b + 4), True), mfma(vq(V1 + 4*T), vq(VB1 + 2*(T-1)), vq(b + 4), True)]
        return r, red, pv
    L += sig[:2]; sig = sig[2:]
    L += smm(0)
    L += packV[2:] + ST()
    r0, red0, pv0 = att(0, sig)
    L += r0 + sig
    f = list(pv0); L += fillnone(red0, f) + f
    L += smm(1)
    o0 = outs(0)
    L += o0[:12]; o0 = o0[12:]
    r1, red1, pv1 = att(1, o0)
    L += r1
    f = list(pv1); L += fillnone(red1, f) + f
    L += o0 + outs(1)
    L += ST()
    L += [I(f"s_lshl_b32 s26, {sQB}, 2"), I(f"s_add_u32 s26, s26, {sJ}"), I("s_lshl_b32 s26, s26, 7"), I(f"s_add_u32 s26, s26, {FLAG_OFF + FL_O}")]
    L += publish("o", vRdy, 1, "s26") + ST() + ST.dump(65536, 2)
    return L, slow("o", vRdy)

def main():
    for n in range(84): assert (n * 43) >> 8 == n // 6
    for n in range(30): assert (n * 43) >> 7 == n // 3
    for n in range(182): assert (n * 147) >> 10 == n // 7
    pro = prologue()
    def path(role):
        full = resolve(pro + role)
        return full[len(pro):], full
    fr, fx = ffn()
    qr, qx = qkv()
    f, ff = path(fr)
    q, qf = path(qr)
    probs = []
    for nm, s in (("ffn", ff), ("qkv", qf), ("idle", pro + idle()), ("fx", fx), ("qx", qx)):
        probs += check_hazards(s, nm) + check_pending(s, nm) + check_scc(s, nm)
    for p in probs: print("HAZARD", p, file=sys.stderr)
    ref = open(f"cdna_kernels/{NAME}.s.ref").read()
    out = ref.split("; @launch")[0]
    out += "; @launch grid=(256,1,1) block=(256,1,1) lds=163840\n"
    out += f'.amdgcn_target "amdgcn-amd-amdhsa--gfx950"\n.text\n.globl {NAME}_kernel\n.p2align 8\n.type {NAME}_kernel,@function\n{NAME}_kernel:\n'
    out += render(pro) + "\n" + render(f) + "\n    s_endpgm\n" + render(fx) + "\n" + render(q) + "\n    s_endpgm\n" + render(qx) + "\n"
    out += render(idle()) + "\nL_end:\n    s_endpgm\n"
    out += f""".section .rodata,"a"
.p2align 6
.amdhsa_kernel {NAME}_kernel
  .amdhsa_next_free_vgpr 512
  .amdhsa_next_free_sgpr 102
  .amdhsa_accum_offset 256
  .amdhsa_group_segment_fixed_size 0
  .amdhsa_kernarg_size 88
  .amdhsa_user_sgpr_count 2
  .amdhsa_user_sgpr_kernarg_segment_ptr 1
  .amdhsa_system_sgpr_workgroup_id_x 1
.end_amdhsa_kernel
"""
    open(sys.argv[1], "w").write(out)
    print("instr counts: ffn", len(f), "qkv", len(q), "hazards", len(probs))

main()
```

```python
import sys, os, math, struct
sys.path.insert(0, os.path.dirname(os.path.abspath(__file__)))
from asmlib import *

NAME = "gated_mix__sliding_local_dilated__swiglu_ffn__prompt"
CFG = dict(ROT=2, P1=4, STAMP=0, PUB=3, PF=3, PAD=0, CYC=0, SET=0, G=2, GI=4, RX=0, RH=0, PRE=1, OSC=0, EV1=3, EV2=2, EVQ=4, PUBD=24)
for a in sys.argv[2:]:
    k, v = a.split("=")
    CFG[k] = int(v)
ROT, P1 = CFG["ROT"], CFG["P1"]

def f2u(x):
    return struct.unpack("<I", struct.pack("<f", x))[0]

S, D, F = 2048, 448, 1792
X_BYTES = S * D * 2
WQKV_BYTES = D * 3 * D * 2
WO_BYTES = D * D * 2
WG_BYTES = D * F * 2
NK = 72
A_OFF = 131072
A_BYTES = 128 * NK * 1024
MISC_BYTES = 131072
FLAG_OFF = 81920
OOB = 0x40000000
MASTER = 240

sWV = "s3"
SRD_X, SRD_W, SRD_A, SRD_O, SRD_W2, SRD_WO, SRD_M, SRD_D = 28, 32, 36, 40, 44, 48, 52, 96
def srd(n): return f"s[{n}:{n+3}]"
sK = [f"s{56+i}" for i in range(7)]
sROW0, sC, sT0, sT1, sT2, sT3 = "s63", "s64", "s65", "s66", "s67", "s68"
sM0W, sM0X, sSOFF, sAST, sNL2E = "s69", "s70", "s71", "s73", "s72"
sXROW = [f"s{74+i}" for i in range(5)]
sJ = "s79"
mODD, mC0, mC1, mC0F, mC1F, mG3 = "s[80:81]", "s[82:83]", "s[84:85]", "s[86:87]", "s[88:89]", "s[90:91]"
sSCL, sQB, sN2, sRB = "s92", "s93", "s94", "s95"
sRT, sNT, sAO, sCW, sCA, sM02 = "s74", "s75", "s76", "s77", "s78", "s79"

def vq(n, k=4): return f"v[{n}:{n+k-1}]"
def aq(n, k=4): return f"a[{n}:{n+k-1}]"
def rq(r, k=4): return f"{r[0]}[{r[1]}:{r[1]+k-1}]"

def mksrd(n, lo, size):
    return [I(f"s_mov_b32 s{n}, s{lo}"), I(f"s_mov_b32 s{n+1}, s{lo+1}"),
            I(f"s_mov_b32 s{n+2}, {size}"), I(f"s_mov_b32 s{n+3}, 0x20000")]

def srd_a():
    return [I(f"s_add_u32 s{SRD_A}, s24, {A_OFF}"), I(f"s_addc_u32 s{SRD_A+1}, s25, 0"),
            I(f"s_mov_b32 s{SRD_A+2}, {A_BYTES}"), I(f"s_mov_b32 s{SRD_A+3}, 0x20000")]

def mfma32(d, a, b, first):
    return I(f"v_mfma_f32_32x32x16_bf16 {d}, {a}, {b}, {'0' if first else d}")

def mfma(d, a, b, first):
    return I(f"v_mfma_f32_16x16x32_bf16 {d}, {a}, {b}, {'0' if first else d}")

class Stamps:
    def __init__(self, regs): self.regs = regs; self.n = 0
    def __call__(self, sets=(0,)):
        if not CFG["STAMP"] or not (sets is True or CFG["SET"] in sets): return []
        r = self.regs[self.n]; self.n += 1
        op = "s_memtime" if CFG["CYC"] else "s_memrealtime"
        return [I(f"{op} s[100:101]"), I("s_waitcnt lgkmcnt(0)"), I(f"s_mov_b32 s{r}, s100")]
    def dump(self, base, vtmp):
        if not CFG["STAMP"]: return []
        L = [I("s_waitcnt vmcnt(0)")] + self(True)
        L += [I(f"v_mov_b32 v{vtmp}, 0")]
        for k in range(self.n): L.append(I(f"v_writelane_b32 v{vtmp}, s{self.regs[k]}, {k}"))
        L += [I("s_lshl_b32 s26, s2, 6"), I(f"s_add_u32 s26, s26, {base}"), I(f"s_cmp_eq_u32 {sWV}, 0"), I(f"s_cselect_b32 s26, s26, {OOB}"),
              I(f"v_lshlrev_b32 v{vtmp+1}, 2, v0"), I("v_cmp_gt_u32 vcc, 16, v0"), I("s_nop 4"), I("s_and_saveexec_b64 s[10:11], vcc"),
              I(f"buffer_store_dword v{vtmp}, v{vtmp+1}, {srd(SRD_M)}, s26 offen")]
        if CFG["STAMP"] == 2:
            L += [I("s_cmp_eq_u32 s2, 0"), I(f"s_cselect_b32 s26, 8, {OOB}"), I(f"s_cmp_eq_u32 {sWV}, 0"), I(f"s_cselect_b32 s26, s26, {OOB}"),
                  I(f"buffer_store_dword v{vtmp}, v{vtmp+1}, {srd(SRD_D)}, s26 offen")]
        return L

def sk_next(s):
    return [I(f"s_add_u32 {sK[s]}, {sK[s-1]}, 128"), I(f"s_cmp_eq_u32 {sK[s]}, 896"),
            I(f"s_cselect_b32 {sK[s]}, 0, {sK[s]}")]

def rot_small(a, b):
    G, GI, RX, RH = CFG["G"], CFG["GI"], CFG["RX"], CFG["RH"]
    L = [I(f"s_add_u32 s27, {a}, {b}")] if b else [I(f"s_mov_b32 s27, {a}")]
    if G == 1: L = [I("s_mov_b32 s27, 0")]
    elif G == 2: L += [I("s_and_b32 s27, s27, 1")]
    elif G == 3: L += [I("s_mul_i32 s11, s27, 43"), I("s_lshr_b32 s11, s11, 7"), I("s_mul_i32 s11, s11, 3"), I("s_sub_u32 s27, s27, s11")]
    if G > 1 and GI != 1: L += [I(f"s_mul_i32 s27, s27, {GI}")]
    if RX: L += [I("s_and_b32 s11, s2, 3"), I(f"s_mul_i32 s11, s11, {RX}"), I("s_add_u32 s27, s27, s11")]
    if RH: L += [I("s_bfe_u32 s11, s2, 0x10002"), I(f"s_mul_i32 s11, s11, {RH}"), I("s_add_u32 s27, s27, s11")]
    if G == 7 or RX or RH:
        L += [I("s_mul_i32 s11, s27, 147"), I("s_lshr_b32 s11, s11, 10"), I("s_mul_i32 s11, s11, 7"), I("s_sub_u32 s27, s27, s11")]
    L += [I(f"s_lshl_b32 {sK[0]}, s27, 7")]
    return L

def blockify(seq):
    o, i = [], 0
    while i < len(seq):
        x = seq[i]
        j = i + 1
        while j < len(seq) and getattr(seq[j], "op", "").startswith(("s_cselect", "s_addc")): j += 1
        o.append(Block(seq[i:j]) if j > i + 1 else x)
        i = j
    return o

def direct(seq):
    o = []
    Sched(o).flush(Stream(seq))
    return o

def publish(tag, vrdy, vone, scnt, st="st"):
    return [Wait(vm=[st, "rdy"]), I(f"v_readfirstlane_b32 s10, v{vrdy}"), I(f"v_mov_b32 v{vone}, 1")] + spin_init() + [I("s_nop 0"),
            I("s_cmp_eq_u32 s10, 0"), I(f"s_cbranch_scc1 L_slow_{tag}"), I(f"L_back_{tag}:"),
            I("s_mov_b64 exec, 1"),
            I(f"buffer_atomic_add v{vone}, off, {srd(SRD_M)}, {scnt} sc1", "pub"),
            I("s_mov_b64 exec, -1")]

SPIN = "s11"
def spin_init(): return [I(f"s_mov_b32 {SPIN}, 0x100000")]
def spin_step(): return [I(f"s_sub_u32 {SPIN}, {SPIN}, 1"), I("s_cbranch_scc1 L_end")]

def slow(tag, vrdy):
    return [I(f"L_slow_{tag}:")] + spin_step() + [I(f"buffer_load_dword v{vrdy}, off, {srd(SRD_D)}, 0 sc1"), I("s_waitcnt vmcnt(0)"),
            I(f"v_readfirstlane_b32 s10, v{vrdy}"), I("s_nop 3"), I("s_cmp_eq_u32 s10, 0"), I(f"s_cbranch_scc1 L_slow_{tag}"),
            I(f"s_branch L_back_{tag}")]

def prologue():
    L = [I("s_cmp_ge_u32 s2, 256"), I("s_cbranch_scc1 L_end"),
         I("s_load_dwordx4 s[4:7], s[0:1], 0", "ka"), I("s_load_dwordx8 s[12:19], s[0:1], 32", "ka"),
         I("s_load_dwordx2 s[8:9], s[0:1], 16", "ka"), I("s_load_dwordx4 s[20:23], s[0:1], 64", "ka"),
         I("s_load_dwordx2 s[24:25], s[0:1], 80", "ka")]
    L += [I("v_lshrrev_b32 v1, 6, v0"), I("v_and_b32 v0, 63, v0"),
          I("s_and_b32 s10, s2, 3"),
          I("v_readfirstlane_b32 s3, v1"),
          I("s_lshr_b32 s11, s2, 3"),
          I("s_bitcmp1_b32 s2, 2"),
          I("s_cbranch_scc1 L_halfB"),
          I(f"s_mul_i32 {sN2}, s10, 21"), I(f"s_add_u32 {sN2}, {sN2}, s11"),
          I(f"s_mul_i32 {sC}, {sN2}, 43"), I(f"s_lshr_b32 {sC}, {sC}, 8"),
          I(f"s_mul_i32 s27, {sC}, 6"), I(f"s_sub_u32 {sRB}, {sN2}, s27"),
          I("s_cmp_lt_u32 s11, 21"), I("s_cbranch_scc1 L_ffn"),
          I(f"s_sub_u32 {sQB}, s11, 21"), I(f"s_cmp_lt_u32 {sQB}, 9"), I("s_cbranch_scc1 L_qkv"),
          I("s_branch L_idle"),
          I("L_halfB:"),
          I("s_mul_i32 s26, s10, 49"), I("s_add_u32 s26, s26, 1"), I("s_lshr_b32 s26, s26, 1"),
          I("s_add_u32 s26, s26, s11"), I(f"s_add_u32 {sN2}, s26, 84"),
          I(f"s_mul_i32 {sC}, s26, 147"), I(f"s_lshr_b32 {sC}, {sC}, 10"),
          I(f"s_mul_i32 s27, {sC}, 7"), I("s_sub_u32 s26, s26, s27"), I(f"s_add_u32 {sRB}, s26, 6"),
          I(f"s_sub_u32 {sQB}, s11, 16"), I("s_cmp_ge_u32 s11, 25"), I("s_cbranch_scc1 L_qkv"),
          I("s_and_b32 s27, s10, 1"), I("s_sub_u32 s27, 25, s27"),
          I("s_cmp_ge_u32 s11, s27"), I("s_cbranch_scc1 L_idle")]
    return L

def idle():
    L = [I("L_idle:"), I("v_lshlrev_b32 v1, 7, v0"), I("s_waitcnt lgkmcnt(0)"),
         I(f"s_cmp_lg_u32 s2, {MASTER}"), I("s_cbranch_scc1 L_pre"), I(f"s_cmp_lg_u32 {sWV}, 0"), I("s_cbranch_scc1 L_pre"),
         I("v_mov_b32 v2, 0"), I("v_mov_b32 v3, 1")] + mksrd(SRD_M, 24, MISC_BYTES) + mksrd(SRD_D, 22, 256)
    L += [x for k in range(5) for x in (I(f"s_mov_b32 s26, {FLAG_OFF + 8192*k}"), I(f"buffer_store_dword v2, v1, {srd(SRD_M)}, s26 offen sc1"))]
    L += [I("s_waitcnt vmcnt(0)"), I("s_mov_b64 exec, 1"), I(f"buffer_store_dword v3, off, {srd(SRD_D)}, 0 sc1"), I("s_mov_b64 exec, -1"),
          I("L_pre:")]
    if CFG["PRE"]:
        L += [I("s_sub_u32 s26, s11, 30"), I("s_lshl_b32 s26, s26, 2"), I("s_add_u32 s26, s26, s10"),
              I("s_lshr_b32 s27, s10, 1"), I("s_add_u32 s27, s27, 8"), I("s_bitcmp1_b32 s2, 2"), I("s_cselect_b32 s26, s27, s26"),
              I("s_lshl_b32 s26, s26, 2"), I(f"s_add_u32 s26, s26, {sWV}"), I("s_lshl_b32 s26, s26, 13")]
        L += mksrd(SRD_W2, 16, WG_BYTES) + mksrd(SRD_WO, 8, WO_BYTES)
        for k in range(7):
            if k == 2: L += [I(f"s_sub_u32 s26, s26, {2*327680}")]
            L += [I(f"buffer_load_dword v{4+k}, v1, {srd(SRD_WO if k < 2 else SRD_W2)}, s26 offen"), I("s_add_u32 s26, s26, 327680")]
        L += [I("s_waitcnt vmcnt(0)")]
    return L

P1 = 4
FW_RING, FW_R = 0, 4
FX_RING = 65536
FX_SLOT = P1 * 2048
FX2 = 102400
NT2 = 10 - P1
assert FX_RING + 3 * FX_SLOT <= 98304 and FX2 + 4 * 14336 <= 163840
SL2 = 6
RED = 98304
FL_LATE, FL_O = 104 * 128, 208 * 128

def ffn():
    ST = Stamps(list(range(80, 93)) + [4, 5, 6])
    vWd = [1, 2, 3, 4]; vXd = [5, 6]; vX2d = 8; vWr = [9, 10]; vXr = [11, 12, 13, 14]; vAst = 21
    vT = [16, 17, 18, 19]; vRdy = 20; vOne = 7; vHi = 22
    XB = 24
    ACC = 72; NSL = 3
    v2d = [176, 177, 178, 179]; v2r = [180, 181, 182, 183]
    W2V = 184
    sODD, sCE, sCL, sDX = "s93", "s26", "s27", "s68"
    def acc(T, ct): return ACC + (T % NSL) * 32 + ct * 16
    def wfr(k, ct): return (k * 2 + ct) * 4
    L = [I("L_ffn:")] + ST(True)
    if CFG["PAD"]: L += [I("s_memrealtime s[80:81]")]
    L += [I(f"s_mul_i32 {sROW0}, {sRB}, 160"), I(f"s_and_b32 {sODD}, {sC}, 1")]
    L += rot_small(sRB, sC)
    r4, p16, r8, p8 = 16, 17, 18, 19
    L += [I(f"v_lshrrev_b32 v{r4}, 4, v0"), I(f"v_and_b32 v{p16}, 15, v0"),
          I(f"v_lshrrev_b32 v{r8}, 3, v0"), I(f"v_and_b32 v{p8}, 7, v0"),
          I(f"s_and_b32 s10, {sWV}, 1"), I("s_mul_i32 s11, s10, 57344"),
          I(f"s_lshl_b32 s27, {sC}, 8"), I("s_add_u32 s11, s11, s27"),
          I("s_movk_i32 s27, 3584"), I(f"v_mul_u32_u24 v20, s27, v{r4}"), I("v_add_u32 v20, s11, v20"),
          I(f"v_lshlrev_b32 v21, 2, v{r4}"), I(f"v_xor_b32 v21, v21, v{p16}"),
          I(f"s_and_b32 s11, {sWV}, 2"), I("v_xor_b32 v21, s11, v21"),
          I(f"v_lshl_add_u32 v{vWd[0]}, v21, 4, v20")]
    for i in range(1, 4): L += [I(f"v_add_u32 v{vWd[i]}, {4*3584-1024}, v{vWd[i-1]}")]
    L += [I(f"s_lshl_b32 {sM0W}, {sWV}, 12"),
          I(f"s_lshr_b32 s11, {sWV}, 1"), I("s_sub_u32 s27, 4, s11"), I(f"s_cmp_eq_u32 {sODD}, 0"), I("s_cselect_b32 s11, s11, s27"),
          I("s_lshl_b32 s11, s11, 1"), I("s_add_u32 s11, s11, s10"), I("s_lshl_b32 s11, s11, 4"),
          I(f"s_add_u32 s11, s11, {sROW0}"), I("s_mul_i32 s11, s11, 896"),
          I(f"s_lshl_b32 {sM0X}, {sWV}, 11"), I(f"s_add_u32 {sM0X}, {sM0X}, {FX_RING}"),
          I("s_movk_i32 s27, 896"),
          I(f"v_mul_u32_u24 v20, s27, v{r8}"),
          I(f"v_xor_b32 v21, v{r4}, v{p8}"),
          I(f"v_lshl_add_u32 v22, v21, 4, v20"),
          I(f"v_add_u32 v{vXd[0]}, s11, v22"), I("v_xor_b32 v23, 64, v22"),
          I(f"s_add_u32 s11, s11, {8*896-1024}"), I(f"v_add_u32 v{vXd[1]}, s11, v23")]
    L += [Wait(lgkm="all")] + ST((4,))
    L += [I(f"s_cmp_lt_u32 {sWV}, 2"), I(f"s_cselect_b32 s{SRD_W}, s12, s14"), I(f"s_cselect_b32 s{SRD_W+1}, s13, s15"),
          I(f"s_mov_b32 s{SRD_W+2}, {WG_BYTES}"), I(f"s_mov_b32 s{SRD_W+3}, 0x20000")]

    def dmaW(u):
        s, e = divmod(u, 2)
        r = [I(f"s_add_u32 m0, {sM0W}, {FW_RING + (u % FW_R) * 16384}"), I(f"s_mul_i32 {sSOFF}, {sK[s]}, 1792")]
        if e: r += [I(f"s_add_u32 {sSOFF}, {sSOFF}, 114688")]
        for i in range(4):
            r.append(I(f"buffer_load_dwordx4 v{vWd[i]}, {srd(SRD_W)}, {sSOFF} offen offset:{1024*i} lds", f"W{u}"))
        return r
    def dmaX(s):
        r = [I(f"s_add_u32 m0, {sM0X}, {(s % 3) * FX_SLOT}")]
        for i in range(2):
            r.append(I(f"buffer_load_dwordx4 v{vXd[i]}, {srd(SRD_X)}, {sK[s]} offen offset:{1024*i} lds", f"X{s}"))
        return r
    def dmaX2(p):
        r = [I(f"s_add_u32 m0, {sT1}, {FX2 + (p % 2) * 28672}")]
        if p: r += [I(f"v_add_u32 v{vX2d}, {sDX}, v{vX2d}")]
        for s in range(7):
            r += [I(f"buffer_load_dwordx4 v{vX2d}, {srd(SRD_X)}, {sK[s]} offen lds", f"X2_{p}")]
            if s < 6: r += [I("s_add_u32 m0, m0, 4096")]
        return r
    L += dmaW(0) + mksrd(SRD_X, 4, X_BYTES) + direct(dmaX(0)) + ST((4,))
    L += [I(f"v_and_b32 v24, 1, v{r4}"), I(f"v_lshrrev_b32 v25, 5, v0"),
          I("v_bfe_u32 v20, v0, 2, 2"), I("v_lshl_add_u32 v27, v25, 3, v20"),
          I("v_lshl_add_u32 v20, v20, 1, v24"),
          I(f"s_lshl_b32 s11, {sWV}, 1"), I("v_xor_b32 v20, s11, v20"), I("v_lshlrev_b32 v20, 5, v20"),
          I("v_lshl_add_u32 v20, v27, 8, v20"), I("v_lshl_add_u32 v20, v24, 13, v20"),
          I("v_and_b32 v27, 3, v0"), I(f"v_lshl_add_u32 v{vWr[0]}, v27, 3, v20"), I(f"v_xor_b32 v{vWr[1]}, 32, v{vWr[0]}"),
          I("v_bfe_u32 v20, v0, 1, 3"), I("v_xor_b32 v20, v20, v25"), I("v_lshlrev_b32 v20, 4, v20"),
          I("v_and_b32 v27, 31, v0"), I("v_lshl_add_u32 v20, v27, 7, v20"), I(f"v_add_u32 v{vXr[0]}, {FX_RING}, v20")]
    for j in range(1, 4): L += [I(f"v_xor_b32 v{vXr[j]}, {32*j}, v{vXr[0]}")]
    for s in range(1, 7): L += sk_next(s)
    L += dmaW(1) + dmaW(2) + direct(dmaX(1)) + ST((4,))
    L0 = L; L = []
    L += srd_a() + mksrd(SRD_M, 24, MISC_BYTES) + mksrd(SRD_D, 22, 256)
    L += [I(f"s_mov_b32 {sNL2E}, {hex(f2u(-math.log2(math.e)))}"),
          I(f"s_and_b32 s11, {sWV}, 1"), I("s_lshl_b32 s27, s11, 6"), I("v_xor_b32 v23, s27, v22"),
          I(f"s_lshl_b32 s10, {sWV}, 3"), I(f"s_add_u32 s10, s10, {sROW0}"), I("s_add_u32 s10, s10, 64"), I("s_mul_i32 s10, s10, 896"),
          I(f"v_add_u32 v{vX2d}, s10, v23"), I(f"s_lshl_b32 {sT1}, {sWV}, 10"),
          I(f"s_mul_i32 s10, {sODD}, {64*896}"), I(f"s_sub_u32 {sDX}, {32*896}, s10"),
          I(f"s_lshl_b32 s10, {sODD}, 7"), I(f"s_add_u32 s10, s10, {sROW0}"),
          I(f"s_lshr_b32 s10, s10, 4"), I(f"s_mul_i32 s10, s10, {NK}"), I(f"s_lshl_b32 s11, {sC}, 2"),
          I("s_add_u32 s10, s10, s11"), I(f"s_add_u32 s10, s10, {sWV}"), I(f"s_lshl_b32 {sAST}, s10, 10"),
          I(f"s_mul_i32 s10, {sODD}, {4*NK*1024}"), I(f"s_sub_u32 {sT2}, {2*NK*1024}, s10"),
          I("v_lshlrev_b32 v15, 4, v0"),
          I(f"s_mov_b32 s10, {NK*1024}"), I(f"v_mul_u32_u24 v20, s10, v24"), I(f"v_lshl_add_u32 v20, v25, 8, v20"),
          I(f"v_lshl_add_u32 v26, v{p16}, 4, v20")]
    L += [I(f"s_mul_i32 {sRT}, {sN2}, 147"), I(f"s_lshr_b32 {sRT}, {sRT}, 10"),
          I(f"s_mul_i32 s10, {sRT}, 7"), I(f"s_sub_u32 {sNT}, {sN2}, s10"),
          I("s_movk_i32 s27, 896"), I(f"v_mul_u32_u24 v20, s27, v{r8}"),
          I(f"v_and_b32 v21, 6, v{r8}"), I(f"v_xor_b32 v21, v21, v{p8}"),
          I(f"v_lshl_add_u32 v20, v21, 4, v20"),
          I(f"s_lshl_b32 s10, {sNT}, 7"), I(f"v_add_u32 v{v2d[0]}, s10, v20")]
    for i in range(1, 4): L += [I(f"v_add_u32 v{v2d[i]}, {8*896-1024}, v{v2d[i-1]}")]
    L += [I(f"s_mul_i32 {sM02}, {sWV}, {SL2*4096}"),
          I("v_lshrrev_b32 v20, 2, v0"), I("v_bfe_u32 v21, v0, 3, 2"), I(f"v_xor_b32 v21, {sWV}, v21"),
          I("v_lshlrev_b32 v21, 5, v21"), I("v_lshl_add_u32 v21, v20, 7, v21"),
          I("v_and_b32 v20, 3, v0"), I("v_lshl_add_u32 v21, v20, 3, v21"),
          I(f"v_add_u32 v{v2r[0]}, {sM02}, v21")]
    for t in range(1, 4): L += [I(f"v_xor_b32 v{v2r[t]}, {32*t}, v{v2r[0]}")]
    L += [I(f"v_mov_b32 v{vAst}, v26"), I(f"v_lshlrev_b32 v{vHi}, 10, v25")]
    L += mksrd(SRD_W2, 16, WG_BYTES) + mksrd(SRD_WO, 8, WO_BYTES) + mksrd(SRD_O, 20, X_BYTES)
    sPAR, sR0 = "s12", "s13"
    sWb, sAb = ["s14", "s15"], ["s18", "s19"]
    L += [I(f"s_and_b32 {sPAR}, {sRT}, 1"), I(f"s_bfe_u32 s10, {sRT}, 0x10001"), I("s_mul_i32 s10, s10, 3"),
          I(f"s_add_u32 {sR0}, {sNT}, s10"), I(f"s_sub_u32 s10, {sR0}, 7"), I(f"s_cmp_ge_u32 {sR0}, 7"), I(f"s_cselect_b32 {sR0}, s10, {sR0}"),
          I(f"s_mul_i32 s10, {sWV}, {32*896}"), I(f"s_mul_i32 s11, {sPAR}, {128*896}"),
          I(f"s_add_u32 {sWb[0]}, s10, s11"), I(f"s_sub_u32 s10, s10, s11"), I(f"s_add_u32 {sWb[1]}, s10, {128*896}"),
          I(f"s_mul_i32 {sAO}, {sRT}, {5*NK*1024}"), I(f"s_lshl_b32 s10, {sWV}, 10"), I(f"s_add_u32 {sAO}, {sAO}, s10"),
          I(f"s_lshl_b32 s11, {sPAR}, 12"), I(f"s_add_u32 {sAb[0]}, {sAO}, s11"), I(f"s_sub_u32 s10, {sAO}, s11"), I(f"s_add_u32 {sAb[1]}, s10, 4096"),
          I(f"s_mul_i32 {sCW}, {sR0}, {256*896}"), I(f"s_lshl_b32 {sCA}, {sR0}, 13"),
          I(f"s_lshl_b32 s10, {sRB}, 3"), I(f"s_add_u32 s10, s10, {sWV}"), I(f"s_lshl_b32 s11, {sODD}, 2"),
          I(f"s_add_u32 {sCE}, s10, s11"), I(f"s_lshl_b32 {sCE}, {sCE}, 7"), I(f"s_add_u32 {sCE}, {sCE}, {FLAG_OFF}"),
          I(f"s_xor_b32 {sCL}, {sCE}, 512"), I(f"s_add_u32 {sCL}, {sCL}, {FL_LATE}"),
          I(f"s_lshl_b32 s10, {sRT}, 2"), I(f"s_add_u32 s10, s10, {sWV}"), I("s_lshl_b32 s10, s10, 7"), I(f"s_add_u32 {sN2}, s10, {FLAG_OFF}")]
    sFE = sN2
    U1 = Stream(blockify(L)); L = L0

    def readsW(u):
        return [I(f"ds_read_b64_tr_b16 {aq(wfr(2*u+e, ct)+2*h, 2)}, v{vWr[ct]} offset:{FW_RING + (u%FW_R)*16384 + e*4096 + h*1024}", f"r{u}")
                for e in range(2) for ct in range(2) for h in range(2)]
    def xb1(u, e, T): return XB + (4 + (u % 2) * 4 + e * 2 + T) * 4
    def readsX(u):
        s, e1 = divmod(u, 2)
        return [I(f"ds_read_b128 {vq(xb1(u, e, T))}, v{vXr[2*e1+e]} offset:{(s%3)*FX_SLOT + T*4096}", f"r{u}") for e in range(2) for T in range(2)]
    def mm1(u):
        return [mfma32(vq(acc(T, ct), 16), aq(wfr(2*u+e, ct)), vq(xb1(u, e, T)), u == 0 and e == 0)
                for e in range(2) for T in range(2) for ct in range(2)]
    SC = Sched(L, units=6, ds=2, scal=3)
    dm = Stream(every=1)
    for u in range(14):
        if u == 0: L += ST((4,))
        L += [Wait(vm=[f"W{u}", f"X{u//2}"], lgkm="all")] + (ST((4,)) if u < 3 else []) + [I("s_barrier")]
        L += ST((0, 1) if u in (0, 7) else (1,))
        if u == 0:
            L += readsX(0) + readsW(0) + dmaW(3) + direct(dmaX(2))
            continue
        if u + 3 < 14: dm.add(dmaW(u + 3))
        if u % 2 == 0 and u // 2 + 2 < 7: dm.add(dmaX(u // 2 + 2))
        if u == 11: dm.add(dmaX2(0) + dmaX2(1) + [I(f"buffer_load_dword v{vRdy}, off, {srd(SRD_D)}, 0 sc1", "rdy")])
        rd = Stream(readsX(u) + readsW(u))
        SC.run(mm1(u - 1), [dm, rd, U1], flush=[rd] + ([dm] if u < 11 or u == 13 else []) + ([U1] if u == 10 else []))
    NF2 = 84
    def rd2(n):
        T, k = divmod(n, 28); s, j = divmod(k, 4)
        return I(f"ds_read_b128 {vq(XB + (n % 12)*4)}, v{vXr[j]} offset:{(T % 2)*28672 + s*4096}", f"q{n//4}")
    ORD = [14, 15, 16, 17] + list(range(14))
    def slot2(q): return ORD.index(q) % SL2
    def w2(q, t): return ("a", (q * 4 + t) * 4) if q < 16 else ("v", W2V + ((q - 16) * 4 + t) * 4)
    def dmaW2(q):
        r = [I(f"s_add_u32 m0, {sM02}, {slot2(q) * 4096}")]
        if q == 14: r += [I(f"s_mul_i32 {sSOFF}, {sWV}, {4*28*896}")]
        elif q > 14: r += [I(f"s_add_u32 {sSOFF}, {sSOFF}, {28*896}")]
        else:
            if q: r += [I(f"s_add_u32 {sCW}, {sCW}, {256*896}"), Block([I(f"s_cmp_eq_u32 {sCW}, {7*256*896}"), I(f"s_cselect_b32 {sCW}, 0, {sCW}")])]
            r += [I(f"s_add_u32 {sSOFF}, {sCW}, {sWb[q >= 7]}")]
        for i in range(4):
            r.append(I(f"buffer_load_dwordx4 v{v2d[i]}, {srd(SRD_W2 if q < 14 else SRD_WO)}, {sSOFF} offen offset:{1024*i} lds", f"V{q}"))
        return r
    def rdW2(q):
        r = []
        for t in range(4):
            k, n = w2(q, t)
            for h in range(2):
                r.append(I(f"ds_read_b64_tr_b16 {k}[{n+2*h}:{n+2*h+1}], v{v2r[t]} offset:{slot2(q)*4096 + h*(2048 if q >= 14 else 1024)}", f"w{q}"))
        return r
    L += [Wait(vm="X2_0", lgkm="all"), I("s_barrier")] + ST()
    L += [I(f"v_add_u32 v{vXr[j]}, {FX2 - FX_RING}, v{vXr[j]}") for j in range(4)]
    rd = Stream([rd2(n) for n in range(8)])
    SC.run(mm1(13), [rd], flush=[rd])
    SC.ds = 2
    def epi(T):
        r = []
        for ct in range(2):
            a0 = acc(T, ct)
            for pr in range(4):
                ga = a0 + 2*pr; gb = ga + 1; ua = ga + 8; ub = ua + 1
                ta, tb = vT[2*(pr&1)], vT[2*(pr&1)+1]
                r += [I(f"v_mul_f32 v{ta}, {sNL2E}, v{ga}"), I(f"v_mul_f32 v{tb}, {sNL2E}, v{gb}"),
                      I(f"v_exp_f32 v{ta}, v{ta}"), I(f"v_exp_f32 v{tb}, v{tb}"),
                      I(f"v_mul_f32 v{ga}, v{ga}, v{ua}"), I(f"v_mul_f32 v{gb}, v{gb}, v{ub}"),
                      I(f"v_add_f32 v{ta}, 1.0, v{ta}"), I(f"v_add_f32 v{tb}, 1.0, v{tb}"),
                      I(f"v_rcp_f32 v{ta}, v{ta}"), I(f"v_rcp_f32 v{tb}, v{tb}"),
                      I(f"v_mul_f32 v{ga}, v{ga}, v{ta}"), I(f"v_mul_f32 v{gb}, v{gb}, v{tb}"),
                      I(f"v_cvt_pk_bf16_f32 v{a0 + pr}, v{ga}, v{gb}")]
            r += [I(f"buffer_store_dwordx4 {vq(a0)}, v{vAst}, {srd(SRD_A)}, {sAST} offen offset:{512*ct} sc1", f"st{T}_{ct}")]
        if T < 4: r += [I(f"s_add_u32 {sAST}, {sAST}, {sT2}")]
        return r
    for_t = {}
    bk = Stream(ooo=10)
    def add_epi(T):
        e = epi(T)
        for x in e: for_t[id(x)] = T
        bk.add(e)
    bk.add([I("s_nop 7")])
    for T in range(2): add_epi(T)
    side = Stream(every=CFG["EV2"])
    for q in (14, 15, 16, 17, 0, 1): side.add(dmaW2(q))
    late_side = []
    for k, q in enumerate((14, 15, 16, 17)):
        late_side += [Wait(vm=f"V{q}")] + rdW2(q)
        if k: late_side += [Wait(lgkm=f"w{q-1}")] + dmaW2(1 + k)
    late_side += [Wait(lgkm="w17")] + dmaW2(5)
    late_side += [I(f"v_add_u32 v{v2r[t]}, v{vHi}, v{v2r[t]}") for t in range(4)]
    state = {"pub": None}
    def seen(x):
        if x.tag == "st2_1": state["pub"] = SC.g + CFG["PUBD"]
    for b in range(21):
        if b == 5: L += [Wait(vm="X2_1"), I("s_barrier")]
        if b == 7:
            print("side at refill:", len(side))
            SC.flush(side); L += [I("s_barrier")]; side.add(dmaX2(2) + late_side); side.every = 1
        if b == 12: L += [Wait(vm="X2_2"), I("s_barrier")]
        L += [Wait(lgkm=f"q{b}")]
        reads = Stream([rd2(n) for n in range(4 * (b + 2), min(4 * (b + 3), NF2))], rate=0.5)
        reads.credit = 1.0
        for n in range(4 * b, 4 * b + 4):
            T2, k = divmod(n, 28); T = 2 + T2
            if k in (0, 14): L += ST((3,))
            if k == 0 and T == 4: print("side at last tile:", len(side))
            if k == 0 and T >= NSL:
                while any(for_t.get(id(x)) == T - NSL for x in bk.q): L.append(bk.q.pop(0))
            for ct in range(2):
                L.append(mfma32(vq(acc(T, ct), 16), aq(wfr(k, ct)), vq(XB + (n % 12) * 4), k == 0))
                SC.gap([reads, side, bk], seen)
                if state["pub"] == SC.g:
                    L += publish("h", vRdy, vOne, sCE, "st2_1") + ST(); state["pub"] = "done"
            if T == 4 and k == 1:
                side.every = 2; SC.ds = 2
                side.add([Wait(vm="V0")] + rdW2(0))
                for q in range(1, 6):
                    side.add([Wait(vm=f"V{q}")] + rdW2(q) + [Wait(lgkm=f"w{q-1}")] + dmaW2(q + 5))
                side.add([Wait(lgkm="w5")] + dmaW2(11))
            if k == 27:
                if len(bk) < 12: bk.add([I("s_nop 7"), I("s_nop 3")])
                add_epi(T)
        SC.flush(reads)
    print("side left:", len(side), "backlog after pass 2:", len(bk), "pub", state["pub"], SC.g)
    assert state["pub"] == "done"
    L += ST((0, 3))
    vF = 6
    L += [I(f"buffer_load_dword v{vF}, off, {srd(SRD_M)}, {sFE} sc1", "ef")]
    bq = fix_trans(pkify(bk.q))
    sq = direct(side.q); side.q = []
    ratio = len(sq) / max(1, len(bq) - 10)
    ac = 0.0
    for k, x in enumerate(bq):
        L.append(x)
        ac += ratio
        while ac >= 1.0 and sq:
            y = sq.pop(0); L.append(y); ac -= 1.0
            if y.kind == "salu" and y.op.startswith("s_cmp"): L.append(sq.pop(0))
    L += sq
    L += ST((0, 3))
    SC = Sched(L)
    vAl, vRw, vRr, vOut, vOf, vOu2 = 15, [1, 2, 3], 4, 5, 14, 7
    vS = [8, 9, 10, 11, 12]
    AC2 = 16
    ABUF = [216, 236, 96, 116, 136, 156]
    PF = CFG['PF']
    def ab(q, T): return ABUF[q % 6] + T * 4
    def ldA(q):
        if q < 14:
            r = []
            if q: r += [I(f"s_add_u32 {sCA}, {sCA}, 8192"), Block([I(f"s_cmp_eq_u32 {sCA}, {7*8192}"), I(f"s_cselect_b32 {sCA}, 0, {sCA}")])]
            r += [I(f"s_add_u32 {sT0}, {sCA}, {sAb[q >= 7]}")]
        elif q == 14:
            r = [I(f"s_mul_i32 {sCA}, {sWV}, 3072"), I(f"s_add_u32 {sCA}, {sCA}, {sAO}"), I(f"s_add_u32 {sCA}, {sCA}, {56*1024}"),
                 I(f"s_mov_b32 {sT0}, {sCA}")]
        else: r = [I(f"s_add_u32 {sT0}, {sCA}, {(q-14)*1024}")]
        for T in range(5):
            r.append(I(f"buffer_load_dwordx4 {vq(ab(q, T))}, v{vAl}, {srd(SRD_A)}, {sT0} offen sc1", f"A{q}"))
            if T < 4: r.append(I(f"s_add_u32 {sT0}, {sT0}, {NK*1024}"))
        return r
    def mm2(q):
        return [mfma(vq(AC2 + (T*4+t)*4), rq(w2(q, t)), vq(ab(q, T)), q == 0) for T in range(5) for t in range(4)]
    def check(tag, need, name):
        return [Wait(vm=tag), I(f"v_cmp_gt_u32 vcc, {need}, v{vF}")] + spin_init() + [I(f"s_cbranch_vccnz L_poll_{name}"), I(f"L_got_{name}:")]
    def poll(name, need, ld):
        return [I(f"L_poll_{name}:")] + spin_step() + [ld, I("s_waitcnt vmcnt(0)"), I(f"v_cmp_gt_u32 vcc, {need}, v{vF}"), I("s_nop 0"),
                I(f"s_cbranch_vccnz L_poll_{name}"), I(f"s_branch L_got_{name}")]
    L += check("ef", 7, "e") + ST((0, 2))
    L += direct(ldA(0) + ldA(1))
    L += [Wait(vm="st4_1"), I("s_mov_b64 exec, 1"), I(f"buffer_atomic_add v{vOne}, off, {srd(SRD_M)}, {sCL} sc1", "pub"), I("s_mov_b64 exec, -1")] + ST()
    L += [I(f"s_add_u32 {sFE}, {sFE}, {FL_LATE}")]
    for q in range(2, PF): L += direct(ldA(q))
    L += direct([Wait(vm="V7")] + rdW2(6) + rdW2(7))
    setup = [I(f"s_mul_i32 s10, {sRT}, 80"), I("s_add_u32 s11, s10, 79"), I("s_lshr_b32 s10, s10, 7"), I("s_lshr_b32 s11, s11, 7"),
             I("s_min_u32 s11, s11, 15"), I("s_lshl_b32 s10, s10, 9"), I("s_lshl_b32 s11, s11, 9"),
             I(f"v_mov_b32 v{vOf}, s11"), I(f"v_writelane_b32 v{vOf}, s10, 0"),
             I(f"s_lshl_b32 s27, {sWV}, 7"), I(f"s_add_u32 s27, s27, {FLAG_OFF + FL_O}"),
             I(f"s_mul_i32 s10, {sWV}, 15360"), I(f"s_add_u32 s10, s10, {RED}"), I(f"v_add_u32 v{vRr}, s10, v{vAl}")]
    for t in range(1, 4):
        setup += [I(f"s_xor_b32 s10, {sWV}, {t}"), I("s_mul_i32 s10, s10, 15360"), I(f"s_add_u32 s10, s10, {RED + (t-1)*5120}"),
                  I(f"v_add_u32 v{vRw[t-1]}, s10, v{vAl}")]
    setup += [I(f"s_mul_i32 s10, {sRT}, {80*896}"), I(f"s_lshl_b32 s11, {sNT}, 7"), I("s_add_u32 s10, s10, s11"),
              I(f"s_lshl_b32 s11, {sWV}, 5"), I("s_add_u32 s10, s10, s11"),
              I("v_and_b32 v13, 15, v0"), I("s_movk_i32 s11, 896"), I(f"v_mul_u32_u24 v{vOut}, s11, v13"), I(f"v_lshrrev_b32 v{vS[0]}, 4, v0"),
              I(f"v_lshl_add_u32 v{vOut}, v{vS[0]}, 3, v{vOut}"), I(f"v_add_u32 v{vOut}, s10, v{vOut}"),
              I("v_lshlrev_b32 v13, 2, v13"),
              I(f"v_and_b32 v{vS[0]}, 1, v{vS[0]}"), I(f"s_movk_i32 s11, {16*896-8}"), I(f"v_mad_u32_u24 v{vOu2}, v{vS[0]}, s11, v{vOut}"),
              I(f"s_lshl_b32 s26, {sWV}, 13"), I(f"s_mul_i32 s11, {sRT}, 320"), I("s_add_u32 s26, s26, s11")]
    ld_late = I(f"buffer_load_dword v{vF}, off, {srd(SRD_M)}, {sFE} sc1", "lf")
    ld_o = I(f"buffer_load_dword v{vF}, v{vOf}, {srd(SRD_M)}, s27 offen sc1", "of")
    for q in range(16):
        G, R, U = Stream(every=3), Stream(), Stream()
        if q == 7 - PF: L += check("lf", 7, "l") + ST()
        if q == 14 - PF: L += check("of", 4, "o") + ST()
        if q == 5 - PF: G.add([ld_late])
        if q == 12 - PF: G.add([ld_o])
        if q + PF < 18: G.add(ldA(q + PF))
        if q < 2: G.add([Wait(lgkm=f"w{6 + q}")] + dmaW2(12 + q)); G.every = 2
        if 2 <= q < 8: R.add([Wait(vm=f"V{q + 6}")] + rdW2(q + 6))
        if q == 5: U.add(setup[:20])
        if q == 6: U.add(setup[20:36])
        if q == 7: U.add(setup[36:])
        if q + PF == 17:
            G.every = 2
            G.add([I(f"buffer_load_dword v{vS[T]}, v13, {srd(SRD_M)}, s26 offen offset:{64*T} sc1", "S") for T in range(5)])
        if q == 14: L += [I("s_barrier")]
        L += [Wait(vm=f"A{q}", lgkm=f"w{q}")]
        if q < 13: L += ST((2,))
        SC.run(mm2(q), [G, R, U], flush=[G, R, U])
    L += ST()
    a16, a17 = mm2(16), mm2(17)
    order = [(T, t) for t in (1, 2, 3, 0) for T in range(5)]
    main = []
    for (T, t) in order: main += [a16[T*4+t], a17[T*4+t]]
    L += [Wait(vm="A17")]
    pend = []
    for k, m in enumerate(main):
        L.append(m)
        if k % 2 == 1 and order[k // 2][1] != 0:
            T, t = order[k // 2]
            pend.append((k + 9, I(f"ds_write_b128 v{vRw[t-1]}, {vq(AC2 + (T*4+t)*4)} offset:{T*1024}", "rw")))
        while pend and pend[0][0] <= k:
            L.append(pend.pop(0)[1])
    L += [x for _, x in pend]
    L += [Wait(lgkm="all"), I("s_barrier")] + ST()
    RB = 96
    for T in range(5):
        for sl in range(3):
            L.append(I(f"ds_read_b128 {vq(RB + (sl*5+T)*4)}, v{vRr} offset:{sl*5120 + T*1024}", f"rr{T}"))
    L += [Wait(vm="S")]
    osc = " sc1" if CFG["OSC"] else ""
    for T in range(5):
        a = AC2 + T*16
        d = AC2 + (T & ~1)*16 + 4 + 2*(T & 1)
        F = []
        for r in range(4): F.append(I(f"v_add_f32 v{RB + (5+T)*4 + r}, v{RB + (5+T)*4 + r}, v{RB + (10+T)*4 + r}"))
        for r in range(4): F.append(I(f"v_add_f32 v{a+r}, v{a+r}, v{RB + T*4 + r}"))
        for r in range(4): F.append(I(f"v_add_f32 v{a+r}, v{a+r}, v{RB + (5+T)*4 + r}"))
        for r in range(4): F.append(I(f"v_mul_f32 v{a+r}, v{a+r}, v{vS[T]}"))
        L += [Wait(lgkm=f"rr{T}")] + pkify(F)
        L += [I(f"v_cvt_pk_bf16_f32 v{d}, v{a}, v{a+1}"), I(f"v_cvt_pk_bf16_f32 v{d+1}, v{a+2}, v{a+3}")]
        if T & 1:
            q4 = d - 2
            L += [I(f"s_mov_b32 s10, {(T-1)*16*896}"), I("s_nop 0"),
                  I(f"v_permlane16_swap_b32 v{q4}, v{q4+2}"), I(f"v_permlane16_swap_b32 v{q4+1}, v{q4+3}"),
                  I(f"buffer_store_dwordx4 {vq(q4)}, v{vOu2}, {srd(SRD_O)}, s10 offen" + osc, "out")]
        elif T == 4:
            L += [I(f"s_mov_b32 s10, {T*16*896}"), I(f"buffer_store_dwordx2 v[{d}:{d+1}], v{vOut}, {srd(SRD_O)}, s10 offen" + osc, "out")]
    L += ST.dump(65536, 16)
    if CFG["PAD"]:
        L += [I("L_pad:"), I("s_memrealtime s[82:83]"), I("s_waitcnt lgkmcnt(0)"), I("s_sub_u32 s82, s82, s80"),
              I(f"s_cmp_lt_u32 s82, {CFG['PAD']}"), I("s_cbranch_scc1 L_pad")]
    extra = slow("h", vRdy) + poll("e", 7, I(f"buffer_load_dword v{vF}, off, {srd(SRD_M)}, {sFE} sc1")) + \
            poll("l", 7, I(ld_late.text)) + poll("o", 4, I(ld_o.text))
    return L, extra

QW_RING, QW_SLOT = 0, 24576
QX_RING, QX_SLOT = 98304, 20480
QG = QX_RING + 3 * QX_SLOT
assert QG + 4096 <= 163840

def qkv():
    ST = Stamps([40, 41, 42, 43, 44, 45, 46, 47, 48, 49, 50, 51])
    vWd = [1, 2]; vXd = [3, 4]; vWr = [[5, 6], [7, 8]]; vXr = [9, 10]
    vQ1b, vQA, vQB_, vQH, vQ1 = 11, 12, 13, 14, [15, 16]
    vRdy = 47
    K0 = 48; K1 = K0 + 36; V0 = K1 + 36; V1 = V0 + 36; Q0 = V1 + 36; Q1 = Q0 + 32
    assert Q1 + 32 == 256
    WF = 0; XF = 48
    def wf(u, sec, t): return WF + (u % 2) * 24 + (sec * 2 + t) * 4
    def xf(u, T): return XF + (u % 2) * 36 + T * 4
    r4, p16, r8, p8 = 17, 18, 19, 20
    L = [I("L_qkv:"), I(f"s_mov_b32 {sJ}, s10")] + ST(True)
    L += rot_small(sQB, None)
    L += [I(f"v_lshrrev_b32 v{r4}, 4, v0"), I(f"v_and_b32 v{p16}, 15, v0"),
          I(f"v_lshrrev_b32 v{r8}, 3, v0"), I(f"v_and_b32 v{p8}, 7, v0"),
          I(f"s_mul_i32 s11, {sJ}, 224"), I(f"s_cmp_eq_u32 {sJ}, 3"), I("s_cselect_b32 s11, 640, s11"),
          I(f"s_mul_i32 s26, {sWV}, {8*2688}"), I("s_add_u32 s11, s11, s26"),
          I("s_movk_i32 s27, 2688"), I(f"v_mul_u32_u24 v21, s27, v{r4}"), I("v_add_u32 v21, s11, v21"),
          I(f"s_and_b32 s26, {sWV}, 1"), I("s_lshl_b32 s26, s26, 3"),
          I(f"v_lshlrev_b32 v22, 1, v{r4}"), I(f"v_sub_u32 v22, v{p16}, v22"), I("v_xor_b32 v22, s26, v22"),
          I("v_and_b32 v22, 15, v22"),
          I(f"v_lshl_add_u32 v{vWd[0]}, v22, 4, v21"),
          I(f"v_add_u32 v{vWd[1]}, {4*2688-1024}, v{vWd[0]}"),
          I(f"s_lshl_b32 {sM0W}, {sWV}, 11"),
          I("s_movk_i32 s27, 896"), I(f"v_mul_u32_u24 v21, s27, v{r8}"),
          I(f"v_xor_b32 v22, v{r4}, v{p8}"), I("v_lshl_add_u32 v21, v22, 4, v21"),
          I("s_lshl_b32 s26, s26, 3"),
          I(f"v_xor_b32 v{vXd[0]}, s26, v21"), I(f"v_xor_b32 v{vXd[1]}, 64, v{vXd[0]}"),
          I(f"s_mul_i32 {sM0X}, {sWV}, 5120"), I(f"s_add_u32 {sM0X}, {sM0X}, {QX_RING}"),
          I(f"s_lshl_b32 s26, {sQB}, 7"), I(f"s_mul_i32 s27, {sWV}, 40"), I("s_add_u32 s26, s26, s27"),
          I("s_sub_u32 s26, s26, 16")]
    def xrow(i):
        r = [I(f"s_add_u32 s27, s26, {8*i}"), I(f"s_mul_i32 {sXROW[i]}, s27, 896")]
        if i < 2: r += [I("s_cmp_lt_i32 s27, 0"), I(f"s_cselect_b32 {sXROW[i]}, {OOB}, {sXROW[i]}")]
        if i >= 3: r += [I(f"s_cmp_eq_u32 {sWV}, 3"), I(f"s_cselect_b32 {sXROW[i]}, {OOB}, {sXROW[i]}")]
        return r
    def dmaW(u):
        s, e = divmod(u, 2)
        r = []
        for sec in range(3):
            r += [I(f"s_add_u32 m0, {sM0W}, {QW_RING + (u % 4) * QW_SLOT + sec * 8192}")]
            if sec == 0:
                r += [I(f"s_mul_i32 {sSOFF}, {sK[s]}, 1344")]
                if e: r += [I(f"s_add_u32 {sSOFF}, {sSOFF}, 86016")]
            else:
                r += [I(f"s_add_u32 {sSOFF}, {sSOFF}, 896")]
            for i in range(2):
                r.append(I(f"buffer_load_dwordx4 v{vWd[i]}, {srd(SRD_W)}, {sSOFF} offen offset:{1024*i} lds", f"W{u}"))
        return r
    def dmaX(s):
        r = []
        for i in range(5):
            r += [I(f"s_add_u32 m0, {sM0X}, {(s % 3) * QX_SLOT + i * 1024}"), I(f"s_add_u32 {sT0}, {sXROW[i]}, {sK[s]}"),
                  I(f"buffer_load_dwordx4 v{vXd[i % 2]}, {srd(SRD_X)}, {sT0} offen lds", f"X{s}")]
        return r
    for i in range(5): L += xrow(i)
    L += [I(f"s_lshl_b32 s26, {sWV}, 7"), I("v_lshl_add_u32 v23, v0, 1, s26")]
    L += [Wait(lgkm="all")]
    L += mksrd(SRD_W, 6, WQKV_BYTES) + dmaW(0)
    L += mksrd(SRD_X, 4, X_BYTES) + dmaX(0) + mksrd(SRD_M, 18, 896)
    L += [I(f"buffer_load_ushort v24, v23, {srd(SRD_M)}, 0 offen", "gw"),
          I(f"buffer_load_ushort v25, v23, {srd(SRD_M)}, 0 offen offset:512", "gw")]
    L += [I("v_bfe_u32 v21, v0, 2, 2"), I(f"v_lshl_add_u32 v22, v{r4}, 3, v21"),
          I(f"v_and_b32 v26, 1, v{r4}"), I("v_lshl_add_u32 v21, v26, 2, v21"),
          I("v_and_b32 v26, 3, v0"), I("v_lshlrev_b32 v27, 3, v26"), I("v_lshl_add_u32 v21, v21, 5, v27"),
          I(f"s_mul_i32 s26, {sWV}, 56"), I(f"s_cmp_eq_u32 {sJ}, 3"), I("s_cselect_b32 s27, 32, 0"),
          I("s_add_u32 s26, s26, s27"), I("v_add_u32 v21, s26, v21"),
          I("v_and_b32 v27, 0xff, v21"), I(f"v_lshl_add_u32 v{vWr[0][0]}, v22, 8, v27"),
          I("v_add_u32 v21, 32, v21"), I("v_and_b32 v27, 0xff, v21"), I(f"v_lshl_add_u32 v{vWr[0][1]}, v22, 8, v27"),
          I(f"v_add_u32 v{vWr[1][0]}, {2*QW_SLOT}, v{vWr[0][0]}"), I(f"v_add_u32 v{vWr[1][1]}, {2*QW_SLOT}, v{vWr[0][1]}"),
          I("v_cmp_eq_u32 vcc, 3, v26"),
          I(f"v_lshlrev_b32 v27, 3, v22"), I(f"v_add_u32 v27, {QG}, v27"),
          I(f"v_cndmask_b32 v{vQ1b}, v{vWr[0][1]}, v27, vcc"),
          I(f"v_mov_b32 v27, 1"), I(f"v_cndmask_b32 v{vQA}, v27, 0, vcc"),
          I(f"v_cndmask_b32 v{vQB_}, 0, v27, vcc"),
          I(f"v_mov_b32 v27, 0x400"), I(f"v_cndmask_b32 v{vQH}, v27, 32, vcc"),
          I(f"v_lshrrev_b32 v21, 1, v{p16}"), I(f"v_xor_b32 v21, v21, v{r4}"), I("v_lshlrev_b32 v21, 4, v21"),
          I(f"v_lshl_add_u32 v21, v{p16}, 7, v21"),
          I(f"v_add_u32 v{vXr[0]}, {QX_RING}, v21"), I(f"v_xor_b32 v{vXr[1]}, 64, v{vXr[0]}")]
    for s in range(1, 7): L += sk_next(s)
    L += dmaW(1)
    L += srd_a() + mksrd(SRD_D, 22, 256)
    L += [I("v_lshlrev_b32 v23, 2, v23"), I(f"v_add_u32 v23, {QG}, v23"),
          Wait(vm="gw"),
          I("ds_write_b16 v23, v24"), I("ds_write_b16 v23, v25 offset:2048")]
    def reads(u):
        s, e = divmod(u, 2)
        sl = u % 4
        a = [I(f"s_lshl_b32 {sT1}, {sK[s]}, 2")]
        if e: a += [I(f"s_add_u32 {sT1}, {sT1}, 256")]
        G = [a, [I(f"s_mov_b32 {sT2}, {sl * QW_SLOT}"), I(f"v_mad_u32_u24 v{vQ1[0]}, v{vQB_}, {sT1}, v{vQ1b}")],
             [I(f"v_mad_u32_u24 v{vQ1[0]}, v{vQA}, {sT2}, v{vQ1[0]}"), I(f"v_add_u32 v{vQ1[1]}, v{vQH}, v{vQ1[0]}")]]
        for T in range(9):
            G.append([I(f"ds_read_b128 {aq(xf(u, T))}, v{vXr[e]} offset:{(s % 3) * QX_SLOT + T * 2048}", f"r{u}")])
        for sec in (1, 2, 0):
            for t in range(2):
                for h in range(2):
                    if sec == 0 and t == 1:
                        G.append([I(f"ds_read_b64_tr_b16 {aq(wf(u,sec,t)+2*h, 2)}, v{vQ1[h]}", f"r{u}")])
                    else:
                        G.append([I(f"ds_read_b64_tr_b16 {aq(wf(u,sec,t)+2*h, 2)}, v{vWr[sl//2][t]} offset:{(sl%2)*QW_SLOT + sec*8192 + h*1024}", f"r{u}")])
        return G
    def mm(u):
        r = []
        for T in range(9):
            r += [mfma(vq(K0 + 4*T), aq(wf(u,1,0)), aq(xf(u,T)), u == 0), mfma(vq(K1 + 4*T), aq(wf(u,1,1)), aq(xf(u,T)), u == 0)]
        for T in range(9):
            r += [mfma(vq(V0 + 4*T), aq(xf(u,T)), aq(wf(u,2,0)), u == 0), mfma(vq(V1 + 4*T), aq(xf(u,T)), aq(wf(u,2,1)), u == 0)]
        for T in range(1, 9):
            r += [mfma(vq(Q0 + 4*(T-1)), aq(wf(u,0,0)), aq(xf(u,T)), u == 0), mfma(vq(Q1 + 4*(T-1)), aq(wf(u,0,1)), aq(xf(u,T)), u == 0)]
        return r
    i16, g4 = 18, 17
    sel = [21, 22, 23, 24]; vMq = 25; vSt = 26
    C = [I(f"v_and_b32 v38, 1, v{i16}"), I(f"v_cmp_eq_u32 {mODD}, 1, v38"),
         I(f"v_lshl_add_u32 v38, v{g4}, 2, v38"),
         I(f"v_cmp_le_u32 {mC0}, v38, v{i16}"), I("v_add_u32 v38, 2, v38"), I(f"v_cmp_le_u32 {mC1}, v38, v{i16}"),
         I(f"v_cmp_eq_u32 {mG3}, 3, v{g4}"),
         I("v_mov_b32 v39, 0x0c0c0100"), I("v_mov_b32 v40, 0x01000c0c"),
         I(f"v_cndmask_b32 v39, v39, v40, {mODD}"),
         I("v_mov_b32 v41, 0x0c0c0302"), I("v_mov_b32 v40, 0x03020c0c"),
         I(f"v_cndmask_b32 v41, v41, v40, {mODD}"),
         I("v_mov_b32 v40, 0x0c0c0c0c"),
         I(f"v_cndmask_b32 v{sel[0]}, v39, v40, {mC0}"), I(f"v_cndmask_b32 v{sel[1]}, v41, v40, {mC1}"),
         I(f"v_cndmask_b32 v{sel[2]}, v40, v39, {mC0}"), I(f"v_cndmask_b32 v{sel[3]}, v40, v41, {mC1}"),
         I(f"v_cndmask_b32 v{vMq}, -1, 0, {mG3}"),
         I(f"v_lshlrev_b32 v{vSt}, 4, v0"), I("v_lshlrev_b32 v44, 2, v0"),
         Block([I(f"s_cmp_eq_u32 {sQB}, 0"), I(f"s_cselect_b64 {mC0F}, {mC0}, -1"), I(f"s_cselect_b64 {mC1F}, {mC1}, -1")]),
         I(f"s_mov_b32 {sSCL}, {hex(f2u(28 ** -0.5 * math.log2(math.e)))}"),
         I(f"s_mov_b32 {sNL2E}, {hex(f2u(-math.log2(math.e)))}"),
         I(f"s_mul_i32 s26, {sQB}, {8*NK}"), I(f"s_lshl_b32 s27, {sJ}, 2"), I("s_add_u32 s26, s26, s27"),
         I(f"s_add_u32 s26, s26, {sWV}"), I("s_add_u32 s26, s26, 56"), I(f"s_lshl_b32 {sAST}, s26, 10"),
         I(f"s_lshl_b32 s26, {sJ}, 13"), I(f"s_lshl_b32 s27, {sQB}, 9"), I("s_add_u32 s26, s26, s27"),
         Block([I(f"s_cmp_eq_u32 {sWV}, 0"), I(f"s_cselect_b32 s26, s26, {OOB}")])]
    C += mksrd(SRD_M, 24, MISC_BYTES)
    SC = Sched(L)
    for u in range(14):
        L += [Wait(vm=[f"W{u}", f"X{u//2}"], lgkm="all"), I("s_barrier")]
        if u in (0, 2, 7): L += ST((0, 1, 2))
        elif u in (1, 3, 4, 5, 9, 11, 13): L += ST((1,))
        if u == 0:
            L += [x for g in reads(0) for x in g] + dmaW(2) + dmaX(1)
            continue
        G = Stream(every=CFG["EVQ"] if u > 1 else 3)
        if u == 1: G.add(dmaW(3) + dmaX(2))
        if u + 3 < 14: G.add(dmaW(u + 3))
        if u % 2 == 0 and u // 2 + 2 < 7: G.add(dmaX(u // 2 + 2))
        if u == 12: G.add([I(f"buffer_load_dword v{vRdy}, off, {srd(SRD_D)}, 0 sc1", "rdy")])
        R = Stream([x for g in reads(u) for x in g], rate=0.55)
        U = Stream(C if u == 13 else [])
        SC.run(mm(u - 1), [G, R, U], flush=[G, R, U])
    VB0, VB1 = K1, K1 + 18
    def pk4(d, a, b):
        return [I(f"v_cvt_pk_bf16_f32 v{d[0]}, v{a}, v{a+1}"), I(f"v_cvt_pk_bf16_f32 v{d[1]}, v{a+2}, v{a+3}"),
                I(f"v_cvt_pk_bf16_f32 v{d[2]}, v{b}, v{b+1}"), I(f"v_cvt_pk_bf16_f32 v{d[3]}, v{b+2}, v{b+3}")]
    packK, packV, packQ = [], [], []
    for T in range(9):
        a = K0 + 4*T; packK += pk4([a, a+1, a+2, a+3], a, K1 + 4*T)
        packV += pk4([VB0+2*T, VB0+2*T+1, VB1+2*T, VB1+2*T+1], V0 + 4*T, V1 + 4*T)
    for T in range(8):
        a = Q0 + 4*T
        packQ += pk4([a, a+1, a+2, a+3], a, Q1 + 4*T) + [I(f"v_and_b32 v{a+2}, v{vMq}, v{a+2}"), I(f"v_and_b32 v{a+3}, v{vMq}, v{a+3}")]
    L += [Wait(lgkm="all")] + ST()
    m13 = mm(13)
    m13 = m13[36:] + m13[:36]
    F = Stream(packQ + packK)
    SC.run(m13[:8], [])
    SC.run(m13[8:], [F], flush=[F])
    def sw(n, a, b): return I(f"v_permlane{n}_swap_b32 v{a}, v{b}")
    Z = [Q1 + 12, Q1 + 28]
    L += [sw(32, Q1, Q1 + 8), sw(32, Q1 + 4, Q1 + 12), sw(32, Q1 + 16, Q1 + 24), sw(32, Q1 + 20, Q1 + 28)] + packV[:2]
    L += [sw(16, Q1 + 8, Q1 + 12), sw(16, Q1 + 24, Q1 + 28)]
    G = []
    for z0, z, g, o in ((Z[0], 38, 40, 42), (Z[1], 39, 41, 43)):
        G.append([I(f"v_cvt_pk_bf16_f32 v{z}, v{z0}, v{z0}"), I(f"v_and_b32 v{z}, 0xffff0000, v{z}"),
                  I(f"v_mul_f32 v{z}, {sNL2E}, v{z}"), I(f"v_exp_f32 v{z}, v{z}"), I(f"v_add_f32 v{z}, 1.0, v{z}"),
                  I(f"v_rcp_f32 v{g}, v{z}"), I(f"v_cvt_pk_bf16_f32 v{g}, v{g}, v{g}"), I(f"v_and_b32 v{g}, 0xffff0000, v{g}"),
                  I(f"v_sub_f32 v{o}, 1.0, v{g}"), I(f"v_cvt_pk_bf16_f32 v{o}, v{o}, v{o}"), I(f"v_and_b32 v{o}, 0xffff0000, v{o}"),
                  I(f"v_max_f32 v{o}, {hex(f2u(1e-30))}, v{o}"), I(f"v_rcp_f32 v{z}, v{o}"), I(f"v_mul_f32 v{g}, v{g}, v{z}")])
    sig = [x for ab in zip(*G) for x in ab]
    sig += [I(f"buffer_store_dword v42, v44, {srd(SRD_M)}, s26 offen sc1", "st"),
            I(f"buffer_store_dword v43, v44, {srd(SRD_M)}, s26 offen offset:256 sc1", "st")]
    def smm(gr):
        r = []
        for k in range(4):
            T = 1 + 4*gr + k; b = Q1 + 8*k; q = Q0 + 4*(T-1)
            r += [mfma(vq(b), vq(K0 + 4*(T-1)), vq(q), True), mfma(vq(b + 4), vq(K0 + 4*T), vq(q), True)]
        return r
    def reduce4(op, m, mid):
        return [sw(32, m[0], m[2]), sw(32, m[1], m[3]), I(f"{op} v{m[0]}, v{m[0]}, v{m[2]}"), I(f"{op} v{m[1]}, v{m[1]}, v{m[3]}"), None,
                sw(16, m[0], m[1]), I(f"{op} v{m[0]}, v{m[0]}, v{m[1]}")] + mid + \
               [I(f"v_mov_b32 v{m[1]}, v{m[0]}"), None, sw(16, m[0], m[1]), I(f"v_mov_b32 v{m[2]}, v{m[0]}"), I(f"v_mov_b32 v{m[3]}, v{m[1]}"), None,
                sw(32, m[0], m[2]), sw(32, m[1], m[3])]
    def fillnone(seq, fill):
        o = []
        for x in seq:
            if x is None:
                o += [fill.pop(0), fill.pop(0)] if len(fill) >= 2 else [I("s_nop 1")]
            else: o.append(x)
        return o
    def outs(gr):
        r = []
        for k in range(4):
            T = 1 + 4*gr + k; O0, O1 = V0 + 4*T, V1 + 4*T; m = MS[gr] + 2*k
            r += [I(f"v_cndmask_b32 v{m+1}, v{m}, 0, {mG3}")]
            r += pkify([I(f"v_mul_f32 v{O0+j}, v{O0+j}, v{m}") for j in range(4)] + [I(f"v_mul_f32 v{O1+j}, v{O1+j}, v{m+1}") for j in range(4)])
            r += pk4([O0, O0+1, O0+2, O0+3], O0, O1)
            r += [I(f"buffer_store_dwordx4 {vq(O0)}, v{vSt}, {srd(SRD_A)}, {sAST} offen sc1", "st"), I(f"s_add_u32 {sAST}, {sAST}, {NK*1024}")]
        return r
    MS = [2, 30]
    def att(gr, fill):
        B = [Q1 + 8*k for k in range(4)]
        r = []
        for k in range(4):
            SP, SC_ = B[k], B[k] + 4
            r += [I(f"v_cndmask_b32 v{SP}, v{SP}, v{SP+1}, {mODD}"), I(f"v_cndmask_b32 v{SP+1}, v{SP+2}, v{SP+3}, {mODD}"),
                  I(f"v_cndmask_b32 v{SC_}, v{SC_}, v{SC_+1}, {mODD}"), I(f"v_cndmask_b32 v{SC_+1}, v{SC_+2}, v{SC_+3}, {mODD}"),
                  I(f"v_cndmask_b32 v{SP}, v{SP}, v{SC_}, {mC0}"), I(f"v_cndmask_b32 v{SP+1}, v{SP+1}, v{SC_+1}, {mC1}")]
            if gr == 0 and k == 0:
                r += [I(f"v_mov_b32 v{SP+3}, {hex(f2u(-1e30))}"),
                      I(f"v_cndmask_b32 v{SP}, v{SP+3}, v{SP}, {mC0F}"), I(f"v_cndmask_b32 v{SP+1}, v{SP+3}, v{SP+1}, {mC1F}")]
            r += [I(f"v_max_f32 v{SP+2}, v{SP}, v{SP+1}")]
        m = [b + 2 for b in B]
        r += fillnone([None] + reduce4("v_max_f32", m, [I(f"v_mul_f32 v{m[0]}, {sSCL}, v{m[0]}")]), fill)
        for b in B:
            r += [I(f"v_pk_fma_f32 v[{b}:{b+1}], v[{b}:{b+1}], s[92:93], v[{b+2}:{b+3}] op_sel_hi:[1,0,0] neg_lo:[0,0,1] neg_hi:[0,0,1]")]
        for b in B: r += [I(f"v_exp_f32 v{b}, v{b}"), I(f"v_exp_f32 v{b+1}, v{b+1}")]
        ms = [MS[gr] + 2*k for k in range(4)]
        for k, b in enumerate(B): r += [I(f"v_cvt_pk_bf16_f32 v{b+3}, v{b}, v{b+1}"), I(f"v_add_f32 v{ms[k]}, v{b}, v{b+1}")]
        for b in B: r += [I(f"v_perm_b32 v{b+4+j}, v{b+3}, v{b+3}, v{sel[j]}") for j in range(4)]
        red = reduce4("v_add_f32", ms, [I(f"v_rcp_f32 v{ms[0]}, v{ms[0]}"), I("s_nop 0"), I(f"v_mul_f32 v{ms[0]}, v{ms[0]}, v{40 + gr}")])
        pv = []
        for k, b in enumerate(B):
            T = 1 + 4*gr + k
            pv += [mfma(vq(V0 + 4*T), vq(VB0 + 2*(T-1)), vq(b + 4), True), mfma(vq(V1 + 4*T), vq(VB1 + 2*(T-1)), vq(b + 4), True)]
        return r, red, pv
    L += sig[:2]; sig = sig[2:]
    L += smm(0)
    L += packV[2:] + ST()
    r0, red0, pv0 = att(0, sig)
    L += r0 + sig
    f = list(pv0); L += fillnone(red0, f) + f
    L += smm(1)
    o0 = outs(0)
    L += o0[:12]; o0 = o0[12:]
    r1, red1, pv1 = att(1, o0)
    L += r1
    f = list(pv1); L += fillnone(red1, f) + f
    L += o0 + outs(1)
    L += ST()
    L += [I(f"s_lshl_b32 s26, {sQB}, 2"), I(f"s_add_u32 s26, s26, {sJ}"), I("s_lshl_b32 s26, s26, 7"), I(f"s_add_u32 s26, s26, {FLAG_OFF + FL_O}")]
    L += publish("o", vRdy, 1, "s26") + ST() + ST.dump(65536, 2)
    return L, slow("o", vRdy)

def main():
    for n in range(84): assert (n * 43) >> 8 == n // 6
    for n in range(30): assert (n * 43) >> 7 == n // 3
    for n in range(182): assert (n * 147) >> 10 == n // 7
    pro = prologue()
    def path(role):
        full = resolve(pro + role)
        return full[len(pro):], full
    fr, fx = ffn()
    qr, qx = qkv()
    f, ff = path(fr)
    q, qf = path(qr)
    probs = []
    for nm, s in (("ffn", ff), ("qkv", qf), ("idle", pro + idle()), ("fx", fx), ("qx", qx)):
        probs += check_hazards(s, nm) + check_pending(s, nm) + check_scc(s, nm)
    for p in probs: print("HAZARD", p, file=sys.stderr)
    ref = open(f"cdna_kernels/{NAME}.s.ref").read()
    out = ref.split("; @launch")[0]
    out += "; @launch grid=(256,1,1) block=(256,1,1) lds=163840\n"
    out += f'.amdgcn_target "amdgcn-amd-amdhsa--gfx950"\n.text\n.globl {NAME}_kernel\n.p2align 8\n.type {NAME}_kernel,@function\n{NAME}_kernel:\n'
    out += render(pro) + "\n" + render(f) + "\n    s_endpgm\n" + render(fx) + "\n" + render(q) + "\n    s_endpgm\n" + render(qx) + "\n"
    out += render(idle()) + "\nL_end:\n    s_endpgm\n"
    out += f""".section .rodata,"a"
.p2align 6
.amdhsa_kernel {NAME}_kernel
  .amdhsa_next_free_vgpr 512
  .amdhsa_next_free_sgpr 102
  .amdhsa_accum_offset 256
  .amdhsa_group_segment_fixed_size 0
  .amdhsa_kernarg_size 88
  .amdhsa_user_sgpr_count 2
  .amdhsa_user_sgpr_kernarg_segment_ptr 1
  .amdhsa_system_sgpr_workgroup_id_x 1
.end_amdhsa_kernel
"""
    open(sys.argv[1], "w").write(out)
    print("instr counts: ffn", len(f), "qkv", len(q), "hazards", len(probs))

main()
```

```python
import sys, os, math, struct, re
sys.path.insert(0, os.path.dirname(os.path.abspath(__file__)))
from asmlib import *

NAME = "gated_mix__sliding_local_dilated__swiglu_ffn__prompt"
CFG = dict(ROT=2, P1=4, STAMP=0, PUB=3, PF=3, PAD=0, CYC=0, SET=0, G=3, GI=2, GQ=3, GIQ=2, JMAP=0xc9, IPF=1, IST=208, IPF0=9, IPQ0=4, RX=0, RH=0, PRE=1, OSC=0, EV1=3, EV2=2, EVQ=4, PUBD=24)
for a in sys.argv[2:]:
    k, v = a.split("=")
    CFG[k] = int(v, 0)
ROT, P1 = CFG["ROT"], CFG["P1"]

def f2u(x):
    return struct.unpack("<I", struct.pack("<f", x))[0]

S, D, F = 2048, 448, 1792
X_BYTES = S * D * 2
WQKV_BYTES = D * 3 * D * 2
WO_BYTES = D * D * 2
WG_BYTES = D * F * 2
NK = 72
A_OFF = 131072
A_BYTES = 128 * NK * 1024
MISC_BYTES = 131072
FLAG_OFF = 81920
OOB = 0x40000000
MASTER = 248

sWV = "s3"
SRD_X, SRD_W, SRD_A, SRD_O, SRD_W2, SRD_WO, SRD_M, SRD_D = 28, 32, 36, 40, 44, 48, 52, 96
def srd(n): return f"s[{n}:{n+3}]"
sK = [f"s{56+i}" for i in range(7)]
sROW0, sC, sT0, sT1, sT2, sT3 = "s63", "s64", "s65", "s66", "s67", "s68"
sM0W, sM0X, sSOFF, sAST, sNL2E = "s69", "s70", "s71", "s73", "s72"
sXROW = [f"s{74+i}" for i in range(5)]
sJ = "s79"
mODD, mC0, mC1, mC0F, mC1F, mG3 = "s[80:81]", "s[82:83]", "s[84:85]", "s[86:87]", "s[88:89]", "s[90:91]"
sSCL, sQB, sN2, sRB = "s92", "s93", "s94", "s95"
sRT, sNT, sAO, sCW, sCA, sM02 = "s74", "s75", "s76", "s77", "s78", "s79"

def vq(n, k=4): return f"v[{n}:{n+k-1}]"
def aq(n, k=4): return f"a[{n}:{n+k-1}]"
def rq(r, k=4): return f"{r[0]}[{r[1]}:{r[1]+k-1}]"

def mksrd(n, lo, size):
    return [I(f"s_mov_b32 s{n}, s{lo}"), I(f"s_mov_b32 s{n+1}, s{lo+1}"),
            I(f"s_mov_b32 s{n+2}, {size}"), I(f"s_mov_b32 s{n+3}, 0x20000")]

def srd_a():
    return [I(f"s_add_u32 s{SRD_A}, s24, {A_OFF}"), I(f"s_addc_u32 s{SRD_A+1}, s25, 0"),
            I(f"s_mov_b32 s{SRD_A+2}, {A_BYTES}"), I(f"s_mov_b32 s{SRD_A+3}, 0x20000")]

def mfma32(d, a, b, first):
    return I(f"v_mfma_f32_32x32x16_bf16 {d}, {a}, {b}, {'0' if first else d}")

def mfma(d, a, b, first):
    return I(f"v_mfma_f32_16x16x32_bf16 {d}, {a}, {b}, {'0' if first else d}")

class Stamps:
    def __init__(self, regs): self.regs = regs; self.n = 0
    def __call__(self, sets=(0,)):
        if not CFG["STAMP"] or not (sets is True or CFG["SET"] in sets): return []
        r = self.regs[self.n]; self.n += 1
        op = "s_memtime" if CFG["CYC"] else "s_memrealtime"
        return [I(f"{op} s[100:101]"), I("s_waitcnt lgkmcnt(0)"), I(f"s_mov_b32 s{r}, s100")]
    def dump(self, base, vtmp):
        if not CFG["STAMP"]: return []
        L = [I("s_waitcnt vmcnt(0)")] + self(True)
        L += [I(f"v_mov_b32 v{vtmp}, 0")]
        for k in range(self.n): L.append(I(f"v_writelane_b32 v{vtmp}, s{self.regs[k]}, {k}"))
        L += [I("s_lshl_b32 s26, s2, 6"), I(f"s_add_u32 s26, s26, {base}"), I(f"s_cmp_eq_u32 {sWV}, 0"), I(f"s_cselect_b32 s26, s26, {OOB}"),
              I(f"v_lshlrev_b32 v{vtmp+1}, 2, v0"), I("v_cmp_gt_u32 vcc, 16, v0"), I("s_nop 4"), I("s_and_saveexec_b64 s[10:11], vcc"),
              I(f"buffer_store_dword v{vtmp}, v{vtmp+1}, {srd(SRD_M)}, s26 offen")]
        if CFG["STAMP"] == 2:
            L += [I("s_cmp_eq_u32 s2, 0"), I(f"s_cselect_b32 s26, 8, {OOB}"), I(f"s_cmp_eq_u32 {sWV}, 0"), I(f"s_cselect_b32 s26, s26, {OOB}"),
                  I(f"buffer_store_dword v{vtmp}, v{vtmp+1}, {srd(SRD_D)}, s26 offen")]
        return L

def sk_next(s):
    return [I(f"s_add_u32 {sK[s]}, {sK[s-1]}, 128"), I(f"s_cmp_eq_u32 {sK[s]}, 896"),
            I(f"s_cselect_b32 {sK[s]}, 0, {sK[s]}")]

def rot_small(a, b):
    G, GI, RX, RH = CFG["G"], CFG["GI"], CFG["RX"], CFG["RH"]
    if b is None: G, GI = CFG["GQ"], CFG["GIQ"]
    L = [I(f"s_add_u32 s27, {a}, {b}")] if b else [I(f"s_mov_b32 s27, {a}")]
    if G == 1: L = [I("s_mov_b32 s27, 0")]
    elif G == 2: L += [I("s_and_b32 s27, s27, 1")]
    elif G == 3: L += [I("s_mul_i32 s11, s27, 43"), I("s_lshr_b32 s11, s11, 7"), I("s_mul_i32 s11, s11, 3"), I("s_sub_u32 s27, s27, s11")]
    if G > 1 and GI != 1: L += [I(f"s_mul_i32 s27, s27, {GI}")]
    if RX: L += [I("s_bfe_u32 s11, s2, 0x20001"), I(f"s_mul_i32 s11, s11, {RX}"), I("s_add_u32 s27, s27, s11")]
    if RH: L += [I("s_and_b32 s11, s2, 1"), I(f"s_mul_i32 s11, s11, {RH}"), I("s_add_u32 s27, s27, s11")]
    if G == 7 or RX or RH:
        L += [I("s_mul_i32 s11, s27, 147"), I("s_lshr_b32 s11, s11, 10"), I("s_mul_i32 s11, s11, 7"), I("s_sub_u32 s27, s27, s11")]
    L += [I(f"s_lshl_b32 {sK[0]}, s27, 7")]
    return L

def blockify(seq):
    o, i = [], 0
    while i < len(seq):
        x = seq[i]
        j = i + 1
        while j < len(seq) and getattr(seq[j], "op", "").startswith(("s_cselect", "s_addc")): j += 1
        o.append(Block(seq[i:j]) if j > i + 1 else x)
        i = j
    return o

def direct(seq):
    o = []
    Sched(o).flush(Stream(seq))
    return o

def publish(tag, vrdy, vone, scnt, st="st"):
    return [Wait(vm=[st, "rdy"]), I(f"v_readfirstlane_b32 s10, v{vrdy}"), I(f"v_mov_b32 v{vone}, 1")] + spin_init() + [I("s_nop 0"),
            I("s_cmp_eq_u32 s10, 0"), I(f"s_cbranch_scc1 L_slow_{tag}"), I(f"L_back_{tag}:"),
            I("s_mov_b64 exec, 1"),
            I(f"buffer_atomic_add v{vone}, off, {srd(SRD_M)}, {scnt} sc1", "pub"),
            I("s_mov_b64 exec, -1")]

SPIN = "s11"
def spin_init(): return [I(f"s_mov_b32 {SPIN}, 0x100000")]
def spin_step(): return [I(f"s_sub_u32 {SPIN}, {SPIN}, 1"), I("s_cbranch_scc1 L_end")]

def slow(tag, vrdy):
    return [I(f"L_slow_{tag}:")] + spin_step() + [I(f"buffer_load_dword v{vrdy}, off, {srd(SRD_D)}, 0 sc1"), I("s_waitcnt vmcnt(0)"),
            I(f"v_readfirstlane_b32 s10, v{vrdy}"), I("s_nop 3"), I("s_cmp_eq_u32 s10, 0"), I(f"s_cbranch_scc1 L_slow_{tag}"),
            I(f"s_branch L_back_{tag}")]

def prologue():
    L = [I("s_cmp_ge_u32 s2, 256"), I("s_cbranch_scc1 L_end"),
         I("s_load_dwordx4 s[4:7], s[0:1], 0", "ka"), I("s_load_dwordx8 s[12:19], s[0:1], 32", "ka"),
         I("s_load_dwordx2 s[8:9], s[0:1], 16", "ka"), I("s_load_dwordx4 s[20:23], s[0:1], 64", "ka"),
         I("s_load_dwordx2 s[24:25], s[0:1], 80", "ka")]
    L += [I("v_lshrrev_b32 v1, 6, v0"), I("v_and_b32 v0, 63, v0"),
          I("s_bfe_u32 s10, s2, 0x20001"),
          I("v_readfirstlane_b32 s3, v1"),
          I("s_lshr_b32 s11, s2, 3"),
          I("s_and_b32 s27, s2, 1"),
          I("s_cmp_lt_u32 s11, 8"), I("s_cbranch_scc1 L_qkv"),
          I("s_mul_i32 s26, s10, 23"), I("s_add_u32 s26, s26, s11"), I("s_sub_u32 s26, s26, 8"),
          I("s_cmp_eq_u32 s11, 31"), I("s_cbranch_scc1 L_idle"), I("s_cmp_ge_u32 s26, 91"), I("s_cbranch_scc1 L_idle"),
          I(f"s_mul_i32 {sN2}, s27, 91"), I(f"s_add_u32 {sN2}, {sN2}, s26"),
          I("s_mul_i32 s11, s27, 7"), I("s_sub_u32 s10, 49, s11"),
          I("s_cmp_ge_u32 s26, s10"), I("s_cselect_b32 s10, s10, 0"), I(f"s_cselect_b32 {sC}, 7, 0"),
          I(f"s_cselect_b32 {sRB}, s27, 0"), I(f"s_cselect_b32 {sQB}, 1, 0"),
          I("s_sub_u32 s26, s26, s10"), I(f"s_sub_u32 {sRB}, s11, {sRB}"),
          I(f"s_cmp_eq_u32 {sQB}, s27"), I("s_cselect_b32 s10, 37, 43"), I("s_cselect_b32 s11, 7, 6"),
          I("s_mul_i32 s10, s10, s26"), I("s_lshr_b32 s10, s10, 8"), I(f"s_add_u32 {sC}, {sC}, s10"),
          I("s_mul_i32 s10, s10, s11"), I("s_sub_u32 s26, s26, s10"), I(f"s_add_u32 {sRB}, {sRB}, s26")]
    return L

def idle():
    L = [I("L_idle:"), I("v_lshlrev_b32 v1, 7, v0"), I("s_waitcnt lgkmcnt(0)"),
         I(f"s_cmp_lg_u32 s2, {MASTER}"), I("s_cbranch_scc1 L_pre"), I(f"s_cmp_lg_u32 {sWV}, 0"), I("s_cbranch_scc1 L_pre"),
         I("v_mov_b32 v2, 0"), I("v_mov_b32 v3, 1")] + mksrd(SRD_M, 24, MISC_BYTES) + mksrd(SRD_D, 22, 256)
    L += [x for k in range(5) for x in (I(f"s_mov_b32 s27, {FLAG_OFF + 8192*k}"), I(f"buffer_store_dword v2, v1, {srd(SRD_M)}, s27 offen sc1"))]
    L += [I("s_waitcnt vmcnt(0)"), I("s_mov_b64 exec, 1"), I(f"buffer_store_dword v3, off, {srd(SRD_D)}, 0 sc1"), I("s_mov_b64 exec, -1"),
          I("L_pre:")]
    if CFG["PRE"]:
        L += [I("s_and_b32 s26, s2, 7"), I("s_and_b32 s27, s2, 1"), I("s_add_u32 s27, s27, 8"), I("s_cmp_eq_u32 s11, 31"), I("s_cselect_b32 s26, s26, s27"),
              I("s_lshl_b32 s26, s26, 2"), I(f"s_add_u32 s26, s26, {sWV}"), I("s_lshl_b32 s26, s26, 13")]
        L += mksrd(SRD_W2, 16, WG_BYTES) + mksrd(SRD_WO, 8, WO_BYTES)
        for k in range(7):
            if k == 2: L += [I(f"s_sub_u32 s26, s26, {2*327680}")]
            L += [I(f"buffer_load_dword v{4+k}, v1, {srd(SRD_WO if k < 2 else SRD_W2)}, s26 offen"), I("s_add_u32 s26, s26, 327680")]
    if CFG["IPF"]:
        L += [I("s_mov_b64 exec, 0")]
        for w in range(1, 4): L += [I(f"s_cmp_eq_u32 {sWV}, {w}"), I(f"s_cbranch_scc1 L_ip{w}_0")]
        L += [I("s_branch L_ip0_0")]
    return L

P1 = 4
FW_RING, FW_R = 0, 4
FX_RING = 65536
FX_SLOT = P1 * 2048
FX2 = 102400
NT2 = 10 - P1
assert FX_RING + 3 * FX_SLOT <= 98304 and FX2 + 4 * 14336 <= 163840
SL2 = 6
RED = 98304
FL_LATE, FL_O = 104 * 128, 208 * 128

def ffn():
    ST = Stamps(list(range(80, 93)) + [4, 5, 6])
    vWd = [1, 2, 3, 4]; vXd = [5, 6]; vX2d = 8; vWr = [9, 10]; vXr = [11, 12, 13, 14]; vAst = 21
    vT = [16, 17, 18, 19]; vRdy = 20; vOne = 7; vHi = 22
    XB = 24
    ACC = 72; NSL = 3
    v2d = [176, 177, 178, 179]; v2r = [180, 181, 182, 183]
    W2V = 184
    sODD, sCE, sCL, sDX = "s93", "s26", "s27", "s68"
    def acc(T, ct): return ACC + (T % NSL) * 32 + ct * 16
    def wfr(k, ct): return (k * 2 + ct) * 4
    L = [I("L_ffn:")] + ST(True)
    if CFG["PAD"]: L += [I("s_memrealtime s[80:81]")]
    L += [I(f"s_mul_i32 {sROW0}, {sRB}, 160"), I(f"s_and_b32 {sODD}, {sC}, 1")]
    L += rot_small(sRB, sC)
    r4, p16, r8, p8 = 16, 17, 18, 19
    L += [I(f"v_lshrrev_b32 v{r4}, 4, v0"), I(f"v_and_b32 v{p16}, 15, v0"),
          I(f"v_lshrrev_b32 v{r8}, 3, v0"), I(f"v_and_b32 v{p8}, 7, v0"),
          I(f"s_and_b32 s10, {sWV}, 1"), I("s_mul_i32 s11, s10, 57344"),
          I(f"s_lshl_b32 s27, {sC}, 8"), I("s_add_u32 s11, s11, s27"),
          I("s_movk_i32 s27, 3584"), I(f"v_mul_u32_u24 v20, s27, v{r4}"), I("v_add_u32 v20, s11, v20"),
          I(f"v_lshlrev_b32 v21, 2, v{r4}"), I(f"v_xor_b32 v21, v21, v{p16}"),
          I(f"s_and_b32 s11, {sWV}, 2"), I("v_xor_b32 v21, s11, v21"),
          I(f"v_lshl_add_u32 v{vWd[0]}, v21, 4, v20")]
    for i in range(1, 4): L += [I(f"v_add_u32 v{vWd[i]}, {4*3584-1024}, v{vWd[i-1]}")]
    L += [I(f"s_lshl_b32 {sM0W}, {sWV}, 12"),
          I(f"s_lshr_b32 s11, {sWV}, 1"), I("s_sub_u32 s27, 4, s11"), I(f"s_cmp_eq_u32 {sODD}, 0"), I("s_cselect_b32 s11, s11, s27"),
          I("s_lshl_b32 s11, s11, 1"), I("s_add_u32 s11, s11, s10"), I("s_lshl_b32 s11, s11, 4"),
          I(f"s_add_u32 s11, s11, {sROW0}"), I("s_mul_i32 s11, s11, 896"),
          I(f"s_lshl_b32 {sM0X}, {sWV}, 11"), I(f"s_add_u32 {sM0X}, {sM0X}, {FX_RING}"),
          I("s_movk_i32 s27, 896"),
          I(f"v_mul_u32_u24 v20, s27, v{r8}"),
          I(f"v_xor_b32 v21, v{r4}, v{p8}"),
          I(f"v_lshl_add_u32 v22, v21, 4, v20"),
          I(f"v_add_u32 v{vXd[0]}, s11, v22"), I("v_xor_b32 v23, 64, v22"),
          I(f"s_add_u32 s11, s11, {8*896-1024}"), I(f"v_add_u32 v{vXd[1]}, s11, v23")]
    L += [Wait(lgkm="all")] + ST((4,))
    L += [I(f"s_cmp_lt_u32 {sWV}, 2"), I(f"s_cselect_b32 s{SRD_W}, s12, s14"), I(f"s_cselect_b32 s{SRD_W+1}, s13, s15"),
          I(f"s_mov_b32 s{SRD_W+2}, {WG_BYTES}"), I(f"s_mov_b32 s{SRD_W+3}, 0x20000")]

    def dmaW(u):
        s, e = divmod(u, 2)
        r = [I(f"s_add_u32 m0, {sM0W}, {FW_RING + (u % FW_R) * 16384}"), I(f"s_mul_i32 {sSOFF}, {sK[s]}, 1792")]
        if e: r += [I(f"s_add_u32 {sSOFF}, {sSOFF}, 114688")]
        for i in range(4):
            r.append(I(f"buffer_load_dwordx4 v{vWd[i]}, {srd(SRD_W)}, {sSOFF} offen offset:{1024*i} lds", f"W{u}"))
        return r
    def dmaX(s):
        r = [I(f"s_add_u32 m0, {sM0X}, {(s % 3) * FX_SLOT}")]
        for i in range(2):
            r.append(I(f"buffer_load_dwordx4 v{vXd[i]}, {srd(SRD_X)}, {sK[s]} offen offset:{1024*i} lds", f"X{s}"))
        return r
    def dmaX2(p):
        r = [I(f"s_add_u32 m0, {sT1}, {FX2 + (p % 2) * 28672}")]
        if p: r += [I(f"v_add_u32 v{vX2d}, {sDX}, v{vX2d}")]
        for s in range(7):
            r += [I(f"buffer_load_dwordx4 v{vX2d}, {srd(SRD_X)}, {sK[s]} offen lds", f"X2_{p}")]
            if s < 6: r += [I("s_add_u32 m0, m0, 4096")]
        return r
    L += dmaW(0) + mksrd(SRD_X, 4, X_BYTES) + direct(dmaX(0)) + ST((4,))
    L += [I(f"v_and_b32 v24, 1, v{r4}"), I(f"v_lshrrev_b32 v25, 5, v0"),
          I("v_bfe_u32 v20, v0, 2, 2"), I("v_lshl_add_u32 v27, v25, 3, v20"),
          I("v_lshl_add_u32 v20, v20, 1, v24"),
          I(f"s_lshl_b32 s11, {sWV}, 1"), I("v_xor_b32 v20, s11, v20"), I("v_lshlrev_b32 v20, 5, v20"),
          I("v_lshl_add_u32 v20, v27, 8, v20"), I("v_lshl_add_u32 v20, v24, 13, v20"),
          I("v_and_b32 v27, 3, v0"), I(f"v_lshl_add_u32 v{vWr[0]}, v27, 3, v20"), I(f"v_xor_b32 v{vWr[1]}, 32, v{vWr[0]}"),
          I("v_bfe_u32 v20, v0, 1, 3"), I("v_xor_b32 v20, v20, v25"), I("v_lshlrev_b32 v20, 4, v20"),
          I("v_and_b32 v27, 31, v0"), I("v_lshl_add_u32 v20, v27, 7, v20"), I(f"v_add_u32 v{vXr[0]}, {FX_RING}, v20")]
    for j in range(1, 4): L += [I(f"v_xor_b32 v{vXr[j]}, {32*j}, v{vXr[0]}")]
    for s in range(1, 7): L += sk_next(s)
    L += dmaW(1) + dmaW(2) + direct(dmaX(1)) + ST((4,))
    L0 = L; L = []
    L += srd_a() + mksrd(SRD_M, 24, MISC_BYTES) + mksrd(SRD_D, 22, 256)
    L += [I(f"s_mov_b32 {sNL2E}, {hex(f2u(-math.log2(math.e)))}"),
          I(f"s_and_b32 s11, {sWV}, 1"), I("s_lshl_b32 s27, s11, 6"), I("v_xor_b32 v23, s27, v22"),
          I(f"s_lshl_b32 s10, {sWV}, 3"), I(f"s_add_u32 s10, s10, {sROW0}"), I("s_add_u32 s10, s10, 64"), I("s_mul_i32 s10, s10, 896"),
          I(f"v_add_u32 v{vX2d}, s10, v23"), I(f"s_lshl_b32 {sT1}, {sWV}, 10"),
          I(f"s_mul_i32 s10, {sODD}, {64*896}"), I(f"s_sub_u32 {sDX}, {32*896}, s10"),
          I(f"s_lshl_b32 s10, {sODD}, 7"), I(f"s_add_u32 s10, s10, {sROW0}"),
          I(f"s_lshr_b32 s10, s10, 4"), I(f"s_mul_i32 s10, s10, {NK}"), I(f"s_lshl_b32 s11, {sC}, 2"),
          I("s_add_u32 s10, s10, s11"), I(f"s_add_u32 s10, s10, {sWV}"), I(f"s_lshl_b32 {sAST}, s10, 10"),
          I(f"s_mul_i32 s10, {sODD}, {4*NK*1024}"), I(f"s_sub_u32 {sT2}, {2*NK*1024}, s10"),
          I("v_lshlrev_b32 v15, 4, v0"),
          I(f"s_mov_b32 s10, {NK*1024}"), I(f"v_mul_u32_u24 v20, s10, v24"), I(f"v_lshl_add_u32 v20, v25, 8, v20"),
          I(f"v_lshl_add_u32 v26, v{p16}, 4, v20")]
    L += [I(f"s_mul_i32 {sRT}, {sN2}, 147"), I(f"s_lshr_b32 {sRT}, {sRT}, 10"),
          I(f"s_mul_i32 s10, {sRT}, 7"), I(f"s_sub_u32 {sNT}, {sN2}, s10"),
          I("s_movk_i32 s27, 896"), I(f"v_mul_u32_u24 v20, s27, v{r8}"),
          I(f"v_and_b32 v21, 6, v{r8}"), I(f"v_xor_b32 v21, v21, v{p8}"),
          I(f"v_lshl_add_u32 v20, v21, 4, v20"),
          I(f"s_lshl_b32 s10, {sNT}, 7"), I(f"v_add_u32 v{v2d[0]}, s10, v20")]
    for i in range(1, 4): L += [I(f"v_add_u32 v{v2d[i]}, {8*896-1024}, v{v2d[i-1]}")]
    L += [I(f"s_mul_i32 {sM02}, {sWV}, {SL2*4096}"),
          I("v_lshrrev_b32 v20, 2, v0"), I("v_bfe_u32 v21, v0, 3, 2"), I(f"v_xor_b32 v21, {sWV}, v21"),
          I("v_lshlrev_b32 v21, 5, v21"), I("v_lshl_add_u32 v21, v20, 7, v21"),
          I("v_and_b32 v20, 3, v0"), I("v_lshl_add_u32 v21, v20, 3, v21"),
          I(f"v_add_u32 v{v2r[0]}, {sM02}, v21")]
    for t in range(1, 4): L += [I(f"v_xor_b32 v{v2r[t]}, {32*t}, v{v2r[0]}")]
    L += [I(f"v_mov_b32 v{vAst}, v26"), I(f"v_lshlrev_b32 v{vHi}, 10, v25")]
    L += mksrd(SRD_W2, 16, WG_BYTES) + mksrd(SRD_WO, 8, WO_BYTES) + mksrd(SRD_O, 20, X_BYTES)
    sPAR, sR0 = "s12", "s13"
    sWb, sAb = ["s14", "s15"], ["s18", "s19"]
    L += [I(f"s_and_b32 {sPAR}, {sRT}, 1"), I(f"s_bfe_u32 s10, {sRT}, 0x10001"), I("s_mul_i32 s10, s10, 3"),
          I(f"s_add_u32 {sR0}, {sNT}, s10"), I(f"s_sub_u32 s10, {sR0}, 7"), I(f"s_cmp_ge_u32 {sR0}, 7"), I(f"s_cselect_b32 {sR0}, s10, {sR0}"),
          I(f"s_mul_i32 s10, {sWV}, {32*896}"), I(f"s_mul_i32 s11, {sPAR}, {128*896}"),
          I(f"s_add_u32 {sWb[0]}, s10, s11"), I(f"s_sub_u32 s10, s10, s11"), I(f"s_add_u32 {sWb[1]}, s10, {128*896}"),
          I(f"s_mul_i32 {sAO}, {sRT}, {5*NK*1024}"), I(f"s_lshl_b32 s10, {sWV}, 10"), I(f"s_add_u32 {sAO}, {sAO}, s10"),
          I(f"s_lshl_b32 s11, {sPAR}, 12"), I(f"s_add_u32 {sAb[0]}, {sAO}, s11"), I(f"s_sub_u32 s10, {sAO}, s11"), I(f"s_add_u32 {sAb[1]}, s10, 4096"),
          I(f"s_mul_i32 {sCW}, {sR0}, {256*896}"), I(f"s_lshl_b32 {sCA}, {sR0}, 13"),
          I(f"s_lshl_b32 s10, {sRB}, 3"), I(f"s_add_u32 s10, s10, {sWV}"), I(f"s_lshl_b32 s11, {sODD}, 2"),
          I(f"s_add_u32 {sCE}, s10, s11"), I(f"s_lshl_b32 {sCE}, {sCE}, 7"), I(f"s_add_u32 {sCE}, {sCE}, {FLAG_OFF}"),
          I(f"s_xor_b32 {sCL}, {sCE}, 512"), I(f"s_add_u32 {sCL}, {sCL}, {FL_LATE}"),
          I(f"s_lshl_b32 s10, {sRT}, 2"), I(f"s_add_u32 s10, s10, {sWV}"), I("s_lshl_b32 s10, s10, 7"), I(f"s_add_u32 {sN2}, s10, {FLAG_OFF}")]
    sFE = sN2
    U1 = Stream(blockify(L)); L = L0

    def readsW(u):
        return [I(f"ds_read_b64_tr_b16 {aq(wfr(2*u+e, ct)+2*h, 2)}, v{vWr[ct]} offset:{FW_RING + (u%FW_R)*16384 + e*4096 + h*1024}", f"r{u}")
                for e in range(2) for ct in range(2) for h in range(2)]
    def xb1(u, e, T): return XB + (4 + (u % 2) * 4 + e * 2 + T) * 4
    def readsX(u):
        s, e1 = divmod(u, 2)
        return [I(f"ds_read_b128 {vq(xb1(u, e, T))}, v{vXr[2*e1+e]} offset:{(s%3)*FX_SLOT + T*4096}", f"r{u}") for e in range(2) for T in range(2)]
    def mm1(u):
        return [mfma32(vq(acc(T, ct), 16), aq(wfr(2*u+e, ct)), vq(xb1(u, e, T)), u == 0 and e == 0)
                for e in range(2) for T in range(2) for ct in range(2)]
    SC = Sched(L, units=6, ds=2, scal=3)
    dm = Stream(every=1)
    for u in range(14):
        if u == 0: L += ST((4,))
        L += [Wait(vm=[f"W{u}", f"X{u//2}"], lgkm="all")] + (ST((4,)) if u < 3 else []) + [I("s_barrier")]
        L += ST((0, 1) if u in (0, 7) else (1,))
        if u == 0:
            L += readsX(0) + readsW(0) + dmaW(3) + direct(dmaX(2))
            continue
        if u + 3 < 14: dm.add(dmaW(u + 3))
        if u % 2 == 0 and u // 2 + 2 < 7: dm.add(dmaX(u // 2 + 2))
        if u == 11: dm.add(dmaX2(0) + dmaX2(1) + [I(f"buffer_load_dword v{vRdy}, off, {srd(SRD_D)}, 0 sc1", "rdy")])
        rd = Stream(readsX(u) + readsW(u))
        SC.run(mm1(u - 1), [dm, rd, U1], flush=[rd] + ([dm] if u < 11 or u == 13 else []) + ([U1] if u == 10 else []))
    NF2 = 84
    def rd2(n):
        T, k = divmod(n, 28); s, j = divmod(k, 4)
        return I(f"ds_read_b128 {vq(XB + (n % 12)*4)}, v{vXr[j]} offset:{(T % 2)*28672 + s*4096}", f"q{n//4}")
    ORD = [14, 15, 16, 17] + list(range(14))
    def slot2(q): return ORD.index(q) % SL2
    def w2(q, t): return ("a", (q * 4 + t) * 4) if q < 16 else ("v", W2V + ((q - 16) * 4 + t) * 4)
    def dmaW2(q):
        r = [I(f"s_add_u32 m0, {sM02}, {slot2(q) * 4096}")]
        if q == 14: r += [I(f"s_mul_i32 {sSOFF}, {sWV}, {4*28*896}")]
        elif q > 14: r += [I(f"s_add_u32 {sSOFF}, {sSOFF}, {28*896}")]
        else:
            if q: r += [I(f"s_add_u32 {sCW}, {sCW}, {256*896}"), Block([I(f"s_cmp_eq_u32 {sCW}, {7*256*896}"), I(f"s_cselect_b32 {sCW}, 0, {sCW}")])]
            r += [I(f"s_add_u32 {sSOFF}, {sCW}, {sWb[q >= 7]}")]
        for i in range(4):
            r.append(I(f"buffer_load_dwordx4 v{v2d[i]}, {srd(SRD_W2 if q < 14 else SRD_WO)}, {sSOFF} offen offset:{1024*i} lds", f"V{q}"))
        return r
    def rdW2(q):
        r = []
        for t in range(4):
            k, n = w2(q, t)
            for h in range(2):
                r.append(I(f"ds_read_b64_tr_b16 {k}[{n+2*h}:{n+2*h+1}], v{v2r[t]} offset:{slot2(q)*4096 + h*(2048 if q >= 14 else 1024)}", f"w{q}"))
        return r
    L += [Wait(vm="X2_0", lgkm="all"), I("s_barrier")] + ST()
    L += [I(f"v_add_u32 v{vXr[j]}, {FX2 - FX_RING}, v{vXr[j]}") for j in range(4)]
    rd = Stream([rd2(n) for n in range(8)])
    SC.run(mm1(13), [rd], flush=[rd])
    SC.ds = 2
    def epi(T):
        r = []
        for ct in range(2):
            a0 = acc(T, ct)
            for pr in range(4):
                ga = a0 + 2*pr; gb = ga + 1; ua = ga + 8; ub = ua + 1
                ta, tb = vT[2*(pr&1)], vT[2*(pr&1)+1]
                r += [I(f"v_mul_f32 v{ta}, {sNL2E}, v{ga}"), I(f"v_mul_f32 v{tb}, {sNL2E}, v{gb}"),
                      I(f"v_exp_f32 v{ta}, v{ta}"), I(f"v_exp_f32 v{tb}, v{tb}"),
                      I(f"v_mul_f32 v{ga}, v{ga}, v{ua}"), I(f"v_mul_f32 v{gb}, v{gb}, v{ub}"),
                      I(f"v_add_f32 v{ta}, 1.0, v{ta}"), I(f"v_add_f32 v{tb}, 1.0, v{tb}"),
                      I(f"v_rcp_f32 v{ta}, v{ta}"), I(f"v_rcp_f32 v{tb}, v{tb}"),
                      I(f"v_mul_f32 v{ga}, v{ga}, v{ta}"), I(f"v_mul_f32 v{gb}, v{gb}, v{tb}"),
                      I(f"v_cvt_pk_bf16_f32 v{a0 + pr}, v{ga}, v{gb}")]
            r += [I(f"buffer_store_dwordx4 {vq(a0)}, v{vAst}, {srd(SRD_A)}, {sAST} offen offset:{512*ct} sc1", f"st{T}_{ct}")]
        if T < 4: r += [I(f"s_add_u32 {sAST}, {sAST}, {sT2}")]
        return r
    for_t = {}
    bk = Stream(ooo=10)
    def add_epi(T):
        e = epi(T)
        for x in e: for_t[id(x)] = T
        bk.add(e)
    bk.add([I("s_nop 7")])
    for T in range(2): add_epi(T)
    side = Stream(every=CFG["EV2"])
    for q in (14, 15, 16, 17, 0, 1): side.add(dmaW2(q))
    late_side = []
    for k, q in enumerate((14, 15, 16, 17)):
        late_side += [Wait(vm=f"V{q}")] + rdW2(q)
        if k: late_side += [Wait(lgkm=f"w{q-1}")] + dmaW2(1 + k)
    late_side += [Wait(lgkm="w17")] + dmaW2(5)
    late_side += [I(f"v_add_u32 v{v2r[t]}, v{vHi}, v{v2r[t]}") for t in range(4)]
    state = {"pub": None}
    def seen(x):
        if x.tag == "st2_1": state["pub"] = SC.g + CFG["PUBD"]
    for b in range(21):
        if b == 5: L += [Wait(vm="X2_1"), I("s_barrier")]
        if b == 7:
            print("side at refill:", len(side))
            SC.flush(side); L += [I("s_barrier")]; side.add(dmaX2(2) + late_side); side.every = 1
        if b == 12: L += [Wait(vm="X2_2"), I("s_barrier")]
        L += [Wait(lgkm=f"q{b}")]
        reads = Stream([rd2(n) for n in range(4 * (b + 2), min(4 * (b + 3), NF2))], rate=0.5)
        reads.credit = 1.0
        for n in range(4 * b, 4 * b + 4):
            T2, k = divmod(n, 28); T = 2 + T2
            if k in (0, 14): L += ST((3,))
            if k == 0 and T == 4: print("side at last tile:", len(side))
            if k == 0 and T >= NSL:
                while any(for_t.get(id(x)) == T - NSL for x in bk.q): L.append(bk.q.pop(0))
            for ct in range(2):
                L.append(mfma32(vq(acc(T, ct), 16), aq(wfr(k, ct)), vq(XB + (n % 12) * 4), k == 0))
                SC.gap([reads, side, bk], seen)
                if state["pub"] == SC.g:
                    L += publish("h", vRdy, vOne, sCE, "st2_1") + ST(); state["pub"] = "done"
            if T == 4 and k == 1:
                side.every = 2; SC.ds = 2
                side.add([Wait(vm="V0")] + rdW2(0))
                for q in range(1, 6):
                    side.add([Wait(vm=f"V{q}")] + rdW2(q) + [Wait(lgkm=f"w{q-1}")] + dmaW2(q + 5))
                side.add([Wait(lgkm="w5")] + dmaW2(11))
            if k == 27:
                if len(bk) < 12: bk.add([I("s_nop 7"), I("s_nop 3")])
                add_epi(T)
        SC.flush(reads)
    print("side left:", len(side), "backlog after pass 2:", len(bk), "pub", state["pub"], SC.g)
    assert state["pub"] == "done"
    L += ST((0, 3))
    vF = 6
    L += [I(f"buffer_load_dword v{vF}, off, {srd(SRD_M)}, {sFE} sc1", "ef")]
    bq = fix_trans(pkify(bk.q))
    sq = direct(side.q); side.q = []
    ratio = len(sq) / max(1, len(bq) - 10)
    ac = 0.0
    for k, x in enumerate(bq):
        L.append(x)
        ac += ratio
        while ac >= 1.0 and sq:
            y = sq.pop(0); L.append(y); ac -= 1.0
            if y.kind == "salu" and y.op.startswith("s_cmp"): L.append(sq.pop(0))
    L += sq
    L += ST((0, 3))
    SC = Sched(L)
    vAl, vRw, vRr, vOut, vOf, vOu2 = 15, [1, 2, 3], 4, 5, 14, 7
    vS = [8, 9, 10, 11, 12]
    AC2 = 16
    ABUF = [216, 236, 96, 116, 136, 156]
    PF = CFG['PF']
    def ab(q, T): return ABUF[q % 6] + T * 4
    def ldA(q):
        if q < 14:
            r = []
            if q: r += [I(f"s_add_u32 {sCA}, {sCA}, 8192"), Block([I(f"s_cmp_eq_u32 {sCA}, {7*8192}"), I(f"s_cselect_b32 {sCA}, 0, {sCA}")])]
            r += [I(f"s_add_u32 {sT0}, {sCA}, {sAb[q >= 7]}")]
        elif q == 14:
            r = [I(f"s_mul_i32 {sCA}, {sWV}, 3072"), I(f"s_add_u32 {sCA}, {sCA}, {sAO}"), I(f"s_add_u32 {sCA}, {sCA}, {56*1024}"),
                 I(f"s_mov_b32 {sT0}, {sCA}")]
        else: r = [I(f"s_add_u32 {sT0}, {sCA}, {(q-14)*1024}")]
        for T in range(5):
            r.append(I(f"buffer_load_dwordx4 {vq(ab(q, T))}, v{vAl}, {srd(SRD_A)}, {sT0} offen sc1", f"A{q}"))
            if T < 4: r.append(I(f"s_add_u32 {sT0}, {sT0}, {NK*1024}"))
        return r
    def mm2(q):
        return [mfma(vq(AC2 + (T*4+t)*4), rq(w2(q, t)), vq(ab(q, T)), q == 0) for T in range(5) for t in range(4)]
    def check(tag, need, name):
        return [Wait(vm=tag), I(f"v_cmp_gt_u32 vcc, {need}, v{vF}")] + spin_init() + [I(f"s_cbranch_vccnz L_poll_{name}"), I(f"L_got_{name}:")]
    def poll(name, need, ld):
        return [I(f"L_poll_{name}:")] + spin_step() + [ld, I("s_waitcnt vmcnt(0)"), I(f"v_cmp_gt_u32 vcc, {need}, v{vF}"), I("s_nop 0"),
                I(f"s_cbranch_vccnz L_poll_{name}"), I(f"s_branch L_got_{name}")]
    L += check("ef", 7, "e") + ST((0, 2))
    L += direct(ldA(0) + ldA(1))
    L += [Wait(vm="st4_1"), I("s_mov_b64 exec, 1"), I(f"buffer_atomic_add v{vOne}, off, {srd(SRD_M)}, {sCL} sc1", "pub"), I("s_mov_b64 exec, -1")] + ST()
    L += [I(f"s_add_u32 {sFE}, {sFE}, {FL_LATE}")]
    for q in range(2, PF): L += direct(ldA(q))
    L += direct([Wait(vm="V7")] + rdW2(6) + rdW2(7))
    setup = [I(f"s_mul_i32 s10, {sRT}, 80"), I("s_add_u32 s11, s10, 79"), I("s_lshr_b32 s10, s10, 7"), I("s_lshr_b32 s11, s11, 7"),
             I("s_min_u32 s11, s11, 15"), I("s_lshl_b32 s10, s10, 9"), I("s_lshl_b32 s11, s11, 9"),
             I(f"v_mov_b32 v{vOf}, s11"), I(f"v_writelane_b32 v{vOf}, s10, 0"),
             I(f"s_lshl_b32 s27, {sWV}, 7"), I(f"s_add_u32 s27, s27, {FLAG_OFF + FL_O}"),
             I(f"s_mul_i32 s10, {sWV}, 15360"), I(f"s_add_u32 s10, s10, {RED}"), I(f"v_add_u32 v{vRr}, s10, v{vAl}")]
    for t in range(1, 4):
        setup += [I(f"s_xor_b32 s10, {sWV}, {t}"), I("s_mul_i32 s10, s10, 15360"), I(f"s_add_u32 s10, s10, {RED + (t-1)*5120}"),
                  I(f"v_add_u32 v{vRw[t-1]}, s10, v{vAl}")]
    setup += [I(f"s_mul_i32 s10, {sRT}, {80*896}"), I(f"s_lshl_b32 s11, {sNT}, 7"), I("s_add_u32 s10, s10, s11"),
              I(f"s_lshl_b32 s11, {sWV}, 5"), I("s_add_u32 s10, s10, s11"),
              I("v_and_b32 v13, 15, v0"), I("s_movk_i32 s11, 896"), I(f"v_mul_u32_u24 v{vOut}, s11, v13"), I(f"v_lshrrev_b32 v{vS[0]}, 4, v0"),
              I(f"v_lshl_add_u32 v{vOut}, v{vS[0]}, 3, v{vOut}"), I(f"v_add_u32 v{vOut}, s10, v{vOut}"),
              I("v_lshlrev_b32 v13, 2, v13"),
              I(f"v_and_b32 v{vS[0]}, 1, v{vS[0]}"), I(f"s_movk_i32 s11, {16*896-8}"), I(f"v_mad_u32_u24 v{vOu2}, v{vS[0]}, s11, v{vOut}"),
              I(f"s_lshl_b32 s26, {sWV}, 13"), I(f"s_mul_i32 s11, {sRT}, 320"), I("s_add_u32 s26, s26, s11")]
    ld_late = I(f"buffer_load_dword v{vF}, off, {srd(SRD_M)}, {sFE} sc1", "lf")
    ld_o = I(f"buffer_load_dword v{vF}, v{vOf}, {srd(SRD_M)}, s27 offen sc1", "of")
    for q in range(16):
        G, R, U = Stream(every=3), Stream(), Stream()
        if q == 7 - PF: L += check("lf", 7, "l") + ST()
        if q == 14 - PF: L += check("of", 4, "o") + ST()
        if q == 5 - PF: G.add([ld_late])
        if q == 12 - PF: G.add([ld_o])
        if q + PF < 18: G.add(ldA(q + PF))
        if q < 2: G.add([Wait(lgkm=f"w{6 + q}")] + dmaW2(12 + q)); G.every = 2
        if 2 <= q < 8: R.add([Wait(vm=f"V{q + 6}")] + rdW2(q + 6))
        if q == 5: U.add(setup[:20])
        if q == 6: U.add(setup[20:36])
        if q == 7: U.add(setup[36:])
        if q + PF == 17:
            G.every = 2
            G.add([I(f"buffer_load_dword v{vS[T]}, v13, {srd(SRD_M)}, s26 offen offset:{64*T} sc1", "S") for T in range(5)])
        if q == 14: L += [I("s_barrier")]
        L += [Wait(vm=f"A{q}", lgkm=f"w{q}")]
        if q < 13: L += ST((2,))
        SC.run(mm2(q), [G, R, U], flush=[G, R, U])
    L += ST()
    a16, a17 = mm2(16), mm2(17)
    order = [(T, t) for t in (1, 2, 3, 0) for T in range(5)]
    main = []
    for (T, t) in order: main += [a16[T*4+t], a17[T*4+t]]
    L += [Wait(vm="A17")]
    pend = []
    for k, m in enumerate(main):
        L.append(m)
        if k % 2 == 1 and order[k // 2][1] != 0:
            T, t = order[k // 2]
            pend.append((k + 9, I(f"ds_write_b128 v{vRw[t-1]}, {vq(AC2 + (T*4+t)*4)} offset:{T*1024}", "rw")))
        while pend and pend[0][0] <= k:
            L.append(pend.pop(0)[1])
    L += [x for _, x in pend]
    L += [Wait(lgkm="all"), I("s_barrier")] + ST()
    RB = 96
    for T in range(5):
        for sl in range(3):
            L.append(I(f"ds_read_b128 {vq(RB + (sl*5+T)*4)}, v{vRr} offset:{sl*5120 + T*1024}", f"rr{T}"))
    L += [Wait(vm="S")]
    osc = " sc1" if CFG["OSC"] else ""
    for T in range(5):
        a = AC2 + T*16
        d = AC2 + (T & ~1)*16 + 4 + 2*(T & 1)
        F = []
        for r in range(4): F.append(I(f"v_add_f32 v{RB + (5+T)*4 + r}, v{RB + (5+T)*4 + r}, v{RB + (10+T)*4 + r}"))
        for r in range(4): F.append(I(f"v_add_f32 v{a+r}, v{a+r}, v{RB + T*4 + r}"))
        for r in range(4): F.append(I(f"v_add_f32 v{a+r}, v{a+r}, v{RB + (5+T)*4 + r}"))
        for r in range(4): F.append(I(f"v_mul_f32 v{a+r}, v{a+r}, v{vS[T]}"))
        L += [Wait(lgkm=f"rr{T}")] + pkify(F)
        L += [I(f"v_cvt_pk_bf16_f32 v{d}, v{a}, v{a+1}"), I(f"v_cvt_pk_bf16_f32 v{d+1}, v{a+2}, v{a+3}")]
        if T & 1:
            q4 = d - 2
            L += [I(f"s_mov_b32 s10, {(T-1)*16*896}"), I("s_nop 0"),
                  I(f"v_permlane16_swap_b32 v{q4}, v{q4+2}"), I(f"v_permlane16_swap_b32 v{q4+1}, v{q4+3}"),
                  I(f"buffer_store_dwordx4 {vq(q4)}, v{vOu2}, {srd(SRD_O)}, s10 offen" + osc, "out")]
        elif T == 4:
            L += [I(f"s_mov_b32 s10, {T*16*896}"), I(f"buffer_store_dwordx2 v[{d}:{d+1}], v{vOut}, {srd(SRD_O)}, s10 offen" + osc, "out")]
    L += ST.dump(65536, 16)
    if CFG["PAD"]:
        L += [I("L_pad:"), I("s_memrealtime s[82:83]"), I("s_waitcnt lgkmcnt(0)"), I("s_sub_u32 s82, s82, s80"),
              I(f"s_cmp_lt_u32 s82, {CFG['PAD']}"), I("s_cbranch_scc1 L_pad")]
    extra = slow("h", vRdy) + poll("e", 7, I(f"buffer_load_dword v{vF}, off, {srd(SRD_M)}, {sFE} sc1")) + \
            poll("l", 7, I(ld_late.text)) + poll("o", 4, I(ld_o.text))
    return L, extra

QW_RING, QW_SLOT = 0, 24576
QX_RING, QX_SLOT = 98304, 20480
QG = QX_RING + 3 * QX_SLOT
assert QG + 4096 <= 163840

def qkv():
    ST = Stamps([40, 41, 42, 43, 44, 45, 46, 47, 48, 49, 50, 51])
    vWd = [1, 2]; vXd = [3, 4]; vWr = [[5, 6], [7, 8]]; vXr = [9, 10]
    vQ1b, vQA, vQB_, vQH, vQ1 = 11, 12, 13, 14, [15, 16]
    vRdy = 47
    K0 = 48; K1 = K0 + 36; V0 = K1 + 36; V1 = V0 + 36; Q0 = V1 + 36; Q1 = Q0 + 32
    assert Q1 + 32 == 256
    WF = 0; XF = 48
    def wf(u, sec, t): return WF + (u % 2) * 24 + (sec * 2 + t) * 4
    def xf(u, T): return XF + (u % 2) * 36 + T * 4
    r4, p16, r8, p8 = 17, 18, 19, 20
    L = [I("L_qkv:")] + ST(True) + [I("s_lshl_b32 s10, s10, 1"), I(f"s_lshr_b32 {sJ}, {CFG['JMAP']}, s10"), I(f"s_and_b32 {sJ}, {sJ}, 3"),
         I(f"s_lshl_b32 {sQB}, s27, 3"), I(f"s_add_u32 {sQB}, {sQB}, s11")]
    L += rot_small(sQB, None)
    L += [I(f"v_lshrrev_b32 v{r4}, 4, v0"), I(f"v_and_b32 v{p16}, 15, v0"),
          I(f"v_lshrrev_b32 v{r8}, 3, v0"), I(f"v_and_b32 v{p8}, 7, v0"),
          I(f"s_mul_i32 s11, {sJ}, 224"), I(f"s_cmp_eq_u32 {sJ}, 3"), I("s_cselect_b32 s11, 640, s11"),
          I(f"s_mul_i32 s26, {sWV}, {8*2688}"), I("s_add_u32 s11, s11, s26"),
          I("s_movk_i32 s27, 2688"), I(f"v_mul_u32_u24 v21, s27, v{r4}"), I("v_add_u32 v21, s11, v21"),
          I(f"s_and_b32 s26, {sWV}, 1"), I("s_lshl_b32 s26, s26, 3"),
          I(f"v_lshlrev_b32 v22, 1, v{r4}"), I(f"v_sub_u32 v22, v{p16}, v22"), I("v_xor_b32 v22, s26, v22"),
          I("v_and_b32 v22, 15, v22"),
          I(f"v_lshl_add_u32 v{vWd[0]}, v22, 4, v21"),
          I(f"v_add_u32 v{vWd[1]}, {4*2688-1024}, v{vWd[0]}"),
          I(f"s_lshl_b32 {sM0W}, {sWV}, 11"),
          I("s_movk_i32 s27, 896"), I(f"v_mul_u32_u24 v21, s27, v{r8}"),
          I(f"v_xor_b32 v22, v{r4}, v{p8}"), I("v_lshl_add_u32 v21, v22, 4, v21"),
          I("s_lshl_b32 s26, s26, 3"),
          I(f"v_xor_b32 v{vXd[0]}, s26, v21"), I(f"v_xor_b32 v{vXd[1]}, 64, v{vXd[0]}"),
          I(f"s_mul_i32 {sM0X}, {sWV}, 5120"), I(f"s_add_u32 {sM0X}, {sM0X}, {QX_RING}"),
          I(f"s_lshl_b32 s26, {sQB}, 7"), I(f"s_mul_i32 s27, {sWV}, 40"), I("s_add_u32 s26, s26, s27"),
          I("s_sub_u32 s26, s26, 16")]
    def xrow(i):
        r = [I(f"s_add_u32 s27, s26, {8*i}"), I(f"s_mul_i32 {sXROW[i]}, s27, 896")]
        if i < 2: r += [I("s_cmp_lt_i32 s27, 0"), I(f"s_cselect_b32 {sXROW[i]}, {OOB}, {sXROW[i]}")]
        if i >= 3: r += [I(f"s_cmp_eq_u32 {sWV}, 3"), I(f"s_cselect_b32 {sXROW[i]}, {OOB}, {sXROW[i]}")]
        return r
    def dmaW(u):
        s, e = divmod(u, 2)
        r = []
        for sec in range(3):
            r += [I(f"s_add_u32 m0, {sM0W}, {QW_RING + (u % 4) * QW_SLOT + sec * 8192}")]
            if sec == 0:
                r += [I(f"s_mul_i32 {sSOFF}, {sK[s]}, 1344")]
                if e: r += [I(f"s_add_u32 {sSOFF}, {sSOFF}, 86016")]
            else:
                r += [I(f"s_add_u32 {sSOFF}, {sSOFF}, 896")]
            for i in range(2):
                r.append(I(f"buffer_load_dwordx4 v{vWd[i]}, {srd(SRD_W)}, {sSOFF} offen offset:{1024*i} lds", f"W{u}"))
        return r
    def dmaX(s):
        r = []
        for i in range(5):
            r += [I(f"s_add_u32 m0, {sM0X}, {(s % 3) * QX_SLOT + i * 1024}"), I(f"s_add_u32 {sT0}, {sXROW[i]}, {sK[s]}"),
                  I(f"buffer_load_dwordx4 v{vXd[i % 2]}, {srd(SRD_X)}, {sT0} offen lds", f"X{s}")]
        return r
    for i in range(5): L += xrow(i)
    L += [I(f"s_lshl_b32 s26, {sWV}, 7"), I("v_lshl_add_u32 v23, v0, 1, s26")]
    L += [Wait(lgkm="all")]
    L += mksrd(SRD_W, 6, WQKV_BYTES) + dmaW(0)
    L += mksrd(SRD_X, 4, X_BYTES) + dmaX(0) + mksrd(SRD_M, 18, 896)
    L += [I(f"buffer_load_ushort v24, v23, {srd(SRD_M)}, 0 offen", "gw"),
          I(f"buffer_load_ushort v25, v23, {srd(SRD_M)}, 0 offen offset:512", "gw")]
    L += [I("v_bfe_u32 v21, v0, 2, 2"), I(f"v_lshl_add_u32 v22, v{r4}, 3, v21"),
          I(f"v_and_b32 v26, 1, v{r4}"), I("v_lshl_add_u32 v21, v26, 2, v21"),
          I("v_and_b32 v26, 3, v0"), I("v_lshlrev_b32 v27, 3, v26"), I("v_lshl_add_u32 v21, v21, 5, v27"),
          I(f"s_mul_i32 s26, {sWV}, 56"), I(f"s_cmp_eq_u32 {sJ}, 3"), I("s_cselect_b32 s27, 32, 0"),
          I("s_add_u32 s26, s26, s27"), I("v_add_u32 v21, s26, v21"),
          I("v_and_b32 v27, 0xff, v21"), I(f"v_lshl_add_u32 v{vWr[0][0]}, v22, 8, v27"),
          I("v_add_u32 v21, 32, v21"), I("v_and_b32 v27, 0xff, v21"), I(f"v_lshl_add_u32 v{vWr[0][1]}, v22, 8, v27"),
          I(f"v_add_u32 v{vWr[1][0]}, {2*QW_SLOT}, v{vWr[0][0]}"), I(f"v_add_u32 v{vWr[1][1]}, {2*QW_SLOT}, v{vWr[0][1]}"),
          I("v_cmp_eq_u32 vcc, 3, v26"),
          I(f"v_lshlrev_b32 v27, 3, v22"), I(f"v_add_u32 v27, {QG}, v27"),
          I(f"v_cndmask_b32 v{vQ1b}, v{vWr[0][1]}, v27, vcc"),
          I(f"v_mov_b32 v27, 1"), I(f"v_cndmask_b32 v{vQA}, v27, 0, vcc"),
          I(f"v_cndmask_b32 v{vQB_}, 0, v27, vcc"),
          I(f"v_mov_b32 v27, 0x400"), I(f"v_cndmask_b32 v{vQH}, v27, 32, vcc"),
          I(f"v_lshrrev_b32 v21, 1, v{p16}"), I(f"v_xor_b32 v21, v21, v{r4}"), I("v_lshlrev_b32 v21, 4, v21"),
          I(f"v_lshl_add_u32 v21, v{p16}, 7, v21"),
          I(f"v_add_u32 v{vXr[0]}, {QX_RING}, v21"), I(f"v_xor_b32 v{vXr[1]}, 64, v{vXr[0]}")]
    for s in range(1, 7): L += sk_next(s)
    L += dmaW(1)
    L += srd_a() + mksrd(SRD_D, 22, 256)
    L += [I("v_lshlrev_b32 v23, 2, v23"), I(f"v_add_u32 v23, {QG}, v23"),
          Wait(vm="gw"),
          I("ds_write_b16 v23, v24"), I("ds_write_b16 v23, v25 offset:2048")]
    def reads(u):
        s, e = divmod(u, 2)
        sl = u % 4
        a = [I(f"s_lshl_b32 {sT1}, {sK[s]}, 2")]
        if e: a += [I(f"s_add_u32 {sT1}, {sT1}, 256")]
        G = [a, [I(f"s_mov_b32 {sT2}, {sl * QW_SLOT}"), I(f"v_mad_u32_u24 v{vQ1[0]}, v{vQB_}, {sT1}, v{vQ1b}")],
             [I(f"v_mad_u32_u24 v{vQ1[0]}, v{vQA}, {sT2}, v{vQ1[0]}"), I(f"v_add_u32 v{vQ1[1]}, v{vQH}, v{vQ1[0]}")]]
        for T in range(9):
            G.append([I(f"ds_read_b128 {aq(xf(u, T))}, v{vXr[e]} offset:{(s % 3) * QX_SLOT + T * 2048}", f"r{u}")])
        for sec in (1, 2, 0):
            for t in range(2):
                for h in range(2):
                    if sec == 0 and t == 1:
                        G.append([I(f"ds_read_b64_tr_b16 {aq(wf(u,sec,t)+2*h, 2)}, v{vQ1[h]}", f"r{u}")])
                    else:
                        G.append([I(f"ds_read_b64_tr_b16 {aq(wf(u,sec,t)+2*h, 2)}, v{vWr[sl//2][t]} offset:{(sl%2)*QW_SLOT + sec*8192 + h*1024}", f"r{u}")])
        return G
    def mm(u):
        r = []
        for T in range(9):
            r += [mfma(vq(K0 + 4*T), aq(wf(u,1,0)), aq(xf(u,T)), u == 0), mfma(vq(K1 + 4*T), aq(wf(u,1,1)), aq(xf(u,T)), u == 0)]
        for T in range(9):
            r += [mfma(vq(V0 + 4*T), aq(xf(u,T)), aq(wf(u,2,0)), u == 0), mfma(vq(V1 + 4*T), aq(xf(u,T)), aq(wf(u,2,1)), u == 0)]
        for T in range(1, 9):
            r += [mfma(vq(Q0 + 4*(T-1)), aq(wf(u,0,0)), aq(xf(u,T)), u == 0), mfma(vq(Q1 + 4*(T-1)), aq(wf(u,0,1)), aq(xf(u,T)), u == 0)]
        return r
    i16, g4 = 18, 17
    sel = [21, 22, 23, 24]; vMq = 25; vSt = 26
    C = [I(f"v_and_b32 v38, 1, v{i16}"), I(f"v_cmp_eq_u32 {mODD}, 1, v38"),
         I(f"v_lshl_add_u32 v38, v{g4}, 2, v38"),
         I(f"v_cmp_le_u32 {mC0}, v38, v{i16}"), I("v_add_u32 v38, 2, v38"), I(f"v_cmp_le_u32 {mC1}, v38, v{i16}"),
         I(f"v_cmp_eq_u32 {mG3}, 3, v{g4}"),
         I("v_mov_b32 v39, 0x0c0c0100"), I("v_mov_b32 v40, 0x01000c0c"),
         I(f"v_cndmask_b32 v39, v39, v40, {mODD}"),
         I("v_mov_b32 v41, 0x0c0c0302"), I("v_mov_b32 v40, 0x03020c0c"),
         I(f"v_cndmask_b32 v41, v41, v40, {mODD}"),
         I("v_mov_b32 v40, 0x0c0c0c0c"),
         I(f"v_cndmask_b32 v{sel[0]}, v39, v40, {mC0}"), I(f"v_cndmask_b32 v{sel[1]}, v41, v40, {mC1}"),
         I(f"v_cndmask_b32 v{sel[2]}, v40, v39, {mC0}"), I(f"v_cndmask_b32 v{sel[3]}, v40, v41, {mC1}"),
         I(f"v_cndmask_b32 v{vMq}, -1, 0, {mG3}"),
         I(f"v_lshlrev_b32 v{vSt}, 4, v0"), I("v_lshlrev_b32 v44, 2, v0"),
         Block([I(f"s_cmp_eq_u32 {sQB}, 0"), I(f"s_cselect_b64 {mC0F}, {mC0}, -1"), I(f"s_cselect_b64 {mC1F}, {mC1}, -1")]),
         I(f"s_mov_b32 {sSCL}, {hex(f2u(28 ** -0.5 * math.log2(math.e)))}"),
         I(f"s_mov_b32 {sNL2E}, {hex(f2u(-math.log2(math.e)))}"),
         I(f"s_mul_i32 s26, {sQB}, {8*NK}"), I(f"s_lshl_b32 s27, {sJ}, 2"), I("s_add_u32 s26, s26, s27"),
         I(f"s_add_u32 s26, s26, {sWV}"), I("s_add_u32 s26, s26, 56"), I(f"s_lshl_b32 {sAST}, s26, 10"),
         I(f"s_lshl_b32 s26, {sJ}, 13"), I(f"s_lshl_b32 s27, {sQB}, 9"), I("s_add_u32 s26, s26, s27"),
         Block([I(f"s_cmp_eq_u32 {sWV}, 0"), I(f"s_cselect_b32 s26, s26, {OOB}")])]
    C += mksrd(SRD_M, 24, MISC_BYTES)
    SC = Sched(L)
    for u in range(14):
        L += [Wait(vm=[f"W{u}", f"X{u//2}"], lgkm="all"), I("s_barrier")]
        if u in (0, 2, 7): L += ST((0, 1, 2))
        elif u in (1, 3, 4, 5, 9, 11, 13): L += ST((1,))
        if u == 0:
            L += [x for g in reads(0) for x in g] + dmaW(2) + dmaX(1)
            continue
        G = Stream(every=CFG["EVQ"] if u > 1 else 3)
        if u == 1: G.add(dmaW(3) + dmaX(2))
        if u + 3 < 14: G.add(dmaW(u + 3))
        if u % 2 == 0 and u // 2 + 2 < 7: G.add(dmaX(u // 2 + 2))
        if u == 12: G.add([I(f"buffer_load_dword v{vRdy}, off, {srd(SRD_D)}, 0 sc1", "rdy")])
        R = Stream([x for g in reads(u) for x in g], rate=0.55)
        U = Stream(C if u == 13 else [])
        SC.run(mm(u - 1), [G, R, U], flush=[G, R, U])
    VB0, VB1 = K1, K1 + 18
    def pk4(d, a, b):
        return [I(f"v_cvt_pk_bf16_f32 v{d[0]}, v{a}, v{a+1}"), I(f"v_cvt_pk_bf16_f32 v{d[1]}, v{a+2}, v{a+3}"),
                I(f"v_cvt_pk_bf16_f32 v{d[2]}, v{b}, v{b+1}"), I(f"v_cvt_pk_bf16_f32 v{d[3]}, v{b+2}, v{b+3}")]
    packK, packV, packQ = [], [], []
    for T in range(9):
        a = K0 + 4*T; packK += pk4([a, a+1, a+2, a+3], a, K1 + 4*T)
        packV += pk4([VB0+2*T, VB0+2*T+1, VB1+2*T, VB1+2*T+1], V0 + 4*T, V1 + 4*T)
    for T in range(8):
        a = Q0 + 4*T
        packQ += pk4([a, a+1, a+2, a+3], a, Q1 + 4*T) + [I(f"v_and_b32 v{a+2}, v{vMq}, v{a+2}"), I(f"v_and_b32 v{a+3}, v{vMq}, v{a+3}")]
    L += [Wait(lgkm="all")] + ST()
    m13 = mm(13)
    m13 = m13[36:] + m13[:36]
    F = Stream(packQ + packK)
    SC.run(m13[:8], [])
    SC.run(m13[8:], [F], flush=[F])
    def sw(n, a, b): return I(f"v_permlane{n}_swap_b32 v{a}, v{b}")
    Z = [Q1 + 12, Q1 + 28]
    L += [sw(32, Q1, Q1 + 8), sw(32, Q1 + 4, Q1 + 12), sw(32, Q1 + 16, Q1 + 24), sw(32, Q1 + 20, Q1 + 28)] + packV[:2]
    L += [sw(16, Q1 + 8, Q1 + 12), sw(16, Q1 + 24, Q1 + 28)]
    G = []
    for z0, z, g, o in ((Z[0], 38, 40, 42), (Z[1], 39, 41, 43)):
        G.append([I(f"v_cvt_pk_bf16_f32 v{z}, v{z0}, v{z0}"), I(f"v_and_b32 v{z}, 0xffff0000, v{z}"),
                  I(f"v_mul_f32 v{z}, {sNL2E}, v{z}"), I(f"v_exp_f32 v{z}, v{z}"), I(f"v_add_f32 v{z}, 1.0, v{z}"),
                  I(f"v_rcp_f32 v{g}, v{z}"), I(f"v_cvt_pk_bf16_f32 v{g}, v{g}, v{g}"), I(f"v_and_b32 v{g}, 0xffff0000, v{g}"),
                  I(f"v_sub_f32 v{o}, 1.0, v{g}"), I(f"v_cvt_pk_bf16_f32 v{o}, v{o}, v{o}"), I(f"v_and_b32 v{o}, 0xffff0000, v{o}"),
                  I(f"v_max_f32 v{o}, {hex(f2u(1e-30))}, v{o}"), I(f"v_rcp_f32 v{z}, v{o}"), I(f"v_mul_f32 v{g}, v{g}, v{z}")])
    sig = [x for ab in zip(*G) for x in ab]
    sig += [I(f"buffer_store_dword v42, v44, {srd(SRD_M)}, s26 offen sc1", "st"),
            I(f"buffer_store_dword v43, v44, {srd(SRD_M)}, s26 offen offset:256 sc1", "st")]
    def smm(gr):
        r = []
        for k in range(4):
            T = 1 + 4*gr + k; b = Q1 + 8*k; q = Q0 + 4*(T-1)
            r += [mfma(vq(b), vq(K0 + 4*(T-1)), vq(q), True), mfma(vq(b + 4), vq(K0 + 4*T), vq(q), True)]
        return r
    def reduce4(op, m, mid):
        return [sw(32, m[0], m[2]), sw(32, m[1], m[3]), I(f"{op} v{m[0]}, v{m[0]}, v{m[2]}"), I(f"{op} v{m[1]}, v{m[1]}, v{m[3]}"), None,
                sw(16, m[0], m[1]), I(f"{op} v{m[0]}, v{m[0]}, v{m[1]}")] + mid + \
               [I(f"v_mov_b32 v{m[1]}, v{m[0]}"), None, sw(16, m[0], m[1]), I(f"v_mov_b32 v{m[2]}, v{m[0]}"), I(f"v_mov_b32 v{m[3]}, v{m[1]}"), None,
                sw(32, m[0], m[2]), sw(32, m[1], m[3])]
    def fillnone(seq, fill):
        o = []
        for x in seq:
            if x is None:
                o += [fill.pop(0), fill.pop(0)] if len(fill) >= 2 else [I("s_nop 1")]
            else: o.append(x)
        return o
    def outs(gr):
        r = []
        for k in range(4):
            T = 1 + 4*gr + k; O0, O1 = V0 + 4*T, V1 + 4*T; m = MS[gr] + 2*k
            r += [I(f"v_cndmask_b32 v{m+1}, v{m}, 0, {mG3}")]
            r += pkify([I(f"v_mul_f32 v{O0+j}, v{O0+j}, v{m}") for j in range(4)] + [I(f"v_mul_f32 v{O1+j}, v{O1+j}, v{m+1}") for j in range(4)])
            r += pk4([O0, O0+1, O0+2, O0+3], O0, O1)
            r += [I(f"buffer_store_dwordx4 {vq(O0)}, v{vSt}, {srd(SRD_A)}, {sAST} offen sc1", "st"), I(f"s_add_u32 {sAST}, {sAST}, {NK*1024}")]
        return r
    MS = [2, 30]
    def att(gr, fill):
        B = [Q1 + 8*k for k in range(4)]
        r = []
        for k in range(4):
            SP, SC_ = B[k], B[k] + 4
            r += [I(f"v_cndmask_b32 v{SP}, v{SP}, v{SP+1}, {mODD}"), I(f"v_cndmask_b32 v{SP+1}, v{SP+2}, v{SP+3}, {mODD}"),
                  I(f"v_cndmask_b32 v{SC_}, v{SC_}, v{SC_+1}, {mODD}"), I(f"v_cndmask_b32 v{SC_+1}, v{SC_+2}, v{SC_+3}, {mODD}"),
                  I(f"v_cndmask_b32 v{SP}, v{SP}, v{SC_}, {mC0}"), I(f"v_cndmask_b32 v{SP+1}, v{SP+1}, v{SC_+1}, {mC1}")]
            if gr == 0 and k == 0:
                r += [I(f"v_mov_b32 v{SP+3}, {hex(f2u(-1e30))}"),
                      I(f"v_cndmask_b32 v{SP}, v{SP+3}, v{SP}, {mC0F}"), I(f"v_cndmask_b32 v{SP+1}, v{SP+3}, v{SP+1}, {mC1F}")]
            r += [I(f"v_max_f32 v{SP+2}, v{SP}, v{SP+1}")]
        m = [b + 2 for b in B]
        r += fillnone([None] + reduce4("v_max_f32", m, [I(f"v_mul_f32 v{m[0]}, {sSCL}, v{m[0]}")]), fill)
        for b in B:
            r += [I(f"v_pk_fma_f32 v[{b}:{b+1}], v[{b}:{b+1}], s[92:93], v[{b+2}:{b+3}] op_sel_hi:[1,0,0] neg_lo:[0,0,1] neg_hi:[0,0,1]")]
        for b in B: r += [I(f"v_exp_f32 v{b}, v{b}"), I(f"v_exp_f32 v{b+1}, v{b+1}")]
        ms = [MS[gr] + 2*k for k in range(4)]
        for k, b in enumerate(B): r += [I(f"v_cvt_pk_bf16_f32 v{b+3}, v{b}, v{b+1}"), I(f"v_add_f32 v{ms[k]}, v{b}, v{b+1}")]
        for b in B: r += [I(f"v_perm_b32 v{b+4+j}, v{b+3}, v{b+3}, v{sel[j]}") for j in range(4)]
        red = reduce4("v_add_f32", ms, [I(f"v_rcp_f32 v{ms[0]}, v{ms[0]}"), I("s_nop 0"), I(f"v_mul_f32 v{ms[0]}, v{ms[0]}, v{40 + gr}")])
        pv = []
        for k, b in enumerate(B):
            T = 1 + 4*gr + k
            pv += [mfma(vq(V0 + 4*T), vq(VB0 + 2*(T-1)), vq(b + 4), True), mfma(vq(V1 + 4*T), vq(VB1 + 2*(T-1)), vq(b + 4), True)]
        return r, red, pv
    L += sig[:2]; sig = sig[2:]
    L += smm(0)
    L += packV[2:] + ST()
    r0, red0, pv0 = att(0, sig)
    L += r0 + sig
    f = list(pv0); L += fillnone(red0, f) + f
    L += smm(1)
    o0 = outs(0)
    L += o0[:12]; o0 = o0[12:]
    r1, red1, pv1 = att(1, o0)
    L += r1
    f = list(pv1); L += fillnone(red1, f) + f
    L += o0 + outs(1)
    L += ST()
    L += [I(f"s_lshl_b32 s26, {sQB}, 2"), I(f"s_add_u32 s26, s26, {sJ}"), I("s_lshl_b32 s26, s26, 7"), I(f"s_add_u32 s26, s26, {FLAG_OFF + FL_O}")]
    L += publish("o", vRdy, 1, "s26") + ST() + ST.dump(65536, 2)
    return L, slow("o", vRdy)

def isize(x):
    if x.kind in ("label", "directive"): return 0
    if x.kind in ("mfma", "ds", "vmem", "smem"): return 8
    t = x.text.split(";")[0]
    lit = False
    for tok in re.findall(r"(?<![\w\[:.])(-?0x[0-9a-f]+|-?\d+)(?![\w.\]:])", t.split(None, 1)[1] if " " in t.strip() else ""):
        v = int(tok, 0)
        if v > 64 or v < -16: lit = True
    op = x.op
    if op in ("s_movk_i32", "s_nop", "s_waitcnt", "s_barrier") or op.startswith(("s_cbranch", "s_branch")): return 4
    if op.startswith("s_"): return 8 if lit else 4
    if op.startswith(("v_cvt_pk", "v_pk_", "v_perm_b32", "v_mad", "v_lshl_add", "v_bfe", "v_writelane", "v_fma")): return 8
    if op.startswith("v_cndmask") and "vcc" not in t: return 8
    if op.startswith("v_cmp") and "vcc" not in t: return 8
    return 8 if lit else 4

def add_pads(regions):
    spots = []
    for seq, start in regions:
        since = 10 ** 9
        for i in range(start, len(seq) - 1):
            x, y = seq[i], seq[i + 1]
            since += isize(x)
            free = x.kind == "mfma" and not is_scalar(y)
            any_ok = y.kind in ("valu", "trans", "ds", "vmem", "mfma") and x.kind != "label"
            if (since >= CFG["IST"] - 40 and free) or (since >= CFG["IST"] and any_ok):
                spots.append((id(seq), i + 1)); since = 4
    per = -(-len(spots) // 4)
    ins = {}
    for k, sp in enumerate(spots):
        w, n = divmod(k, per)
        last = n == per - 1 or k == len(spots) - 1
        ins[sp] = [I(f"L_ip{w}_{n}:"), I(f"s_cbranch_execz {'L_end' if last else f'L_ip{w}_{n+1}'}")]
    out = []
    for seq, start in regions:
        o = []
        for i, x in enumerate(seq):
            o += ins.get((id(seq), i), [])
            o.append(x)
        out.append(o)
    print("pads:", len(spots))
    return out

def main():
    for n in range(84): assert (n * 43) >> 8 == n // 6
    for n in range(64): assert (n * 79) >> 10 == n // 13 and (n * 37) >> 8 == n // 7
    for n in range(30): assert (n * 43) >> 7 == n // 3
    for n in range(182): assert (n * 147) >> 10 == n // 7
    pro = prologue()
    def path(role):
        full = resolve(pro + role)
        return full[len(pro):], full
    fr, fx = ffn()
    qr, qx = qkv()
    f, ff = path(fr)
    q, qf = path(qr)
    if CFG["IPF"]:
        nb = lambda seq, k: [i for i, x in enumerate(seq) if x.kind == "barrier"][k]
        f, q = add_pads([(f, nb(f, CFG["IPF0"])), (q, nb(q, CFG["IPQ0"]))])
        ff, qf = pro + f, pro + q
    probs = []
    for nm, s in (("ffn", ff), ("qkv", qf), ("idle", pro + idle()), ("fx", fx), ("qx", qx)):
        probs += check_hazards(s, nm) + check_pending(s, nm) + check_scc(s, nm)
    for p in probs: print("HAZARD", p, file=sys.stderr)
    ref = open(f"cdna_kernels/{NAME}.s.ref").read()
    out = ref.split("; @launch")[0]
    out += "; @launch grid=(256,1,1) block=(256,1,1) lds=163840\n"
    out += f'.amdgcn_target "amdgcn-amd-amdhsa--gfx950"\n.text\n.globl {NAME}_kernel\n.p2align 8\n.type {NAME}_kernel,@function\n{NAME}_kernel:\n'
    out += render(pro) + "\n" + render(f) + "\n    s_endpgm\n" + render(fx) + "\n" + render(q) + "\n    s_endpgm\n" + render(qx) + "\n"
    out += render(idle()) + "\nL_end:\n    s_endpgm\n"
    out += f""".section .rodata,"a"
.p2align 6
.amdhsa_kernel {NAME}_kernel
  .amdhsa_next_free_vgpr 512
  .amdhsa_next_free_sgpr 102
  .amdhsa_accum_offset 256
  .amdhsa_group_segment_fixed_size 0
  .amdhsa_kernarg_size 88
  .amdhsa_user_sgpr_count 2
  .amdhsa_user_sgpr_kernarg_segment_ptr 1
  .amdhsa_system_sgpr_workgroup_id_x 1
.end_amdhsa_kernel
"""
    open(sys.argv[1], "w").write(out)
    print("instr counts: ffn", len(f), "qkv", len(q), "hazards", len(probs))

main()
```

```python
import sys, os, math, struct, re
sys.path.insert(0, os.path.dirname(os.path.abspath(__file__)))
from asmlib import *

NAME = "gated_mix__sliding_local_dilated__swiglu_ffn__prompt"
CFG = dict(ROT=2, P1=4, STAMP=0, PUB=3, PF=3, PAD=0, CYC=0, SET=0, G=3, GI=2, GQ=3, GIQ=2, JMAP=0xc9, AMP=0, AMPROLE=1, AMPWG=18, XF=0, OFAST=1, TLB=1, LAQ=2, QD=0, IPF=0, IST=208, IPF0=9, IPQ0=4, RX=0, RH=0, PRE=1, OSC=0, EV1=3, EV2=2, EVQ=4, PUBD=24)
for a in sys.argv[2:]:
    k, v = a.split("=")
    CFG[k] = int(v, 0)
ROT, P1 = CFG["ROT"], CFG["P1"]

def f2u(x):
    return struct.unpack("<I", struct.pack("<f", x))[0]

S, D, F = 2048, 448, 1792
X_BYTES = S * D * 2
WQKV_BYTES = D * 3 * D * 2
WO_BYTES = D * D * 2
WG_BYTES = D * F * 2
NK = 73
A_OFF = 131072
A_BYTES = 128 * NK * 1024
MISC_BYTES = 131072
FLAG_OFF = 81920
OOB = 0x40000000
MASTER = 248

sWV = "s3"
SRD_X, SRD_W, SRD_A, SRD_O, SRD_W2, SRD_WO, SRD_M, SRD_D = 28, 32, 36, 40, 44, 48, 52, 96
def srd(n): return f"s[{n}:{n+3}]"
sK = [f"s{56+i}" for i in range(7)]
sROW0, sC, sT0, sT1, sT2, sT3 = "s63", "s64", "s65", "s66", "s67", "s68"
sM0W, sM0X, sSOFF, sAST, sNL2E = "s69", "s70", "s71", "s73", "s72"
sXROW = [f"s{74+i}" for i in range(5)]
sJ = "s79"
mODD, mC0, mC1, mC0F, mC1F, mG3 = "s[80:81]", "s[82:83]", "s[84:85]", "s[86:87]", "s[88:89]", "s[90:91]"
sSCL, sQB, sN2, sRB = "s92", "s93", "s94", "s95"
sRT, sNT, sAO, sCW, sCA, sM02 = "s74", "s75", "s76", "s77", "s78", "s79"

def vq(n, k=4): return f"v[{n}:{n+k-1}]"
def aq(n, k=4): return f"a[{n}:{n+k-1}]"
def rq(r, k=4): return f"{r[0]}[{r[1]}:{r[1]+k-1}]"

def mksrd(n, lo, size):
    return [I(f"s_mov_b32 s{n}, s{lo}"), I(f"s_mov_b32 s{n+1}, s{lo+1}"),
            I(f"s_mov_b32 s{n+2}, {size}"), I(f"s_mov_b32 s{n+3}, 0x20000")]

def srd_a():
    return [I(f"s_add_u32 s{SRD_A}, s24, {A_OFF}"), I(f"s_addc_u32 s{SRD_A+1}, s25, 0"),
            I(f"s_mov_b32 s{SRD_A+2}, {A_BYTES}"), I(f"s_mov_b32 s{SRD_A+3}, 0x20000")]

def mfma32(d, a, b, first):
    return I(f"v_mfma_f32_32x32x16_bf16 {d}, {a}, {b}, {'0' if first else d}")

def mfma(d, a, b, first):
    return I(f"v_mfma_f32_16x16x32_bf16 {d}, {a}, {b}, {'0' if first else d}")

class Stamps:
    def __init__(self, regs, role): self.regs = regs; self.n = 0; self.role = role
    def __call__(self, sets=(0,)):
        if not CFG["STAMP"] or not (sets is True or CFG["SET"] in sets): return []
        r = self.regs[self.n]; self.n += 1
        op = "s_memtime" if CFG["CYC"] else "s_memrealtime"
        return [I(f"{op} s[100:101]"), I("s_waitcnt lgkmcnt(0)"), I(f"s_mov_b32 s{r}, s100")]
    def dump(self, base, vtmp):
        if not CFG["STAMP"]: return []
        if CFG["AMP"]:
            a, b = divmod(CFG["AMP"], 100)
            if (base is None) or max(a, b) >= self.n or CFG["AMPROLE"] != self.role: return []
            lab = f"L_amp{self.role}"
            return [I(f"s_cmp_lg_u32 s2, {CFG['AMPWG']}"), I("s_cbranch_scc1 L_end"),
                    I(f"s_sub_u32 s10, s{self.regs[b]}, s{self.regs[a]}"), I("s_mul_i32 s10, s10, 10"), I("s_add_u32 s10, s10, 4000"),
                    I(lab + ":"), I("s_memrealtime s[100:101]"), I("s_waitcnt lgkmcnt(0)"), I(f"s_sub_u32 s100, s100, s{self.regs[0]}"),
                    I("s_cmp_lt_u32 s100, s10"), I(f"s_cbranch_scc1 {lab}")]
        L = [I("s_waitcnt vmcnt(0)")] + self(True)
        L += [I(f"v_mov_b32 v{vtmp}, 0")]
        for k in range(self.n): L.append(I(f"v_writelane_b32 v{vtmp}, s{self.regs[k]}, {k}"))
        L += [I("s_lshl_b32 s26, s2, 6"), I(f"s_add_u32 s26, s26, {base}"), I(f"s_cmp_eq_u32 {sWV}, 0"), I(f"s_cselect_b32 s26, s26, {OOB}"),
              I(f"v_lshlrev_b32 v{vtmp+1}, 2, v0"), I("v_cmp_gt_u32 vcc, 16, v0"), I("s_nop 4"), I("s_and_saveexec_b64 s[10:11], vcc"),
              I(f"buffer_store_dword v{vtmp}, v{vtmp+1}, {srd(SRD_M)}, s26 offen")]
        if CFG["STAMP"] == 2:
            L += [I("s_cmp_eq_u32 s2, 0"), I(f"s_cselect_b32 s26, 8, {OOB}"), I(f"s_cmp_eq_u32 {sWV}, 0"), I(f"s_cselect_b32 s26, s26, {OOB}"),
                  I(f"buffer_store_dword v{vtmp}, v{vtmp+1}, {srd(SRD_D)}, s26 offen")]
        return L

def sk_next(s):
    return [I(f"s_add_u32 {sK[s]}, {sK[s-1]}, 128"), I(f"s_cmp_eq_u32 {sK[s]}, 896"),
            I(f"s_cselect_b32 {sK[s]}, 0, {sK[s]}")]

def rot_small(a, b):
    G, GI, RX, RH = CFG["G"], CFG["GI"], CFG["RX"], CFG["RH"]
    if b is None: G, GI = CFG["GQ"], CFG["GIQ"]
    L = [I(f"s_add_u32 s27, {a}, {b}")] if b else [I(f"s_mov_b32 s27, {a}")]
    if G == 1: L = [I("s_mov_b32 s27, 0")]
    elif G == 2: L += [I("s_and_b32 s27, s27, 1")]
    elif G == 3: L += [I("s_mul_i32 s11, s27, 43"), I("s_lshr_b32 s11, s11, 7"), I("s_mul_i32 s11, s11, 3"), I("s_sub_u32 s27, s27, s11")]
    if G > 1 and GI != 1: L += [I(f"s_mul_i32 s27, s27, {GI}")]
    if RX: L += [I("s_bfe_u32 s11, s2, 0x20001"), I(f"s_mul_i32 s11, s11, {RX}"), I("s_add_u32 s27, s27, s11")]
    if RH: L += [I("s_and_b32 s11, s2, 1"), I(f"s_mul_i32 s11, s11, {RH}"), I("s_add_u32 s27, s27, s11")]
    if G == 7 or RX or RH:
        L += [I("s_mul_i32 s11, s27, 147"), I("s_lshr_b32 s11, s11, 10"), I("s_mul_i32 s11, s11, 7"), I("s_sub_u32 s27, s27, s11")]
    L += [I(f"s_lshl_b32 {sK[0]}, s27, 7")]
    return L

def blockify(seq):
    o, i = [], 0
    while i < len(seq):
        x = seq[i]
        j = i + 1
        while j < len(seq) and getattr(seq[j], "op", "").startswith(("s_cselect", "s_addc")): j += 1
        o.append(Block(seq[i:j]) if j > i + 1 else x)
        i = j
    return o

def direct(seq):
    o = []
    Sched(o).flush(Stream(seq))
    return o

def publish(tag, vrdy, vone, scnt, st="st"):
    return [Wait(vm=[st, "rdy"]), I(f"v_readfirstlane_b32 s10, v{vrdy}"), I(f"v_mov_b32 v{vone}, 1")] + spin_init() + [I("s_nop 0"),
            I("s_cmp_eq_u32 s10, 0"), I(f"s_cbranch_scc1 L_slow_{tag}"), I(f"L_back_{tag}:"),
            I("s_mov_b64 exec, 1"),
            I(f"buffer_atomic_add v{vone}, off, {srd(SRD_M)}, {scnt} sc1", "pub"),
            I("s_mov_b64 exec, -1")]

SPIN = "s11"
def spin_init(): return [I(f"s_mov_b32 {SPIN}, 0x100000")]
def spin_step(): return [I(f"s_sub_u32 {SPIN}, {SPIN}, 1"), I("s_cbranch_scc1 L_end")]

def slow(tag, vrdy):
    return [I(f"L_slow_{tag}:")] + spin_step() + [I(f"buffer_load_dword v{vrdy}, off, {srd(SRD_D)}, 0 sc1"), I("s_waitcnt vmcnt(0)"),
            I(f"v_readfirstlane_b32 s10, v{vrdy}"), I("s_nop 3"), I("s_cmp_eq_u32 s10, 0"), I(f"s_cbranch_scc1 L_slow_{tag}"),
            I(f"s_branch L_back_{tag}")]

def prologue():
    L = [I("s_cmp_ge_u32 s2, 256"), I("s_cbranch_scc1 L_end"),
         I("s_load_dwordx4 s[4:7], s[0:1], 0", "ka"), I("s_load_dwordx8 s[12:19], s[0:1], 32", "ka"),
         I("s_load_dwordx2 s[8:9], s[0:1], 16", "ka"), I("s_load_dwordx4 s[20:23], s[0:1], 64", "ka"),
         I("s_load_dwordx2 s[24:25], s[0:1], 80", "ka")]
    L += [I("v_lshrrev_b32 v1, 6, v0"), I("v_and_b32 v0, 63, v0"),
          I("s_bfe_u32 s10, s2, 0x20001"),
          I("v_readfirstlane_b32 s3, v1"),
          I("s_lshr_b32 s11, s2, 3"),
          I("s_and_b32 s27, s2, 1"),
          I("s_cmp_lt_u32 s11, 8"), I("s_cbranch_scc1 L_qkv"),
          I("s_mul_i32 s26, s10, 23"), I("s_add_u32 s26, s26, s11"), I("s_sub_u32 s26, s26, 8"),
          I("s_cmp_eq_u32 s11, 31"), I("s_cbranch_scc1 L_idle"), I("s_cmp_ge_u32 s26, 91"), I("s_cbranch_scc1 L_idle"),
          I(f"s_mul_i32 {sN2}, s27, 91"), I(f"s_add_u32 {sN2}, {sN2}, s26"),
          I("s_mul_i32 s11, s27, 7"), I("s_sub_u32 s10, 49, s11"),
          I("s_cmp_ge_u32 s26, s10"), I("s_cselect_b32 s10, s10, 0"), I(f"s_cselect_b32 {sC}, 7, 0"),
          I(f"s_cselect_b32 {sRB}, s27, 0"), I(f"s_cselect_b32 {sQB}, 1, 0"),
          I("s_sub_u32 s26, s26, s10"), I(f"s_sub_u32 {sRB}, s11, {sRB}"),
          I(f"s_cmp_eq_u32 {sQB}, s27"), I("s_cselect_b32 s10, 37, 43"), I("s_cselect_b32 s11, 7, 6"),
          I("s_mul_i32 s10, s10, s26"), I("s_lshr_b32 s10, s10, 8"), I(f"s_add_u32 {sC}, {sC}, s10"),
          I("s_mul_i32 s10, s10, s11"), I("s_sub_u32 s26, s26, s10"), I(f"s_add_u32 {sRB}, {sRB}, s26")]
    return L

def idle():
    L = [I("L_idle:"), I("v_lshlrev_b32 v1, 7, v0"), I("s_waitcnt lgkmcnt(0)")]
    if CFG["XF"]: L += mksrd(SRD_X, 18, 896) + [I(f"buffer_load_dword v20, off, {srd(SRD_X)}, 0")]
    L += [
         I(f"s_cmp_lg_u32 s2, {MASTER}"), I("s_cbranch_scc1 L_pre"), I(f"s_cmp_lg_u32 {sWV}, 0"), I("s_cbranch_scc1 L_pre"),
         I("v_mov_b32 v2, 0"), I("v_mov_b32 v3, 1")] + mksrd(SRD_M, 24, MISC_BYTES) + mksrd(SRD_D, 22, 256)
    L += [x for k in range(5) for x in (I(f"s_mov_b32 s27, {FLAG_OFF + 8192*k}"), I(f"buffer_store_dword v2, v1, {srd(SRD_M)}, s27 offen sc1"))]
    L += [I("s_waitcnt vmcnt(0)"), I("s_mov_b64 exec, 1"), I(f"buffer_store_dword v3, off, {srd(SRD_D)}, 0 sc1"), I("s_mov_b64 exec, -1"),
          I("L_pre:")]
    if CFG["TLB"]:
        L += srd_a() + mksrd(SRD_O, 20, X_BYTES) + mksrd(SRD_D, 22, 256)
        L += [I(f"s_mov_b32 s26, {NK*1024}"), I("v_mul_u32_u24 v12, s26, v0"), I(f"s_lshl_b32 s27, {sWV}, 5"), I("s_mul_i32 s27, s27, s26"),
              I(f"s_add_u32 s27, s27, {72*1024}"), I("s_movk_i32 s26, 28672"), I("v_mul_u32_u24 v13, s26, v0"),
              I(f"s_cmp_lt_u32 {sWV}, 2"), I("s_cbranch_scc0 L_tlb2"), I("s_lshl_b32 s27, s27, 1"), I(f"s_sub_u32 s27, s27, {72*1024}"),
              I(f"buffer_load_dword v14, v12, {srd(SRD_A)}, s27 offen"), I("s_branch L_tlb3"),
              I("L_tlb2:"), I(f"buffer_load_dword v16, v13, {srd(SRD_O)}, 0 offen"), I(f"buffer_load_dword v15, off, {srd(SRD_D)}, 0 offset:128"),
              I("L_tlb3:")]
    if CFG["PRE"]:
        L += [I("s_and_b32 s26, s2, 7"), I("s_and_b32 s27, s2, 1"), I("s_add_u32 s27, s27, 8"), I("s_cmp_eq_u32 s11, 31"), I("s_cselect_b32 s26, s26, s27"),
              I("s_lshl_b32 s26, s26, 2"), I(f"s_add_u32 s26, s26, {sWV}"), I("s_lshl_b32 s26, s26, 13")]
        L += mksrd(SRD_W2, 16, WG_BYTES) + mksrd(SRD_WO, 8, WO_BYTES)
        for k in range(7):
            if k == 2: L += [I(f"s_sub_u32 s26, s26, {2*327680}")]
            L += [I(f"buffer_load_dword v{4+k}, v1, {srd(SRD_WO if k < 2 else SRD_W2)}, s26 offen"), I("s_add_u32 s26, s26, 327680")]
    if CFG["IPF"]:
        L += [I("s_mov_b64 exec, 0")]
        for w in range(1, 4): L += [I(f"s_cmp_eq_u32 {sWV}, {w}"), I(f"s_cbranch_scc1 L_ip{w}_0")]
        L += [I("s_branch L_ip0_0")]
    return L

P1 = 4
FW_RING, FW_R = 0, 4
FX_RING = 65536
FX_SLOT = P1 * 2048
FX2 = 102400
NT2 = 10 - P1
assert FX_RING + 3 * FX_SLOT <= 98304 and FX2 + 4 * 14336 <= 163840
SL2 = 6
RED = 98304
FL_LATE, FL_O = 104 * 128, 208 * 128

def ffn():
    ST = Stamps(list(range(80, 93)) + [4, 5, 6], 0)
    vWd = [1, 2, 3, 4]; vXd = [5, 6]; vX2d = 8; vWr = [9, 10]; vXr = [11, 12, 13, 14]; vAst = 21
    vT = [16, 17, 18, 19]; vRdy = 20; vOne = 7; vHi = 22
    XB = 24
    ACC = 72; NSL = 3
    v2d = [176, 177, 178, 179]; v2r = [180, 181, 182, 183]
    W2V = 184
    sODD, sCE, sCL, sDX = "s93", "s26", "s27", "s68"
    def acc(T, ct): return ACC + (T % NSL) * 32 + ct * 16
    def wfr(k, ct): return (k * 2 + ct) * 4
    L = [I("L_ffn:")] + ST(True)
    if CFG["PAD"]: L += [I("s_memrealtime s[80:81]")]
    L += [I(f"s_mul_i32 {sROW0}, {sRB}, 160"), I(f"s_and_b32 {sODD}, {sC}, 1")]
    L += rot_small(sRB, sC)
    r4, p16, r8, p8 = 16, 17, 18, 19
    L += [I(f"v_lshrrev_b32 v{r4}, 4, v0"), I(f"v_and_b32 v{p16}, 15, v0"),
          I(f"v_lshrrev_b32 v{r8}, 3, v0"), I(f"v_and_b32 v{p8}, 7, v0"),
          I(f"s_and_b32 s10, {sWV}, 1"), I("s_mul_i32 s11, s10, 57344"),
          I(f"s_lshl_b32 s27, {sC}, 8"), I("s_add_u32 s11, s11, s27"),
          I("s_movk_i32 s27, 3584"), I(f"v_mul_u32_u24 v20, s27, v{r4}"), I("v_add_u32 v20, s11, v20"),
          I(f"v_lshlrev_b32 v21, 2, v{r4}"), I(f"v_xor_b32 v21, v21, v{p16}"),
          I(f"s_and_b32 s11, {sWV}, 2"), I("v_xor_b32 v21, s11, v21"),
          I(f"v_lshl_add_u32 v{vWd[0]}, v21, 4, v20")]
    for i in range(1, 4): L += [I(f"v_add_u32 v{vWd[i]}, {4*3584-1024}, v{vWd[i-1]}")]
    L += [I(f"s_lshl_b32 {sM0W}, {sWV}, 12"),
          I(f"s_lshr_b32 s11, {sWV}, 1"), I("s_sub_u32 s27, 4, s11"), I(f"s_cmp_eq_u32 {sODD}, 0"), I("s_cselect_b32 s11, s11, s27"),
          I("s_lshl_b32 s11, s11, 1"), I("s_add_u32 s11, s11, s10"), I("s_lshl_b32 s11, s11, 4"),
          I(f"s_add_u32 s11, s11, {sROW0}"), I("s_mul_i32 s11, s11, 896"),
          I(f"s_lshl_b32 {sM0X}, {sWV}, 11"), I(f"s_add_u32 {sM0X}, {sM0X}, {FX_RING}"),
          I("s_movk_i32 s27, 896"),
          I(f"v_mul_u32_u24 v20, s27, v{r8}"),
          I(f"v_xor_b32 v21, v{r4}, v{p8}"),
          I(f"v_lshl_add_u32 v22, v21, 4, v20"),
          I(f"v_add_u32 v{vXd[0]}, s11, v22"), I("v_xor_b32 v23, 64, v22"),
          I(f"s_add_u32 s11, s11, {8*896-1024}"), I(f"v_add_u32 v{vXd[1]}, s11, v23")]
    L += [Wait(lgkm="all")] + ST((4,))
    L += [I(f"s_cmp_lt_u32 {sWV}, 2"), I(f"s_cselect_b32 s{SRD_W}, s12, s14"), I(f"s_cselect_b32 s{SRD_W+1}, s13, s15"),
          I(f"s_mov_b32 s{SRD_W+2}, {WG_BYTES}"), I(f"s_mov_b32 s{SRD_W+3}, 0x20000")]

    def dmaW(u):
        s, e = divmod(u, 2)
        r = [I(f"s_add_u32 m0, {sM0W}, {FW_RING + (u % FW_R) * 16384}"), I(f"s_mul_i32 {sSOFF}, {sK[s]}, 1792")]
        if e: r += [I(f"s_add_u32 {sSOFF}, {sSOFF}, 114688")]
        for i in range(4):
            r.append(I(f"buffer_load_dwordx4 v{vWd[i]}, {srd(SRD_W)}, {sSOFF} offen offset:{1024*i} lds", f"W{u}"))
        return r
    def dmaX(s):
        r = [I(f"s_add_u32 m0, {sM0X}, {(s % 3) * FX_SLOT}")]
        for i in range(2):
            r.append(I(f"buffer_load_dwordx4 v{vXd[i]}, {srd(SRD_X)}, {sK[s]} offen offset:{1024*i} lds", f"X{s}"))
        return r
    def dmaX2(p):
        r = [I(f"s_add_u32 m0, {sT1}, {FX2 + (p % 2) * 28672}")]
        if p: r += [I(f"v_add_u32 v{vX2d}, {sDX}, v{vX2d}")]
        for s in range(7):
            r += [I(f"buffer_load_dwordx4 v{vX2d}, {srd(SRD_X)}, {sK[s]} offen lds", f"X2_{p}")]
            if s < 6: r += [I("s_add_u32 m0, m0, 4096")]
        return r
    if CFG["XF"]:
        L += mksrd(SRD_X, 4, X_BYTES) + [I("s_bitcmp1_b32 s2, 3"), I("s_cbranch_scc1 L_xf")]
        L += dmaW(0) + direct(dmaX(0)) + [I("L_xf_back:")] + ST((4,))
        xf_extra = [I("L_xf:")] + direct(dmaX(0)) + dmaW(0) + [I("s_branch L_xf_back")]
    else:
        L += dmaW(0) + mksrd(SRD_X, 4, X_BYTES) + direct(dmaX(0)) + ST((4,)); xf_extra = []
    L += [I(f"v_and_b32 v24, 1, v{r4}"), I(f"v_lshrrev_b32 v25, 5, v0"),
          I("v_bfe_u32 v20, v0, 2, 2"), I("v_lshl_add_u32 v27, v25, 3, v20"),
          I("v_lshl_add_u32 v20, v20, 1, v24"),
          I(f"s_lshl_b32 s11, {sWV}, 1"), I("v_xor_b32 v20, s11, v20"), I("v_lshlrev_b32 v20, 5, v20"),
          I("v_lshl_add_u32 v20, v27, 8, v20"), I("v_lshl_add_u32 v20, v24, 13, v20"),
          I("v_and_b32 v27, 3, v0"), I(f"v_lshl_add_u32 v{vWr[0]}, v27, 3, v20"), I(f"v_xor_b32 v{vWr[1]}, 32, v{vWr[0]}"),
          I("v_bfe_u32 v20, v0, 1, 3"), I("v_xor_b32 v20, v20, v25"), I("v_lshlrev_b32 v20, 4, v20"),
          I("v_and_b32 v27, 31, v0"), I("v_lshl_add_u32 v20, v27, 7, v20"), I(f"v_add_u32 v{vXr[0]}, {FX_RING}, v20")]
    for j in range(1, 4): L += [I(f"v_xor_b32 v{vXr[j]}, {32*j}, v{vXr[0]}")]
    for s in range(1, 7): L += sk_next(s)
    L += dmaW(1) + dmaW(2) + direct(dmaX(1)) + ST((4,))
    L0 = L; L = []
    L += srd_a() + mksrd(SRD_M, 24, MISC_BYTES) + mksrd(SRD_D, 22, 256)
    L += [I(f"s_mov_b32 {sNL2E}, {hex(f2u(-math.log2(math.e)))}"),
          I(f"s_and_b32 s11, {sWV}, 1"), I("s_lshl_b32 s27, s11, 6"), I("v_xor_b32 v23, s27, v22"),
          I(f"s_lshl_b32 s10, {sWV}, 3"), I(f"s_add_u32 s10, s10, {sROW0}"), I("s_add_u32 s10, s10, 64"), I("s_mul_i32 s10, s10, 896"),
          I(f"v_add_u32 v{vX2d}, s10, v23"), I(f"s_lshl_b32 {sT1}, {sWV}, 10"),
          I(f"s_mul_i32 s10, {sODD}, {64*896}"), I(f"s_sub_u32 {sDX}, {32*896}, s10"),
          I(f"s_lshl_b32 s10, {sODD}, 7"), I(f"s_add_u32 s10, s10, {sROW0}"),
          I(f"s_lshr_b32 s10, s10, 4"), I(f"s_mul_i32 s10, s10, {NK}"), I(f"s_lshl_b32 s11, {sC}, 2"),
          I("s_add_u32 s10, s10, s11"), I(f"s_add_u32 s10, s10, {sWV}"), I(f"s_lshl_b32 {sAST}, s10, 10"),
          I(f"s_mul_i32 s10, {sODD}, {4*NK*1024}"), I(f"s_sub_u32 {sT2}, {2*NK*1024}, s10"),
          I("v_lshlrev_b32 v15, 4, v0"),
          I(f"s_mov_b32 s10, {NK*1024}"), I(f"v_mul_u32_u24 v20, s10, v24"), I(f"v_lshl_add_u32 v20, v25, 8, v20"),
          I(f"v_lshl_add_u32 v26, v{p16}, 4, v20")]
    L += [I(f"s_mul_i32 {sRT}, {sN2}, 147"), I(f"s_lshr_b32 {sRT}, {sRT}, 10"),
          I(f"s_mul_i32 s10, {sRT}, 7"), I(f"s_sub_u32 {sNT}, {sN2}, s10"),
          I("s_movk_i32 s27, 896"), I(f"v_mul_u32_u24 v20, s27, v{r8}"),
          I(f"v_and_b32 v21, 6, v{r8}"), I(f"v_xor_b32 v21, v21, v{p8}"),
          I(f"v_lshl_add_u32 v20, v21, 4, v20"),
          I(f"s_lshl_b32 s10, {sNT}, 7"), I(f"v_add_u32 v{v2d[0]}, s10, v20")]
    for i in range(1, 4): L += [I(f"v_add_u32 v{v2d[i]}, {8*896-1024}, v{v2d[i-1]}")]
    L += [I(f"s_mul_i32 {sM02}, {sWV}, {SL2*4096}"),
          I("v_lshrrev_b32 v20, 2, v0"), I("v_bfe_u32 v21, v0, 3, 2"), I(f"v_xor_b32 v21, {sWV}, v21"),
          I("v_lshlrev_b32 v21, 5, v21"), I("v_lshl_add_u32 v21, v20, 7, v21"),
          I("v_and_b32 v20, 3, v0"), I("v_lshl_add_u32 v21, v20, 3, v21"),
          I(f"v_add_u32 v{v2r[0]}, {sM02}, v21")]
    for t in range(1, 4): L += [I(f"v_xor_b32 v{v2r[t]}, {32*t}, v{v2r[0]}")]
    L += [I(f"v_mov_b32 v{vAst}, v26"), I(f"v_lshlrev_b32 v{vHi}, 10, v25")]
    L += mksrd(SRD_W2, 16, WG_BYTES) + mksrd(SRD_WO, 8, WO_BYTES) + mksrd(SRD_O, 20, X_BYTES)
    sPAR, sR0 = "s12", "s13"
    sWb, sAb = ["s14", "s15"], ["s18", "s19"]
    L += [I(f"s_and_b32 {sPAR}, {sRT}, 1"), I(f"s_bfe_u32 s10, {sRT}, 0x10001"), I("s_mul_i32 s10, s10, 3"),
          I(f"s_add_u32 {sR0}, {sNT}, s10"), I(f"s_sub_u32 s10, {sR0}, 7"), I(f"s_cmp_ge_u32 {sR0}, 7"), I(f"s_cselect_b32 {sR0}, s10, {sR0}"),
          I(f"s_mul_i32 s10, {sWV}, {32*896}"), I(f"s_mul_i32 s11, {sPAR}, {128*896}"),
          I(f"s_add_u32 {sWb[0]}, s10, s11"), I(f"s_sub_u32 s10, s10, s11"), I(f"s_add_u32 {sWb[1]}, s10, {128*896}"),
          I(f"s_mul_i32 {sAO}, {sRT}, {5*NK*1024}"), I(f"s_lshl_b32 s10, {sWV}, 10"), I(f"s_add_u32 {sAO}, {sAO}, s10"),
          I(f"s_lshl_b32 s11, {sPAR}, 12"), I(f"s_add_u32 {sAb[0]}, {sAO}, s11"), I(f"s_sub_u32 s10, {sAO}, s11"), I(f"s_add_u32 {sAb[1]}, s10, 4096"),
          I(f"s_mul_i32 {sCW}, {sR0}, {256*896}"), I(f"s_lshl_b32 {sCA}, {sR0}, 13"),
          I(f"s_lshl_b32 s10, {sRB}, 3"), I(f"s_add_u32 s10, s10, {sWV}"), I(f"s_lshl_b32 s11, {sODD}, 2"),
          I(f"s_add_u32 {sCE}, s10, s11"), I(f"s_lshl_b32 {sCE}, {sCE}, 7"), I(f"s_add_u32 {sCE}, {sCE}, {FLAG_OFF}"),
          I(f"s_xor_b32 {sCL}, {sCE}, 512"), I(f"s_add_u32 {sCL}, {sCL}, {FL_LATE}"),
          I(f"s_lshl_b32 s10, {sRT}, 2"), I(f"s_add_u32 s10, s10, {sWV}"), I("s_lshl_b32 s10, s10, 7"), I(f"s_add_u32 {sN2}, s10, {FLAG_OFF}")]
    sFE = sN2
    U1 = Stream(blockify(L)); L = L0

    def readsW(u):
        return [I(f"ds_read_b64_tr_b16 {aq(wfr(2*u+e, ct)+2*h, 2)}, v{vWr[ct]} offset:{FW_RING + (u%FW_R)*16384 + e*4096 + h*1024}", f"r{u}")
                for e in range(2) for ct in range(2) for h in range(2)]
    def xb1(u, e, T): return XB + (4 + (u % 2) * 4 + e * 2 + T) * 4
    def readsX(u):
        s, e1 = divmod(u, 2)
        return [I(f"ds_read_b128 {vq(xb1(u, e, T))}, v{vXr[2*e1+e]} offset:{(s%3)*FX_SLOT + T*4096}", f"r{u}") for e in range(2) for T in range(2)]
    def mm1(u):
        return [mfma32(vq(acc(T, ct), 16), aq(wfr(2*u+e, ct)), vq(xb1(u, e, T)), u == 0 and e == 0)
                for e in range(2) for T in range(2) for ct in range(2)]
    SC = Sched(L, units=6, ds=2, scal=3)
    dm = Stream(every=1)
    for u in range(14):
        if u == 0: L += ST((4,))
        L += [Wait(vm=[f"W{u}", f"X{u//2}"], lgkm="all")] + (ST((4,)) if u < 3 else []) + [I("s_barrier")]
        L += ST((0, 1) if u in (0, 7) else (1,))
        if u == 0:
            L += readsX(0) + readsW(0) + dmaW(3) + direct(dmaX(2))
            continue
        if u + 3 < 14: dm.add(dmaW(u + 3))
        if u % 2 == 0 and u // 2 + 2 < 7: dm.add(dmaX(u // 2 + 2))
        if u == 11: dm.add(dmaX2(0) + dmaX2(1) + [I(f"buffer_load_dword v{vRdy}, off, {srd(SRD_D)}, 0 sc1", "rdy")])
        rd = Stream(readsX(u) + readsW(u))
        SC.run(mm1(u - 1), [dm, rd, U1], flush=[rd] + ([dm] if u < 11 or u == 13 else []) + ([U1] if u == 10 else []))
    NF2 = 84
    def rd2(n):
        T, k = divmod(n, 28); s, j = divmod(k, 4)
        return I(f"ds_read_b128 {vq(XB + (n % 12)*4)}, v{vXr[j]} offset:{(T % 2)*28672 + s*4096}", f"q{n//4}")
    ORD = [14, 15, 16, 17] + list(range(14))
    def slot2(q): return ORD.index(q) % SL2
    def w2(q, t): return ("a", (q * 4 + t) * 4) if q < 16 else ("v", W2V + ((q - 16) * 4 + t) * 4)
    def dmaW2(q):
        r = [I(f"s_add_u32 m0, {sM02}, {slot2(q) * 4096}")]
        if q == 14: r += [I(f"s_mul_i32 {sSOFF}, {sWV}, {4*28*896}")]
        elif q > 14: r += [I(f"s_add_u32 {sSOFF}, {sSOFF}, {28*896}")]
        else:
            if q: r += [I(f"s_add_u32 {sCW}, {sCW}, {256*896}"), Block([I(f"s_cmp_eq_u32 {sCW}, {7*256*896}"), I(f"s_cselect_b32 {sCW}, 0, {sCW}")])]
            r += [I(f"s_add_u32 {sSOFF}, {sCW}, {sWb[q >= 7]}")]
        for i in range(4):
            r.append(I(f"buffer_load_dwordx4 v{v2d[i]}, {srd(SRD_W2 if q < 14 else SRD_WO)}, {sSOFF} offen offset:{1024*i} lds", f"V{q}"))
        return r
    def rdW2(q):
        r = []
        for t in range(4):
            k, n = w2(q, t)
            for h in range(2):
                r.append(I(f"ds_read_b64_tr_b16 {k}[{n+2*h}:{n+2*h+1}], v{v2r[t]} offset:{slot2(q)*4096 + h*(2048 if q >= 14 else 1024)}", f"w{q}"))
        return r
    L += [Wait(vm="X2_0", lgkm="all"), I("s_barrier")] + ST()
    L += [I(f"v_add_u32 v{vXr[j]}, {FX2 - FX_RING}, v{vXr[j]}") for j in range(4)]
    rd = Stream([rd2(n) for n in range(8)])
    SC.run(mm1(13), [rd], flush=[rd])
    SC.ds = 2
    def epi(T):
        r = []
        for ct in range(2):
            a0 = acc(T, ct)
            for pr in range(4):
                ga = a0 + 2*pr; gb = ga + 1; ua = ga + 8; ub = ua + 1
                ta, tb = vT[2*(pr&1)], vT[2*(pr&1)+1]
                r += [I(f"v_mul_f32 v{ta}, {sNL2E}, v{ga}"), I(f"v_mul_f32 v{tb}, {sNL2E}, v{gb}"),
                      I(f"v_exp_f32 v{ta}, v{ta}"), I(f"v_exp_f32 v{tb}, v{tb}"),
                      I(f"v_mul_f32 v{ga}, v{ga}, v{ua}"), I(f"v_mul_f32 v{gb}, v{gb}, v{ub}"),
                      I(f"v_add_f32 v{ta}, 1.0, v{ta}"), I(f"v_add_f32 v{tb}, 1.0, v{tb}"),
                      I(f"v_rcp_f32 v{ta}, v{ta}"), I(f"v_rcp_f32 v{tb}, v{tb}"),
                      I(f"v_mul_f32 v{ga}, v{ga}, v{ta}"), I(f"v_mul_f32 v{gb}, v{gb}, v{tb}"),
                      I(f"v_cvt_pk_bf16_f32 v{a0 + pr}, v{ga}, v{gb}")]
            r += [I(f"buffer_store_dwordx4 {vq(a0)}, v{vAst}, {srd(SRD_A)}, {sAST} offen offset:{512*ct} sc1", f"st{T}_{ct}")]
        if T < 4: r += [I(f"s_add_u32 {sAST}, {sAST}, {sT2}")]
        return r
    for_t = {}
    bk = Stream(ooo=10)
    def add_epi(T):
        e = epi(T)
        for x in e: for_t[id(x)] = T
        bk.add(e)
    bk.add([I("s_nop 7")])
    for T in range(2): add_epi(T)
    side = Stream(every=CFG["EV2"])
    for q in (14, 15, 16, 17, 0, 1): side.add(dmaW2(q))
    late_side = []
    for k, q in enumerate((14, 15, 16, 17)):
        late_side += [Wait(vm=f"V{q}")] + rdW2(q)
        if k: late_side += [Wait(lgkm=f"w{q-1}")] + dmaW2(1 + k)
    late_side += [Wait(lgkm="w17")] + dmaW2(5)
    late_side += [I(f"v_add_u32 v{v2r[t]}, v{vHi}, v{v2r[t]}") for t in range(4)]
    state = {"pub": None}
    def seen(x):
        if x.tag == "st2_1": state["pub"] = SC.g + CFG["PUBD"]
    for b in range(21):
        if b == 5: L += [Wait(vm="X2_1"), I("s_barrier")]
        if b == 7:
            print("side at refill:", len(side))
            SC.flush(side); L += [I("s_barrier")]; side.add(dmaX2(2) + late_side); side.every = 1
        if b == 12: L += [Wait(vm="X2_2"), I("s_barrier")]
        L += [Wait(lgkm=f"q{b}")]
        reads = Stream([rd2(n) for n in range(4 * (b + 2), min(4 * (b + 3), NF2))], rate=0.5)
        reads.credit = 1.0
        for n in range(4 * b, 4 * b + 4):
            T2, k = divmod(n, 28); T = 2 + T2
            if k in (0, 14): L += ST((3,))
            if k == 0 and T == 4: print("side at last tile:", len(side))
            if k == 0 and T >= NSL:
                while any(for_t.get(id(x)) == T - NSL for x in bk.q): L.append(bk.q.pop(0))
            for ct in range(2):
                L.append(mfma32(vq(acc(T, ct), 16), aq(wfr(k, ct)), vq(XB + (n % 12) * 4), k == 0))
                SC.gap([reads, side, bk], seen)
                if state["pub"] == SC.g:
                    L += publish("h", vRdy, vOne, sCE, "st2_1") + ST(); state["pub"] = "done"
            if T == 4 and k == 1:
                side.every = 2; SC.ds = 2
                side.add([Wait(vm="V0")] + rdW2(0))
                for q in range(1, 6):
                    side.add([Wait(vm=f"V{q}")] + rdW2(q) + [Wait(lgkm=f"w{q-1}")] + dmaW2(q + 5))
                side.add([Wait(lgkm="w5")] + dmaW2(11))
            if k == 27:
                if len(bk) < 12: bk.add([I("s_nop 7"), I("s_nop 3")])
                add_epi(T)
        SC.flush(reads)
    print("side left:", len(side), "backlog after pass 2:", len(bk), "pub", state["pub"], SC.g)
    assert state["pub"] == "done"
    L += ST((0, 3))
    vF = 6
    L += [I(f"buffer_load_dword v{vF}, off, {srd(SRD_M)}, {sFE} sc1", "ef")]
    bq = fix_trans(pkify(bk.q))
    sq = direct(side.q); side.q = []
    ratio = len(sq) / max(1, len(bq) - 10)
    ac = 0.0
    for k, x in enumerate(bq):
        L.append(x)
        ac += ratio
        while ac >= 1.0 and sq:
            y = sq.pop(0); L.append(y); ac -= 1.0
            if y.kind == "salu" and y.op.startswith("s_cmp"): L.append(sq.pop(0))
    L += sq
    L += ST((0, 3))
    SC = Sched(L)
    vAl, vRw, vRr, vOut, vOf, vOu2 = 15, [1, 2, 3], 4, 5, 14, 7
    vS = [8, 9, 10, 11, 12]
    AC2 = 16
    ABUF = [216, 236, 96, 116, 136, 156]
    PF = CFG['PF']
    def ab(q, T): return ABUF[q % 6] + T * 4
    def ldA(q):
        if q < 14:
            r = []
            if q: r += [I(f"s_add_u32 {sCA}, {sCA}, 8192"), Block([I(f"s_cmp_eq_u32 {sCA}, {7*8192}"), I(f"s_cselect_b32 {sCA}, 0, {sCA}")])]
            r += [I(f"s_add_u32 {sT0}, {sCA}, {sAb[q >= 7]}")]
        elif q == 14:
            r = [I(f"s_mul_i32 {sCA}, {sWV}, 3072"), I(f"s_add_u32 {sCA}, {sCA}, {sAO}"), I(f"s_add_u32 {sCA}, {sCA}, {56*1024}"),
                 I(f"s_mov_b32 {sT0}, {sCA}")]
        else: r = [I(f"s_add_u32 {sT0}, {sCA}, {(q-14)*1024}")]
        for T in range(5):
            r.append(I(f"buffer_load_dwordx4 {vq(ab(q, T))}, v{vAl}, {srd(SRD_A)}, {sT0} offen sc1", f"A{q}"))
            if T < 4: r.append(I(f"s_add_u32 {sT0}, {sT0}, {NK*1024}"))
        return r
    def mm2(q):
        return [mfma(vq(AC2 + (T*4+t)*4), rq(w2(q, t)), vq(ab(q, T)), q == 0) for T in range(5) for t in range(4)]
    def check(tag, need, name):
        return [Wait(vm=tag), I(f"v_cmp_gt_u32 vcc, {need}, v{vF}")] + spin_init() + [I(f"s_cbranch_vccnz L_poll_{name}"), I(f"L_got_{name}:")]
    def poll(name, need, ld):
        return [I(f"L_poll_{name}:")] + spin_step() + [ld, I("s_waitcnt vmcnt(0)"), I(f"v_cmp_gt_u32 vcc, {need}, v{vF}"), I("s_nop 0"),
                I(f"s_cbranch_vccnz L_poll_{name}"), I(f"s_branch L_got_{name}")]
    L += check("ef", 7, "e") + ST((0, 2))
    L += direct(ldA(0) + ldA(1))
    L += [Wait(vm="st4_1"), I("s_mov_b64 exec, 1"), I(f"buffer_atomic_add v{vOne}, off, {srd(SRD_M)}, {sCL} sc1", "pub"), I("s_mov_b64 exec, -1")] + ST()
    L += [I(f"s_add_u32 {sFE}, {sFE}, {FL_LATE}")]
    for q in range(2, PF): L += direct(ldA(q))
    L += direct([Wait(vm="V7")] + rdW2(6) + rdW2(7))
    setup = [I(f"s_mul_i32 s10, {sRT}, 80"), I("s_add_u32 s11, s10, 79"), I("s_lshr_b32 s10, s10, 7"), I("s_lshr_b32 s11, s11, 7"),
             I("s_min_u32 s11, s11, 15"), I("s_lshl_b32 s10, s10, 9"), I("s_lshl_b32 s11, s11, 9"),
             I(f"v_mov_b32 v{vOf}, s11"), I(f"v_writelane_b32 v{vOf}, s10, 0"),
             I(f"s_lshl_b32 s27, {sWV}, 7"), I(f"s_add_u32 s27, s27, {FLAG_OFF + FL_O}"),
             I(f"s_mul_i32 s10, {sWV}, 15360"), I(f"s_add_u32 s10, s10, {RED}"), I(f"v_add_u32 v{vRr}, s10, v{vAl}")]
    for t in range(1, 4):
        setup += [I(f"s_xor_b32 s10, {sWV}, {t}"), I("s_mul_i32 s10, s10, 15360"), I(f"s_add_u32 s10, s10, {RED + (t-1)*5120}"),
                  I(f"v_add_u32 v{vRw[t-1]}, s10, v{vAl}")]
    setup += [I(f"s_mul_i32 s10, {sRT}, {80*896}"), I(f"s_lshl_b32 s11, {sNT}, 7"), I("s_add_u32 s10, s10, s11"),
              I(f"s_lshl_b32 s11, {sWV}, 5"), I("s_add_u32 s10, s10, s11"),
              I("v_and_b32 v13, 15, v0"), I("s_movk_i32 s11, 896"), I(f"v_mul_u32_u24 v{vOut}, s11, v13"), I(f"v_lshrrev_b32 v{vS[0]}, 4, v0"),
              I(f"v_lshl_add_u32 v{vOut}, v{vS[0]}, 3, v{vOut}"), I(f"v_add_u32 v{vOut}, s10, v{vOut}"),
              I("v_lshlrev_b32 v13, 2, v13"),
              I(f"v_and_b32 v{vS[0]}, 1, v{vS[0]}"), I(f"s_movk_i32 s11, {16*896-8}"), I(f"v_mad_u32_u24 v{vOu2}, v{vS[0]}, s11, v{vOut}"),
              I(f"s_lshl_b32 s26, {sWV}, 13"), I(f"s_mul_i32 s11, {sRT}, 320"), I("s_add_u32 s26, s26, s11")]
    ld_late = I(f"buffer_load_dword v{vF}, off, {srd(SRD_M)}, {sFE} sc1", "lf")
    ld_o = I(f"buffer_load_dword v{vF}, v{vOf}, {srd(SRD_M)}, s27 offen sc1", "of")
    for q in range(16):
        G, R, U = Stream(every=3), Stream(), Stream()
        if q == 7 - PF: L += check("lf", 7, "l") + ST()
        if q == 14 - PF: L += check("of", 4, "o") + ST()
        if q == 5 - PF: G.add([ld_late])
        if q == 12 - PF: G.add([ld_o])
        if CFG["OFAST"] and q + PF >= 14:
            if q + PF == 14: G.add(ldA(14) + ldA(15) + ldA(16)); G.every = 1
            if q + PF == 15: G.add(ldA(17)); G.every = 1
        elif q + PF < 18: G.add(ldA(q + PF))
        if q < 2: G.add([Wait(lgkm=f"w{6 + q}")] + dmaW2(12 + q)); G.every = 2
        if 2 <= q < 8: R.add([Wait(vm=f"V{q + 6}")] + rdW2(q + 6))
        if q == 5: U.add(setup[:20])
        if q == 6: U.add(setup[20:36])
        if q == 7: U.add(setup[36:])
        if q + PF == (16 if CFG["OFAST"] else 17):
            G.every = 2
            G.add([I(f"buffer_load_dword v{vS[T]}, v13, {srd(SRD_M)}, s26 offen offset:{64*T} sc1", "S") for T in range(5)])
        if q == 14: L += [I("s_barrier")]
        L += [Wait(vm=f"A{q}", lgkm=f"w{q}")]
        if q < 13: L += ST((2,))
        SC.run(mm2(q), [G, R, U], flush=[G, R, U])
    L += ST()
    a16, a17 = mm2(16), mm2(17)
    order = [(T, t) for t in (1, 2, 3, 0) for T in range(5)]
    main = []
    for (T, t) in order: main += [a16[T*4+t], a17[T*4+t]]
    L += [Wait(vm="A17")]
    pend = []
    for k, m in enumerate(main):
        L.append(m)
        if k % 2 == 1 and order[k // 2][1] != 0:
            T, t = order[k // 2]
            pend.append((k + 9, I(f"ds_write_b128 v{vRw[t-1]}, {vq(AC2 + (T*4+t)*4)} offset:{T*1024}", "rw")))
        while pend and pend[0][0] <= k:
            L.append(pend.pop(0)[1])
    L += [x for _, x in pend]
    L += [Wait(lgkm="all"), I("s_barrier")] + ST()
    RB = 96
    for T in range(5):
        for sl in range(3):
            L.append(I(f"ds_read_b128 {vq(RB + (sl*5+T)*4)}, v{vRr} offset:{sl*5120 + T*1024}", f"rr{T}"))
    L += [Wait(vm="S")]
    osc = " sc1" if CFG["OSC"] else ""
    for T in range(5):
        a = AC2 + T*16
        d = AC2 + (T & ~1)*16 + 4 + 2*(T & 1)
        F = []
        for r in range(4): F.append(I(f"v_add_f32 v{RB + (5+T)*4 + r}, v{RB + (5+T)*4 + r}, v{RB + (10+T)*4 + r}"))
        for r in range(4): F.append(I(f"v_add_f32 v{a+r}, v{a+r}, v{RB + T*4 + r}"))
        for r in range(4): F.append(I(f"v_add_f32 v{a+r}, v{a+r}, v{RB + (5+T)*4 + r}"))
        for r in range(4): F.append(I(f"v_mul_f32 v{a+r}, v{a+r}, v{vS[T]}"))
        L += [Wait(lgkm=f"rr{T}")] + pkify(F)
        L += [I(f"v_cvt_pk_bf16_f32 v{d}, v{a}, v{a+1}"), I(f"v_cvt_pk_bf16_f32 v{d+1}, v{a+2}, v{a+3}")]
        if T & 1:
            q4 = d - 2
            L += [I(f"s_mov_b32 s10, {(T-1)*16*896}"), I("s_nop 0"),
                  I(f"v_permlane16_swap_b32 v{q4}, v{q4+2}"), I(f"v_permlane16_swap_b32 v{q4+1}, v{q4+3}"),
                  I(f"buffer_store_dwordx4 {vq(q4)}, v{vOu2}, {srd(SRD_O)}, s10 offen" + osc, "out")]
        elif T == 4:
            L += [I(f"s_mov_b32 s10, {T*16*896}"), I(f"buffer_store_dwordx2 v[{d}:{d+1}], v{vOut}, {srd(SRD_O)}, s10 offen" + osc, "out")]
    L += ST.dump(65536, 16)
    if CFG["PAD"]:
        L += [I("L_pad:"), I("s_memrealtime s[82:83]"), I("s_waitcnt lgkmcnt(0)"), I("s_sub_u32 s82, s82, s80"),
              I(f"s_cmp_lt_u32 s82, {CFG['PAD']}"), I("s_cbranch_scc1 L_pad")]
    extra = xf_extra + slow("h", vRdy) + poll("e", 7, I(f"buffer_load_dword v{vF}, off, {srd(SRD_M)}, {sFE} sc1")) + \
            poll("l", 7, I(ld_late.text)) + poll("o", 4, I(ld_o.text))
    return L, extra

QW_RING, QW_SLOT = 0, 24576
QX_RING, QX_SLOT = 98304, 20480
QG = QX_RING + 3 * QX_SLOT
assert QG + 4096 <= 163840

def qkv():
    ST = Stamps([40, 41, 42, 43, 44, 45, 46, 47, 48, 49, 50, 51], 1)
    vWd = [1, 2]; vXd = [3, 4]; vWr = [[5, 6], [7, 8]]; vXr = [9, 10]
    vQ1b, vQA, vQB_, vQH, vQ1 = 11, 12, 13, 14, [15, 16]
    vRdy = 47
    K0 = 48; K1 = K0 + 36; V0 = K1 + 36; V1 = V0 + 36; Q0 = V1 + 36; Q1 = Q0 + 32
    assert Q1 + 32 == 256
    WF = 0; XF = 48
    def wf(u, sec, t): return WF + (u % 2) * 24 + (sec * 2 + t) * 4
    def xf(u, T): return XF + (u % 2) * 36 + T * 4
    r4, p16, r8, p8 = 17, 18, 19, 20
    L = [I("L_qkv:")] + ST(True) + [I("s_lshl_b32 s10, s10, 1"), I(f"s_lshr_b32 {sJ}, {CFG['JMAP']}, s10"), I(f"s_and_b32 {sJ}, {sJ}, 3"),
         I(f"s_lshl_b32 {sQB}, s27, 3"), I(f"s_add_u32 {sQB}, {sQB}, s11")]
    L += rot_small(sQB, None)
    L += [I(f"v_lshrrev_b32 v{r4}, 4, v0"), I(f"v_and_b32 v{p16}, 15, v0"),
          I(f"v_lshrrev_b32 v{r8}, 3, v0"), I(f"v_and_b32 v{p8}, 7, v0"),
          I(f"s_mul_i32 s11, {sJ}, 224"), I(f"s_cmp_eq_u32 {sJ}, 3"), I("s_cselect_b32 s11, 640, s11"),
          I(f"s_mul_i32 s26, {sWV}, {8*2688}"), I("s_add_u32 s11, s11, s26"),
          I("s_movk_i32 s27, 2688"), I(f"v_mul_u32_u24 v21, s27, v{r4}"), I("v_add_u32 v21, s11, v21"),
          I(f"s_and_b32 s26, {sWV}, 1"), I("s_lshl_b32 s26, s26, 3"),
          I(f"v_lshlrev_b32 v22, 1, v{r4}"), I(f"v_sub_u32 v22, v{p16}, v22"), I("v_xor_b32 v22, s26, v22"),
          I("v_and_b32 v22, 15, v22"),
          I(f"v_lshl_add_u32 v{vWd[0]}, v22, 4, v21"),
          I(f"v_add_u32 v{vWd[1]}, {4*2688-1024}, v{vWd[0]}"),
          I(f"s_lshl_b32 {sM0W}, {sWV}, 11"),
          I("s_movk_i32 s27, 896"), I(f"v_mul_u32_u24 v21, s27, v{r8}"),
          I(f"v_xor_b32 v22, v{r4}, v{p8}"), I("v_lshl_add_u32 v21, v22, 4, v21"),
          I("s_lshl_b32 s26, s26, 3"),
          I(f"v_xor_b32 v{vXd[0]}, s26, v21"), I(f"v_xor_b32 v{vXd[1]}, 64, v{vXd[0]}"),
          I(f"s_mul_i32 {sM0X}, {sWV}, 5120"), I(f"s_add_u32 {sM0X}, {sM0X}, {QX_RING}"),
          I(f"s_lshl_b32 s26, {sQB}, 7"), I(f"s_mul_i32 s27, {sWV}, 40"), I("s_add_u32 s26, s26, s27"),
          I("s_sub_u32 s26, s26, 16")]
    def xrow(i):
        r = [I(f"s_add_u32 s27, s26, {8*i}"), I(f"s_mul_i32 {sXROW[i]}, s27, 896")]
        if i < 2: r += [I("s_cmp_lt_i32 s27, 0"), I(f"s_cselect_b32 {sXROW[i]}, {OOB}, {sXROW[i]}")]
        if i >= 3: r += [I(f"s_cmp_eq_u32 {sWV}, 3"), I(f"s_cselect_b32 {sXROW[i]}, {OOB}, {sXROW[i]}")]
        return r
    def dmaW(u):
        s, e = divmod(u, 2)
        r = []
        for sec in range(3):
            r += [I(f"s_add_u32 m0, {sM0W}, {QW_RING + (u % 4) * QW_SLOT + sec * 8192}")]
            if sec == 0:
                r += [I(f"s_mul_i32 {sSOFF}, {sK[s]}, 1344")]
                if e: r += [I(f"s_add_u32 {sSOFF}, {sSOFF}, 86016")]
            else:
                r += [I(f"s_add_u32 {sSOFF}, {sSOFF}, 896")]
            for i in range(2):
                r.append(I(f"buffer_load_dwordx4 v{vWd[i]}, {srd(SRD_W)}, {sSOFF} offen offset:{1024*i} lds", f"W{u}"))
        return r
    def dmaX(s):
        r = []
        for i in range(5):
            r += [I(f"s_add_u32 m0, {sM0X}, {(s % 3) * QX_SLOT + i * 1024}"), I(f"s_add_u32 {sT0}, {sXROW[i]}, {sK[s]}"),
                  I(f"buffer_load_dwordx4 v{vXd[i % 2]}, {srd(SRD_X)}, {sT0} offen lds", f"X{s}")]
        return r
    for i in range(5): L += xrow(i)
    L += [I(f"s_lshl_b32 s26, {sWV}, 7"), I("v_lshl_add_u32 v23, v0, 1, s26")]
    L += [Wait(lgkm="all")]
    L += mksrd(SRD_W, 6, WQKV_BYTES) + dmaW(0)
    L += mksrd(SRD_X, 4, X_BYTES) + dmaX(0) + mksrd(SRD_M, 18, 896)
    L += [I(f"buffer_load_ushort v24, v23, {srd(SRD_M)}, 0 offen", "gw"),
          I(f"buffer_load_ushort v25, v23, {srd(SRD_M)}, 0 offen offset:512", "gw")]
    L += [I("v_bfe_u32 v21, v0, 2, 2"), I(f"v_lshl_add_u32 v22, v{r4}, 3, v21"),
          I(f"v_and_b32 v26, 1, v{r4}"), I("v_lshl_add_u32 v21, v26, 2, v21"),
          I("v_and_b32 v26, 3, v0"), I("v_lshlrev_b32 v27, 3, v26"), I("v_lshl_add_u32 v21, v21, 5, v27"),
          I(f"s_mul_i32 s26, {sWV}, 56"), I(f"s_cmp_eq_u32 {sJ}, 3"), I("s_cselect_b32 s27, 32, 0"),
          I("s_add_u32 s26, s26, s27"), I("v_add_u32 v21, s26, v21"),
          I("v_and_b32 v27, 0xff, v21"), I(f"v_lshl_add_u32 v{vWr[0][0]}, v22, 8, v27"),
          I("v_add_u32 v21, 32, v21"), I("v_and_b32 v27, 0xff, v21"), I(f"v_lshl_add_u32 v{vWr[0][1]}, v22, 8, v27"),
          I(f"v_add_u32 v{vWr[1][0]}, {2*QW_SLOT}, v{vWr[0][0]}"), I(f"v_add_u32 v{vWr[1][1]}, {2*QW_SLOT}, v{vWr[0][1]}"),
          I("v_cmp_eq_u32 vcc, 3, v26"),
          I(f"v_lshlrev_b32 v27, 3, v22"), I(f"v_add_u32 v27, {QG}, v27"),
          I(f"v_cndmask_b32 v{vQ1b}, v{vWr[0][1]}, v27, vcc"),
          I(f"v_mov_b32 v27, 1"), I(f"v_cndmask_b32 v{vQA}, v27, 0, vcc"),
          I(f"v_cndmask_b32 v{vQB_}, 0, v27, vcc"),
          I(f"v_mov_b32 v27, 0x400"), I(f"v_cndmask_b32 v{vQH}, v27, 32, vcc"),
          I(f"v_lshrrev_b32 v21, 1, v{p16}"), I(f"v_xor_b32 v21, v21, v{r4}"), I("v_lshlrev_b32 v21, 4, v21"),
          I(f"v_lshl_add_u32 v21, v{p16}, 7, v21"),
          I(f"v_add_u32 v{vXr[0]}, {QX_RING}, v21"), I(f"v_xor_b32 v{vXr[1]}, 64, v{vXr[0]}")]
    for s in range(1, 7): L += sk_next(s)
    L += dmaW(1)
    L += srd_a() + mksrd(SRD_D, 22, 256)
    L += [I("v_lshlrev_b32 v23, 2, v23"), I(f"v_add_u32 v23, {QG}, v23"),
          Wait(vm="gw"),
          I("ds_write_b16 v23, v24"), I("ds_write_b16 v23, v25 offset:2048")]
    def reads(u):
        s, e = divmod(u, 2)
        sl = u % 4
        a = [I(f"s_lshl_b32 {sT1}, {sK[s]}, 2")]
        if e: a += [I(f"s_add_u32 {sT1}, {sT1}, 256")]
        G = [a, [I(f"s_mov_b32 {sT2}, {sl * QW_SLOT}"), I(f"v_mad_u32_u24 v{vQ1[0]}, v{vQB_}, {sT1}, v{vQ1b}")],
             [I(f"v_mad_u32_u24 v{vQ1[0]}, v{vQA}, {sT2}, v{vQ1[0]}"), I(f"v_add_u32 v{vQ1[1]}, v{vQH}, v{vQ1[0]}")]]
        for T in range(9):
            G.append([I(f"ds_read_b128 {aq(xf(u, T))}, v{vXr[e]} offset:{(s % 3) * QX_SLOT + T * 2048}", f"r{u}")])
        for sec in (1, 2, 0):
            for t in range(2):
                for h in range(2):
                    if sec == 0 and t == 1:
                        G.append([I(f"ds_read_b64_tr_b16 {aq(wf(u,sec,t)+2*h, 2)}, v{vQ1[h]}", f"r{u}")])
                    else:
                        G.append([I(f"ds_read_b64_tr_b16 {aq(wf(u,sec,t)+2*h, 2)}, v{vWr[sl//2][t]} offset:{(sl%2)*QW_SLOT + sec*8192 + h*1024}", f"r{u}")])
        return G
    def mm(u):
        r = []
        for T in range(9):
            r += [mfma(vq(K0 + 4*T), aq(wf(u,1,0)), aq(xf(u,T)), u == 0), mfma(vq(K1 + 4*T), aq(wf(u,1,1)), aq(xf(u,T)), u == 0)]
        for T in range(9):
            r += [mfma(vq(V0 + 4*T), aq(xf(u,T)), aq(wf(u,2,0)), u == 0), mfma(vq(V1 + 4*T), aq(xf(u,T)), aq(wf(u,2,1)), u == 0)]
        for T in range(1, 9):
            r += [mfma(vq(Q0 + 4*(T-1)), aq(wf(u,0,0)), aq(xf(u,T)), u == 0), mfma(vq(Q1 + 4*(T-1)), aq(wf(u,0,1)), aq(xf(u,T)), u == 0)]
        return r
    i16, g4 = 18, 17
    sel = [21, 22, 23, 24]; vMq = 25; vSt = 26
    C = [I(f"v_and_b32 v38, 1, v{i16}"), I(f"v_cmp_eq_u32 {mODD}, 1, v38"),
         I(f"v_lshl_add_u32 v38, v{g4}, 2, v38"),
         I(f"v_cmp_le_u32 {mC0}, v38, v{i16}"), I("v_add_u32 v38, 2, v38"), I(f"v_cmp_le_u32 {mC1}, v38, v{i16}"),
         I(f"v_cmp_eq_u32 {mG3}, 3, v{g4}"),
         I("v_mov_b32 v39, 0x0c0c0100"), I("v_mov_b32 v40, 0x01000c0c"),
         I(f"v_cndmask_b32 v39, v39, v40, {mODD}"),
         I("v_mov_b32 v41, 0x0c0c0302"), I("v_mov_b32 v40, 0x03020c0c"),
         I(f"v_cndmask_b32 v41, v41, v40, {mODD}"),
         I("v_mov_b32 v40, 0x0c0c0c0c"),
         I(f"v_cndmask_b32 v{sel[0]}, v39, v40, {mC0}"), I(f"v_cndmask_b32 v{sel[1]}, v41, v40, {mC1}"),
         I(f"v_cndmask_b32 v{sel[2]}, v40, v39, {mC0}"), I(f"v_cndmask_b32 v{sel[3]}, v40, v41, {mC1}"),
         I(f"v_cndmask_b32 v{vMq}, -1, 0, {mG3}"),
         I(f"v_lshlrev_b32 v{vSt}, 4, v0"), I("v_lshlrev_b32 v44, 2, v0"),
         Block([I(f"s_cmp_eq_u32 {sQB}, 0"), I(f"s_cselect_b64 {mC0F}, {mC0}, -1"), I(f"s_cselect_b64 {mC1F}, {mC1}, -1")]),
         I(f"s_mov_b32 {sSCL}, {hex(f2u(28 ** -0.5 * math.log2(math.e)))}"),
         I(f"s_mov_b32 {sNL2E}, {hex(f2u(-math.log2(math.e)))}"),
         I(f"s_mul_i32 s26, {sQB}, {8*NK}"), I(f"s_lshl_b32 s27, {sJ}, 2"), I("s_add_u32 s26, s26, s27"),
         I(f"s_add_u32 s26, s26, {sWV}"), I("s_add_u32 s26, s26, 56"), I(f"s_lshl_b32 {sAST}, s26, 10"),
         I(f"s_lshl_b32 s26, {sJ}, 13"), I(f"s_lshl_b32 s27, {sQB}, 9"), I("s_add_u32 s26, s26, s27"),
         Block([I(f"s_cmp_eq_u32 {sWV}, 0"), I(f"s_cselect_b32 s26, s26, {OOB}")])]
    C += mksrd(SRD_M, 24, MISC_BYTES)
    SC = Sched(L)
    for u in range(14):
        L += [Wait(vm=[f"W{u}", f"X{u//2}"], lgkm="all"), I("s_barrier")]
        if u in (0, 2, 7): L += ST((0, 1, 2))
        elif u in (1, 3, 4, 5, 9, 11, 13): L += ST((1,))
        LA = CFG["LAQ"]
        if u == 0:
            L += [x for g in reads(0) for x in g] + (dmaW(2) + dmaX(1) if LA == 3 else dmaX(1) + dmaW(2))
            continue
        G = Stream(every=CFG["EVQ"] if u > 1 or LA == 2 else 3)
        if LA == 3:
            if u == 1: G.add(dmaW(3) + dmaX(2))
            if u + 3 < 14: G.add(dmaW(u + 3))
            if u % 2 == 0 and u // 2 + 2 < 7: G.add(dmaX(u // 2 + 2))
        else:
            if u % 2 == 0 and u // 2 + 1 < 7: G.add(dmaX(u // 2 + 1))
            if u + 2 < 14: G.add(dmaW(u + 2))
            if u <= CFG["QD"]: G.last = SC.g + (52 - 4 * sum(x.kind == "vmem" for x in G.q) - 4)
        if u == 12: G.add([I(f"buffer_load_dword v{vRdy}, off, {srd(SRD_D)}, 0 sc1", "rdy")])
        R = Stream([x for g in reads(u) for x in g], rate=0.55)
        U = Stream(C if u == 13 else [])
        SC.run(mm(u - 1), [G, R, U], flush=[G, R, U])
    VB0, VB1 = K1, K1 + 18
    def pk4(d, a, b):
        return [I(f"v_cvt_pk_bf16_f32 v{d[0]}, v{a}, v{a+1}"), I(f"v_cvt_pk_bf16_f32 v{d[1]}, v{a+2}, v{a+3}"),
                I(f"v_cvt_pk_bf16_f32 v{d[2]}, v{b}, v{b+1}"), I(f"v_cvt_pk_bf16_f32 v{d[3]}, v{b+2}, v{b+3}")]
    packK, packV, packQ = [], [], []
    for T in range(9):
        a = K0 + 4*T; packK += pk4([a, a+1, a+2, a+3], a, K1 + 4*T)
        packV += pk4([VB0+2*T, VB0+2*T+1, VB1+2*T, VB1+2*T+1], V0 + 4*T, V1 + 4*T)
    for T in range(8):
        a = Q0 + 4*T
        packQ += pk4([a, a+1, a+2, a+3], a, Q1 + 4*T) + [I(f"v_and_b32 v{a+2}, v{vMq}, v{a+2}"), I(f"v_and_b32 v{a+3}, v{vMq}, v{a+3}")]
    L += [Wait(lgkm="all")] + ST()
    m13 = mm(13)
    m13 = m13[36:] + m13[:36]
    F = Stream(packQ + packK)
    SC.run(m13[:8], [])
    SC.run(m13[8:], [F], flush=[F])
    def sw(n, a, b): return I(f"v_permlane{n}_swap_b32 v{a}, v{b}")
    Z = [Q1 + 12, Q1 + 28]
    L += [sw(32, Q1, Q1 + 8), sw(32, Q1 + 4, Q1 + 12), sw(32, Q1 + 16, Q1 + 24), sw(32, Q1 + 20, Q1 + 28)] + packV[:2]
    L += [sw(16, Q1 + 8, Q1 + 12), sw(16, Q1 + 24, Q1 + 28)]
    G = []
    for z0, z, g, o in ((Z[0], 38, 40, 42), (Z[1], 39, 41, 43)):
        G.append([I(f"v_cvt_pk_bf16_f32 v{z}, v{z0}, v{z0}"), I(f"v_and_b32 v{z}, 0xffff0000, v{z}"),
                  I(f"v_mul_f32 v{z}, {sNL2E}, v{z}"), I(f"v_exp_f32 v{z}, v{z}"), I(f"v_add_f32 v{z}, 1.0, v{z}"),
                  I(f"v_rcp_f32 v{g}, v{z}"), I(f"v_cvt_pk_bf16_f32 v{g}, v{g}, v{g}"), I(f"v_and_b32 v{g}, 0xffff0000, v{g}"),
                  I(f"v_sub_f32 v{o}, 1.0, v{g}"), I(f"v_cvt_pk_bf16_f32 v{o}, v{o}, v{o}"), I(f"v_and_b32 v{o}, 0xffff0000, v{o}"),
                  I(f"v_max_f32 v{o}, {hex(f2u(1e-30))}, v{o}"), I(f"v_rcp_f32 v{z}, v{o}"), I(f"v_mul_f32 v{g}, v{g}, v{z}")])
    sig = [x for ab in zip(*G) for x in ab]
    sig += [I(f"buffer_store_dword v42, v44, {srd(SRD_M)}, s26 offen sc1", "st"),
            I(f"buffer_store_dword v43, v44, {srd(SRD_M)}, s26 offen offset:256 sc1", "st")]
    def smm(gr):
        r = []
        for k in range(4):
            T = 1 + 4*gr + k; b = Q1 + 8*k; q = Q0 + 4*(T-1)
            r += [mfma(vq(b), vq(K0 + 4*(T-1)), vq(q), True), mfma(vq(b + 4), vq(K0 + 4*T), vq(q), True)]
        return r
    def reduce4(op, m, mid):
        return [sw(32, m[0], m[2]), sw(32, m[1], m[3]), I(f"{op} v{m[0]}, v{m[0]}, v{m[2]}"), I(f"{op} v{m[1]}, v{m[1]}, v{m[3]}"), None,
                sw(16, m[0], m[1]), I(f"{op} v{m[0]}, v{m[0]}, v{m[1]}")] + mid + \
               [I(f"v_mov_b32 v{m[1]}, v{m[0]}"), None, sw(16, m[0], m[1]), I(f"v_mov_b32 v{m[2]}, v{m[0]}"), I(f"v_mov_b32 v{m[3]}, v{m[1]}"), None,
                sw(32, m[0], m[2]), sw(32, m[1], m[3])]
    def fillnone(seq, fill):
        o = []
        for x in seq:
            if x is None:
                o += [fill.pop(0), fill.pop(0)] if len(fill) >= 2 else [I("s_nop 1")]
            else: o.append(x)
        return o
    def outs(gr):
        r = []
        for k in range(4):
            T = 1 + 4*gr + k; O0, O1 = V0 + 4*T, V1 + 4*T; m = MS[gr] + 2*k
            r += [I(f"v_cndmask_b32 v{m+1}, v{m}, 0, {mG3}")]
            r += pkify([I(f"v_mul_f32 v{O0+j}, v{O0+j}, v{m}") for j in range(4)] + [I(f"v_mul_f32 v{O1+j}, v{O1+j}, v{m+1}") for j in range(4)])
            r += pk4([O0, O0+1, O0+2, O0+3], O0, O1)
            r += [I(f"buffer_store_dwordx4 {vq(O0)}, v{vSt}, {srd(SRD_A)}, {sAST} offen sc1", "st"), I(f"s_add_u32 {sAST}, {sAST}, {NK*1024}")]
        return r
    MS = [2, 30]
    def att(gr, fill):
        B = [Q1 + 8*k for k in range(4)]
        r = []
        for k in range(4):
            SP, SC_ = B[k], B[k] + 4
            r += [I(f"v_cndmask_b32 v{SP}, v{SP}, v{SP+1}, {mODD}"), I(f"v_cndmask_b32 v{SP+1}, v{SP+2}, v{SP+3}, {mODD}"),
                  I(f"v_cndmask_b32 v{SC_}, v{SC_}, v{SC_+1}, {mODD}"), I(f"v_cndmask_b32 v{SC_+1}, v{SC_+2}, v{SC_+3}, {mODD}"),
                  I(f"v_cndmask_b32 v{SP}, v{SP}, v{SC_}, {mC0}"), I(f"v_cndmask_b32 v{SP+1}, v{SP+1}, v{SC_+1}, {mC1}")]
            if gr == 0 and k == 0:
                r += [I(f"v_mov_b32 v{SP+3}, {hex(f2u(-1e30))}"),
                      I(f"v_cndmask_b32 v{SP}, v{SP+3}, v{SP}, {mC0F}"), I(f"v_cndmask_b32 v{SP+1}, v{SP+3}, v{SP+1}, {mC1F}")]
            r += [I(f"v_max_f32 v{SP+2}, v{SP}, v{SP+1}")]
        m = [b + 2 for b in B]
        r += fillnone([None] + reduce4("v_max_f32", m, [I(f"v_mul_f32 v{m[0]}, {sSCL}, v{m[0]}")]), fill)
        for b in B:
            r += [I(f"v_pk_fma_f32 v[{b}:{b+1}], v[{b}:{b+1}], s[92:93], v[{b+2}:{b+3}] op_sel_hi:[1,0,0] neg_lo:[0,0,1] neg_hi:[0,0,1]")]
        for b in B: r += [I(f"v_exp_f32 v{b}, v{b}"), I(f"v_exp_f32 v{b+1}, v{b+1}")]
        ms = [MS[gr] + 2*k for k in range(4)]
        for k, b in enumerate(B): r += [I(f"v_cvt_pk_bf16_f32 v{b+3}, v{b}, v{b+1}"), I(f"v_add_f32 v{ms[k]}, v{b}, v{b+1}")]
        for b in B: r += [I(f"v_perm_b32 v{b+4+j}, v{b+3}, v{b+3}, v{sel[j]}") for j in range(4)]
        red = reduce4("v_add_f32", ms, [I(f"v_rcp_f32 v{ms[0]}, v{ms[0]}"), I("s_nop 0"), I(f"v_mul_f32 v{ms[0]}, v{ms[0]}, v{40 + gr}")])
        pv = []
        for k, b in enumerate(B):
            T = 1 + 4*gr + k
            pv += [mfma(vq(V0 + 4*T), vq(VB0 + 2*(T-1)), vq(b + 4), True), mfma(vq(V1 + 4*T), vq(VB1 + 2*(T-1)), vq(b + 4), True)]
        return r, red, pv
    L += sig[:2]; sig = sig[2:]
    L += smm(0)
    L += packV[2:] + ST()
    r0, red0, pv0 = att(0, sig)
    L += r0 + sig
    f = list(pv0); L += fillnone(red0, f) + f
    L += smm(1)
    o0 = outs(0)
    L += o0[:12]; o0 = o0[12:]
    r1, red1, pv1 = att(1, o0)
    L += r1
    f = list(pv1); L += fillnone(red1, f) + f
    L += o0 + outs(1)
    L += ST()
    L += [I(f"s_lshl_b32 s26, {sQB}, 2"), I(f"s_add_u32 s26, s26, {sJ}"), I("s_lshl_b32 s26, s26, 7"), I(f"s_add_u32 s26, s26, {FLAG_OFF + FL_O}")]
    L += publish("o", vRdy, 1, "s26") + ST() + ST.dump(65536, 2)
    return L, slow("o", vRdy)

def isize(x):
    if x.kind in ("label", "directive"): return 0
    if x.kind in ("mfma", "ds", "vmem", "smem"): return 8
    t = x.text.split(";")[0]
    lit = False
    for tok in re.findall(r"(?<![\w\[:.])(-?0x[0-9a-f]+|-?\d+)(?![\w.\]:])", t.split(None, 1)[1] if " " in t.strip() else ""):
        v = int(tok, 0)
        if v > 64 or v < -16: lit = True
    op = x.op
    if op in ("s_movk_i32", "s_nop", "s_waitcnt", "s_barrier") or op.startswith(("s_cbranch", "s_branch")): return 4
    if op.startswith("s_"): return 8 if lit else 4
    if op.startswith(("v_cvt_pk", "v_pk_", "v_perm_b32", "v_mad", "v_lshl_add", "v_bfe", "v_writelane", "v_fma")): return 8
    if op.startswith("v_cndmask") and "vcc" not in t: return 8
    if op.startswith("v_cmp") and "vcc" not in t: return 8
    return 8 if lit else 4

def add_pads(regions):
    spots = []
    for seq, start in regions:
        since = 10 ** 9
        for i in range(start, len(seq) - 1):
            x, y = seq[i], seq[i + 1]
            since += isize(x)
            free = x.kind == "mfma" and not is_scalar(y)
            any_ok = y.kind in ("valu", "trans", "ds", "vmem", "mfma") and x.kind != "label"
            if (since >= CFG["IST"] - 40 and free) or (since >= CFG["IST"] and any_ok):
                spots.append((id(seq), i + 1)); since = 4
    per = -(-len(spots) // 4)
    ins = {}
    for k, sp in enumerate(spots):
        w, n = divmod(k, per)
        last = n == per - 1 or k == len(spots) - 1
        ins[sp] = [I(f"L_ip{w}_{n}:"), I(f"s_cbranch_execz {'L_end' if last else f'L_ip{w}_{n+1}'}")]
    out = []
    for seq, start in regions:
        o = []
        for i, x in enumerate(seq):
            o += ins.get((id(seq), i), [])
            o.append(x)
        out.append(o)
    print("pads:", len(spots))
    return out

def main():
    for n in range(84): assert (n * 43) >> 8 == n // 6
    for n in range(64): assert (n * 79) >> 10 == n // 13 and (n * 37) >> 8 == n // 7
    for n in range(30): assert (n * 43) >> 7 == n // 3
    for n in range(182): assert (n * 147) >> 10 == n // 7
    pro = prologue()
    def path(role):
        full = resolve(pro + role)
        return full[len(pro):], full
    fr, fx = ffn()
    qr, qx = qkv()
    f, ff = path(fr)
    q, qf = path(qr)
    if CFG["IPF"]:
        nb = lambda seq, k: [i for i, x in enumerate(seq) if x.kind == "barrier"][k]
        f, q = add_pads([(f, nb(f, CFG["IPF0"])), (q, nb(q, CFG["IPQ0"]))])
        ff, qf = pro + f, pro + q
    probs = []
    for nm, s in (("ffn", ff), ("qkv", qf), ("idle", pro + idle()), ("fx", fx), ("qx", qx)):
        probs += check_hazards(s, nm) + check_pending(s, nm) + check_scc(s, nm)
    for p in probs: print("HAZARD", p, file=sys.stderr)
    ref = open(f"cdna_kernels/{NAME}.s.ref").read()
    out = ref.split("; @launch")[0]
    out += "; @launch grid=(256,1,1) block=(256,1,1) lds=163840\n"
    out += f'.amdgcn_target "amdgcn-amd-amdhsa--gfx950"\n.text\n.globl {NAME}_kernel\n.p2align 8\n.type {NAME}_kernel,@function\n{NAME}_kernel:\n'
    out += render(pro) + "\n" + render(f) + "\n    s_endpgm\n" + render(fx) + "\n" + render(q) + "\n    s_endpgm\n" + render(qx) + "\n"
    out += render(idle()) + "\nL_end:\n    s_endpgm\n"
    out += f""".section .rodata,"a"
.p2align 6
.amdhsa_kernel {NAME}_kernel
  .amdhsa_next_free_vgpr 512
  .amdhsa_next_free_sgpr 102
  .amdhsa_accum_offset 256
  .amdhsa_group_segment_fixed_size 0
  .amdhsa_kernarg_size 88
  .amdhsa_user_sgpr_count 2
  .amdhsa_user_sgpr_kernarg_segment_ptr 1
  .amdhsa_system_sgpr_workgroup_id_x 1
.end_amdhsa_kernel
"""
    open(sys.argv[1], "w").write(out)
    print("instr counts: ffn", len(f), "qkv", len(q), "hazards", len(probs))

main()
```

```python
import re

TRANS = ("v_exp_f32", "v_log_f32", "v_rcp_f32", "v_rsq_f32", "v_sqrt_f32", "v_sin_f32", "v_cos_f32")


def _expand(tok):
    tok = tok.strip()
    tok = tok.lstrip("-")
    if tok.startswith("abs(") and tok.endswith(")"):
        tok = tok[4:-1]
    if tok.startswith("|") and tok.endswith("|"):
        tok = tok[1:-1]
    m = re.fullmatch(r"([vas])\[(\d+):(\d+)\]", tok)
    if m:
        return [f"{m.group(1)}{i}" for i in range(int(m.group(2)), int(m.group(3)) + 1)]
    m = re.fullmatch(r"([vas])(\d+)", tok)
    if m:
        return [tok]
    if tok in ("vcc", "exec", "m0", "scc"):
        return [tok]
    if tok in ("vcc_lo", "vcc_hi"):
        return ["vcc"]
    if tok in ("exec_lo", "exec_hi"):
        return ["exec"]
    return []


class Ins:
    def __init__(self, text, tag=None):
        self.text = text
        self.tag = tag
        self.kind = "other"
        self.w = set()
        self.r = set()
        self.srcc = set()
        self.states = 1
        self.cost = 1
        self._parse()

    def _parse(self):
        t = self.text.split(";")[0].strip()
        if t.endswith(":"):
            self.kind = "label"
            self.states = 0
            self.cost = 0
            return
        if t.startswith("."):
            self.kind = "directive"
            self.states = 0
            self.cost = 0
            return
        parts = t.split(None, 1)
        op = parts[0]
        self.op = op
        rest = parts[1] if len(parts) > 1 else ""
        rest = re.sub(r"\s(op_sel|op_sel_hi|neg_lo|neg_hi):\[[0-9,]*\]", "", rest)
        ops = [x.strip() for x in rest.split(",")] if rest else []
        if ops:
            ops[-1] = ops[-1].split()[0] if ops[-1].split() else ""
        mods = rest.split()
        E = lambda xs: set(r for x in xs for r in _expand(x))
        if op == "s_nop":
            self.kind = "nop"
            self.states = int(ops[0]) + 1
            self.cost = self.states
        elif op == "s_waitcnt":
            self.kind = "wait"
        elif op == "s_barrier":
            self.kind = "barrier"
        elif op.startswith("s_cbranch") or op in ("s_branch", "s_endpgm", "s_setpc_b64"):
            self.kind = "branch"
        elif op.startswith("s_load") or op in ("s_memtime", "s_memrealtime"):
            self.kind = "smem"
            self.w = E(ops[:1])
            self.r = E(ops[1:])
        elif op.startswith("s_cmp") or op.startswith("s_bitcmp"):
            self.kind = "salu"
            self.r = E(ops)
            self.w = {"scc"}
        elif op in ("s_sleep", "s_setprio"):
            self.kind = "salu"
        elif op.startswith("s_"):
            self.kind = "salu"
            self.w = E(ops[:1])
            self.r = E(ops[1:])
            if "saveexec" in op:
                self.w |= {"exec"}
        elif op.startswith("v_mfma"):
            self.kind = "mfma"
            self.w = E(ops[:1])
            self.r = E(ops[1:])
            self.srcc = E(ops[3:4])
            self.cost = 2
        elif op.startswith("v_permlane"):
            self.kind = "perm"
            self.w = E(ops[:2])
            self.r = E(ops[:2])
        elif op.startswith("v_cmp"):
            self.kind = "valu"
            self.w = E(ops[:1])
            self.r = E(ops[1:])
        elif op.startswith("v_readfirstlane") or op.startswith("v_readlane"):
            self.kind = "valu"
            self.w = E(ops[:1])
            self.r = E(ops[1:])
        elif op.startswith("v_"):
            base = op.replace("_e32", "").replace("_e64", "")
            self.kind = "trans" if base in TRANS else "valu"
            if self.kind == "trans":
                self.cost = 2
            self.w = E(ops[:1])
            self.r = E(ops[1:])
            if base.startswith("v_fmac") or "_dpp" in op:
                self.r |= E(ops[:1])
            if "_co_" in op:
                self.w |= E(ops[1:2])
        elif op.startswith("ds_read") or op.startswith("ds_bpermute") or op.startswith("ds_swizzle"):
            self.kind = "ds"
            self.w = E(ops[:1])
            self.r = E(ops[1:])
        elif op.startswith("ds_write"):
            self.kind = "ds"
            self.r = E(ops)
        elif op.startswith("buffer_load") or op.startswith("global_load"):
            self.kind = "vmem"
            if "lds" in mods:
                self.r = E(ops) | {"m0"}
                self.lds_dma = True
            else:
                self.w = E(ops[:1])
                self.r = E(ops[1:])
        elif op.startswith("buffer_store") or op.startswith("global_store"):
            self.kind = "vmem"
            self.r = E(ops)
            self.store = True
            if op.startswith("buffer_store"):
                self.sdata = E(ops[:1])
            else:
                self.sdata = E(ops[1:2])
            self.wide = op.endswith("x4") or op.endswith("x3")
        elif op.startswith("buffer_atomic") or op.startswith("global_atomic"):
            self.kind = "vmem"
            self.r = E(ops)
            if "sc0" in mods:
                self.w = E(ops[:1])
        elif op.startswith("buffer_inv") or op.startswith("buffer_wbl2"):
            self.kind = "vmem"
        else:
            raise ValueError("unparsed instruction: " + self.text)


class Wait:
    kind = "pwait"
    tag = None
    cost = 1
    states = 1

    def __init__(self, vm=None, lgkm=None):
        self.vm = vm
        self.lgkm = lgkm


def I(text, tag=None):
    return Ins(text, tag)


def resolve(seq):
    vmq, lq = [], []
    out = []
    for x in seq:
        if isinstance(x, Wait):
            parts = []
            for name, q, tag, mx in (("vmcnt", vmq, x.vm, 63), ("lgkmcnt", lq, x.lgkm, 15)):
                if tag is None:
                    continue
                if tag == "all":
                    n = 0
                    done = len(q)
                else:
                    tags = tag if isinstance(tag, (list, tuple, set)) else [tag]
                    idx = [i for i, t in enumerate(q) if t in tags]
                    if not idx:
                        continue
                    n = len(q) - 1 - max(idx)
                    done = max(idx) + 1
                    if n > mx:
                        n = mx
                        done = len(q) - mx
                del q[:done]
                parts.append(f"{name}({n})")
            if parts:
                out.append(Ins("s_waitcnt " + " ".join(parts)))
            continue
        if x.kind == "vmem":
            vmq.append(x.tag)
        elif x.kind == "ds":
            lq.append(x.tag)
        elif x.kind == "smem":
            lq.append(x.tag)
        elif x.kind == "wait":
            m = re.search(r"vmcnt\((\d+)\)", x.text)
            if m:
                n = int(m.group(1))
                if len(vmq) > n:
                    del vmq[: len(vmq) - n]
            m = re.search(r"lgkmcnt\((\d+)\)", x.text)
            if m:
                n = int(m.group(1))
                if len(lq) > n:
                    del lq[: len(lq) - n]
        out.append(x)
    return out


def isv(r):
    return r[0] in "va" and r[1:].isdigit()


def iss(r):
    return (r[0] == "s" and r[1:].isdigit()) or r in ("vcc",)


def check_hazards(seq, name=""):
    probs = []
    n = len(seq)
    for i, a in enumerate(seq):
        if a.kind in ("label", "directive", "nop", "wait", "barrier", "branch", "other"):
            continue
        rules = []
        VAL = ("valu", "trans", "perm")
        if a.kind in VAL:
            wv = {r for r in a.w if isv(r)}
            ws = {r for r in a.w if iss(r)}
            if wv:
                rules.append((lambda b, wv=wv: b.kind == "mfma" and b.r & wv, 2, "valu->mfma"))
                rules.append((lambda b, wv=wv: b.kind == "perm" and b.r & wv, 2, "valu->permlane"))
                rules.append((lambda b, wv=wv: b.kind == "valu" and "_dpp" in b.op and b.r & wv, 2, "valu->dpp"))
                rules.append((lambda b, wv=wv: b.kind == "valu" and ("readfirstlane" in b.op or "readlane" in b.op) and b.r & wv, 1, "valu->readlane"))
            if a.kind == "trans":
                rules.append((lambda b, wv=wv: b.kind in ("valu", "perm") and b.r & wv, 1, "trans->valu"))
            if ws:
                rules.append((lambda b, ws=ws: b.kind in VAL and b.r & ws, 2, "valu sgpr->valu"))
                rules.append((lambda b, ws=ws: b.kind == "vmem" and b.r & ws, 5, "valu sgpr->vmem"))
            if "exec" in a.w:
                rules.append((lambda b: b.kind in ("mfma", "perm"), 4, "valu exec->mfma/perm"))
        if a.kind == "mfma":
            passes = 4 if "16x16x32" in a.op else 8
            nd = {4: 8, 8: 12}[passes]
            rules.append((lambda b, w=a.w: b.kind in VAL + ("vmem", "ds") and ((b.r | b.w) & w), nd, "mfma->valu/mem"))
            rules.append((lambda b, w=a.w: b.kind == "mfma" and ((b.r - b.srcc) & w), nd, "mfma->mfma AB"))
            rules.append((lambda b, w=a.w: b.kind == "mfma" and (b.srcc & w) and b.srcc != w, {4: 6, 8: 10}[passes], "mfma->mfma C partial"))
            rules.append((lambda b, w=a.w: b.kind == "mfma" and (b.w & w) and not (b.srcc & w), {4: 6, 8: 10}[passes], "mfma WAW"))
            if a.srcc:
                rules.append((lambda b, c=a.srcc: b.kind in VAL and (b.w & c), {4: 3, 8: 7}[passes], "mfma srcC WAR"))
        if a.kind == "salu" and "m0" in a.w:
            rules.append((lambda b: b.kind == "vmem" and getattr(b, "lds_dma", False), 1, "m0->dma"))
        if a.kind == "vmem" and getattr(a, "store", False) and a.wide:
            rules.append((lambda b, d=a.sdata: b.kind in VAL and (b.w & d), 2, "store data WAR"))
            rules.append((lambda b, d=a.sdata: b.kind in ("ds", "vmem", "mfma") and (b.w & d), 1, "store data WAR"))
        if not rules:
            continue
        mx = max(r[1] for r in rules)
        dist = 0
        j = i + 1
        while j < n and dist < mx:
            b = seq[j]
            for pred, need, what in rules:
                if dist < need and b.kind not in ("label", "directive") and pred(b):
                    probs.append(f"{name}: {what}: need {need} got {dist}: [{i}] {a.text}  ->  [{j}] {b.text}")
            dist += b.states
            j += 1
    return probs


def check_pending(seq, name=""):
    probs = []
    vmq, lq = [], []
    for i, x in enumerate(seq):
        if x.kind == "wait":
            m = re.search(r"vmcnt\((\d+)\)", x.text)
            if m:
                nn = int(m.group(1))
                if len(vmq) > nn:
                    del vmq[: len(vmq) - nn]
            m = re.search(r"lgkmcnt\((\d+)\)", x.text)
            if m:
                nn = int(m.group(1))
                if len(lq) > nn:
                    del lq[: len(lq) - nn]
            continue
        if x.kind in ("label", "directive", "nop", "barrier", "branch"):
            continue
        for q in (vmq, lq):
            for (j, w) in q:
                if w & (x.r | x.w):
                    probs.append(f"{name}: pending load [{j}] {seq[j].text} touched by [{i}] {x.text}")
        if x.kind == "vmem":
            vmq.append((i, set(x.w)))
        elif x.kind in ("ds", "smem"):
            lq.append((i, set(x.w)))
    return probs


def interleave(main, fill, per_gap=2, start=0, spread=True):
    out = []
    fill = list(fill)
    total = sum(f.cost for f in fill)
    ngaps = max(1, len(main) - start)
    rate = min(per_gap, total / ngaps) if spread else per_gap
    credit = 0.0
    k = 0
    for i, m in enumerate(main):
        out.append(m)
        if i < start:
            continue
        credit += rate
        while k < len(fill) and (fill[k].cost <= credit + 1e-9 or fill[k].cost == 0):
            out.append(fill[k])
            credit -= fill[k].cost
            k += 1
        if credit > per_gap:
            credit = per_gap
    return out, fill[k:]


def render(seq):
    L = []
    for x in seq:
        if x.kind in ("label", "directive"):
            L.append(x.text)
        else:
            L.append("    " + x.text)
    return "\n".join(L)


def weave(main, streams):
    at = [[] for _ in main]
    tail = []
    for groups, start, end in streams:
        n = len(groups)
        if n == 0:
            continue
        end = min(end, len(main))
        for k, g in enumerate(groups):
            pos = start + (k * (end - start)) // n
            at[pos].append(g)
    out = []
    for m, gs in zip(main, at):
        out.append(m)
        for g in gs:
            out += g
    return out


def dma_groups(seq):
    groups, cur = [], []
    for x in seq:
        cur.append(x)
        if x.kind == "vmem":
            groups.append(cur)
            cur = []
    if cur:
        groups[-1] += cur
    return groups


class Stream:
    def __init__(self, items=(), every=1, rate=None, ooo=0):
        self.q = list(items)
        self.ooo = ooo
        self.every = every
        self.last = -10 ** 9
        self.rate = rate
        self.credit = 0.0

    def add(self, items):
        self.q += list(items)

    def __len__(self):
        return len(self.q)


def is_scalar(x):
    return x.kind in ("salu", "wait", "pwait", "nop", "barrier", "branch", "label")


class Block:
    kind = "block"
    cost = 0
    tag = None
    def __init__(self, items): self.items = list(items)


class Sched:
    def __init__(self, out, units=2, ds=1, scal=1):
        self.out = out
        self.g = 0
        self.lock = None
        self.units = units
        self.ds = ds
        self.scal = scal
        self.td = 1
        self.safe = False

    def gap(self, streams, on_emit=None):
        out = self.out
        emit = []
        m0 = False
        nsc = 0
        for s in streams:
            while s.q and nsc < self.scal:
                if s.q[0].kind == "block":
                    b = s.q.pop(0)
                    emit += b.items
                    nsc += len(b.items)
                elif is_scalar(s.q[0]):
                    x = s.q.pop(0)
                    assert not (x.kind == "salu" and x.op.startswith("s_cmp")), "put s_cmp pairs into a Block"
                    emit.append(x)
                    nsc += 1
                else:
                    break
        m0 = bool(emit) and emit[-1].kind == "salu" and "m0" in emit[-1].w
        units, ds, vm = self.units - max(0, nsc - 1), self.ds, 1
        nfront = len(emit)
        valu_seen = False
        for s in streams:
            if self.g < getattr(s, "hold", 0):
                continue
            if s.rate is not None:
                s.credit = min(s.credit + s.rate, 2.0)
            while s.q and not is_scalar(s.q[0]) and s.q[0].kind != "block":
                x = s.q[0]
                if x.kind == "mfma":
                    break
                c = 2 if x.kind in ("trans", "perm") else 1
                if c > units or (x.kind == "ds" and not ds):
                    break
                if self.safe and deficit(out + emit, x) > 0:
                    break
                if x.kind in ("ds", "vmem") and valu_seen:
                    break
                if s.rate is not None and s.credit < 1.0 - 1e-9:
                    break
                if x.kind == "vmem":
                    if not vm or self.g - s.last < s.every:
                        break
                    if m0 and getattr(x, "lds_dma", False) and len(emit) == nfront:
                        break
                    vm = 0
                    s.last = self.g
                if x.kind == "ds":
                    ds -= 1
                if x.kind in ("valu", "trans", "perm"):
                    if any(y.kind == "trans" and (y.w & x.r) for y in emit[-self.td:]):
                        break
                    valu_seen = True
                s.q.pop(0)
                emit.append(x)
                units -= c
                if s.rate is not None:
                    s.credit -= 1.0
        for s in streams:
            k = 1
            if self.g < getattr(s, "hold", 0):
                continue
            while units > 0 and s.ooo and k < min(s.ooo, len(s.q)):
                x = s.q[k]
                skipped = s.q[:k]
                if any(y.kind not in ("valu", "trans", "vmem", "salu") for y in skipped):
                    break
                last = emit[-1] if emit else None
                if (x.kind == "valu" or (x.kind == "trans" and units >= 2)) and not any((y.w & (x.r | x.w)) or (y.r & x.w) for y in skipped) \
                        and not any(y.kind == "trans" and (y.w & x.r) for y in emit[-self.td:]):
                    emit.append(s.q.pop(k))
                    units -= 2 if x.kind == "trans" else 1
                else:
                    k += 1
        for x in emit:
            out.append(x)
            if on_emit:
                on_emit(x)
        self.g += 1
        for s in streams:
            if s.q and s.q[0].kind == "mfma" and deficit(out, s.q[0]) <= 0:
                out.append(s.q.pop(0))
                self.gap(streams, on_emit)
                break

    def run(self, main, streams, flush=()):
        for m in main:
            self.out.append(m)
            self.gap(streams)
        for s in flush:
            self.flush(s)

    def flush(self, s):
        prev_m0 = False
        for x in s.q:
            if x.kind == "block":
                self.out += x.items
                continue
            if prev_m0 and getattr(x, "lds_dma", False):
                self.out.append(Ins("s_nop 0"))
            self.out.append(x)
            prev_m0 = x.kind == "salu" and "m0" in x.w
        s.q = []
        if self.lock is s:
            self.lock = None


def check_scc(seq, name=""):
    probs = []
    NOSCC = ("s_mov", "s_movk", "s_mul_i32", "s_cselect", "s_nop", "s_waitcnt", "s_barrier", "s_sleep", "s_setprio", "s_getreg", "s_mul_hi")
    last = None
    for x in seq:
        if x.kind == "label":
            last = None
            continue
        op = getattr(x, "op", "")
        if op.startswith("s_cselect") or op.startswith("s_cbranch_scc") or op.startswith("s_addc"):
            ok = last is not None and (last.op.startswith("s_cmp") or last.op.startswith("s_bitcmp") or
                                       (op.startswith("s_addc") and last.op == "s_add_u32") or
                                       (op.startswith("s_cbranch") and last.op == "s_sub_u32" and "L_end" in x.text))
            if not ok:
                probs.append(f"{name}: scc consumer {x.text} after {last.text if last else None}")
        if x.kind == "salu" and not op.startswith(NOSCC):
            last = x
    return probs


def pkify(seq):
    def parse(x):
        if x.kind != "valu" or x.op not in ("v_mul_f32", "v_add_f32"):
            return None
        o = [t.strip() for t in x.text.split(None, 1)[1].split(",")]
        return x.op, o
    def num(t):
        m = re.fullmatch(r"v(\d+)", t)
        return int(m.group(1)) if m else None
    out, i = [], 0
    while i < len(seq):
        a = parse(seq[i]) if i + 1 < len(seq) else None
        b = parse(seq[i + 1]) if a else None
        done = False
        if a and b and a[0] == b[0]:
            d0, d1 = num(a[1][0]), num(b[1][0])
            if d0 is not None and d0 % 2 == 0 and d1 == d0 + 1 and not (seq[i].w & seq[i + 1].r):
                srcs, sel, selhi = [], [], []
                for p, q in zip(a[1][1:], b[1][1:]):
                    n0, n1 = num(p), num(q)
                    if n0 is not None and n1 == n0 + 1 and n0 % 2 == 0:
                        srcs.append(f"v[{n0}:{n1}]"); sel.append(0); selhi.append(1)
                    elif p == q and n0 is not None:
                        e = n0 & ~1
                        srcs.append(f"v[{e}:{e+1}]"); sel.append(n0 & 1); selhi.append(n0 & 1)
                    elif p == q and re.fullmatch(r"s\d+", p) and int(p[1:]) % 2 == 0:
                        srcs.append(f"s[{p[1:]}:{int(p[1:])+1}]"); sel.append(0); selhi.append(0)
                    elif p == q and p in ("1.0", "2.0", "0.5"):
                        srcs.append(p); sel.append(0); selhi.append(0)
                    else:
                        srcs = None
                        break
                if srcs:
                    op = a[0].replace("v_", "v_pk_")
                    out.append(Ins(f"{op} v[{d0}:{d1}], {srcs[0]}, {srcs[1]} op_sel:[{sel[0]},{sel[1]}] op_sel_hi:[{selhi[0]},{selhi[1]}]"))
                    i += 2
                    done = True
        if not done:
            out.append(seq[i])
            i += 1
    return out


def fix_trans(seq):
    seq = list(seq)
    i = 0
    while i + 1 < len(seq):
        a, b = seq[i], seq[i + 1]
        if a.kind == "trans" and b.kind in ("valu", "perm") and (a.w & b.r):
            moved = False
            for k in range(i + 2, min(i + 8, len(seq))):
                x = seq[k]
                if x.kind not in ("valu", "trans"):
                    break
                between = seq[i + 1:k]
                if not (a.w & x.r) and not any((y.w & (x.r | x.w)) or (y.r & x.w) for y in between):
                    seq.insert(i + 1, seq.pop(k))
                    moved = True
                    break
            if not moved:
                seq.insert(i + 1, Ins("s_nop 0"))
        i += 1
    return seq


_VAL = ("valu", "trans", "perm")


def need(a, b):
    if a.kind in ("label", "directive", "nop", "wait", "pwait", "barrier", "branch", "other", "block"):
        return 0
    if b.kind in ("label", "directive", "nop", "wait", "pwait", "barrier", "branch", "other", "block"):
        return 0
    n = 0
    if a.kind in _VAL:
        wv = {r for r in a.w if isv(r)}
        ws = {r for r in a.w if iss(r)}
        if wv & b.r:
            if b.kind in ("mfma", "perm"):
                n = max(n, 2)
            if b.kind == "valu" and ("readfirstlane" in b.op or "readlane" in b.op):
                n = max(n, 1)
            if a.kind == "trans" and b.kind in ("valu", "perm"):
                n = max(n, 1)
        if ws & b.r:
            n = max(n, 5 if b.kind == "vmem" else 2 if b.kind in _VAL else 0)
    if a.kind == "mfma":
        p4 = "16x16x32" in a.op
        if b.kind in _VAL + ("vmem", "ds") and ((b.r | b.w) & a.w):
            n = max(n, 8 if p4 else 12)
        if b.kind == "mfma":
            if (b.r - b.srcc) & a.w:
                n = max(n, 8 if p4 else 12)
            if ((b.srcc & a.w) and b.srcc != a.w) or ((b.w & a.w) and not (b.srcc & a.w)):
                n = max(n, 6 if p4 else 10)
        if b.kind in _VAL and (b.w & a.srcc):
            n = max(n, 3 if p4 else 7)
    if a.kind == "salu" and "m0" in a.w and getattr(b, "lds_dma", False):
        n = max(n, 1)
    if a.kind == "vmem" and getattr(a, "store", False) and a.wide and (b.w & a.sdata):
        n = max(n, 2 if b.kind in _VAL else 1)
    return n


def deficit(hist, x):
    d, worst = 0, 0
    for a in reversed(hist[-16:]):
        if a.kind == "pwait":
            continue
        worst = max(worst, need(a, x) - d)
        d += a.states
        if d >= 12:
            break
    return worst


def emit_safe(out, seq, fill=None):
    for x in seq:
        while True:
            m = deficit(out, x)
            if m <= 0:
                break
            if fill and deficit(out, fill[0]) <= 0:
                out.append(fill.pop(0))
            else:
                out.append(Ins(f"s_nop {m - 1}"))
        out.append(x)
```

```python
import sys, os, math, struct, re
sys.path.insert(0, os.path.dirname(os.path.abspath(__file__)))
from asmlib import *

NAME = "gated_mix__sliding_local_dilated__swiglu_ffn__prompt"
CFG = dict(ROT=2, P1=4, STAMP=0, PUB=3, PF=3, PAD=0, CYC=0, SET=0, G=3, GI=2, GQ=7, GIQ=2, JMAP=0xc9, LAG=5, FULL=1, U2=5, TD=2, EV3=2, AMP=0, AMPROLE=1, AMPWG=18, XF=0, OFAST=1, TLB=1, LAQ=2, QD=0, IPF=0, IST=208, IPF0=9, IPQ0=4, RX=0, RH=0, PRE=1, OSC=1, EV1=3, EV2=2, EVQ=4, PUBD=24)
for a in sys.argv[2:]:
    k, v = a.split("=")
    CFG[k] = int(v, 0)
ROT, P1 = CFG["ROT"], CFG["P1"]

def f2u(x):
    return struct.unpack("<I", struct.pack("<f", x))[0]

S, D, F = 2048, 448, 1792
X_BYTES = S * D * 2
WQKV_BYTES = D * 3 * D * 2
WO_BYTES = D * D * 2
WG_BYTES = D * F * 2
NK = 73
A_OFF = 131072
A_BYTES = 128 * NK * 1024
MISC_BYTES = 131072
FLAG_OFF = 81920
OOB = 0x40000000
MASTER = 248

sWV = "s3"
SRD_X, SRD_W, SRD_A, SRD_O, SRD_W2, SRD_WO, SRD_M, SRD_D = 28, 32, 36, 40, 44, 48, 52, 96
def srd(n): return f"s[{n}:{n+3}]"
sK = [f"s{56+i}" for i in range(7)]
sROW0, sC, sT0, sT1, sT2, sT3 = "s63", "s64", "s65", "s66", "s67", "s68"
sM0W, sM0X, sSOFF, sAST, sNL2E = "s69", "s70", "s71", "s73", "s72"
sXROW = [f"s{74+i}" for i in range(5)]
sJ = "s79"
mODD, mC0, mC1, mC0F, mC1F, mG3 = "s[80:81]", "s[82:83]", "s[84:85]", "s[86:87]", "s[88:89]", "s[90:91]"
sSCL, sQB, sN2, sRB = "s92", "s93", "s94", "s95"
sRT, sNT, sAO, sCW, sCA, sM02 = "s74", "s75", "s76", "s77", "s78", "s79"

def vq(n, k=4): return f"v[{n}:{n+k-1}]"
def aq(n, k=4): return f"a[{n}:{n+k-1}]"
def rq(r, k=4): return f"{r[0]}[{r[1]}:{r[1]+k-1}]"

def mksrd(n, lo, size):
    return [I(f"s_mov_b32 s{n}, s{lo}"), I(f"s_mov_b32 s{n+1}, s{lo+1}"),
            I(f"s_mov_b32 s{n+2}, {size}"), I(f"s_mov_b32 s{n+3}, 0x20000")]

def srd_a():
    return [I(f"s_add_u32 s{SRD_A}, s24, {A_OFF}"), I(f"s_addc_u32 s{SRD_A+1}, s25, 0"),
            I(f"s_mov_b32 s{SRD_A+2}, {A_BYTES}"), I(f"s_mov_b32 s{SRD_A+3}, 0x20000")]

def mfma32(d, a, b, first):
    return I(f"v_mfma_f32_32x32x16_bf16 {d}, {a}, {b}, {'0' if first else d}")

def mfma(d, a, b, first):
    return I(f"v_mfma_f32_16x16x32_bf16 {d}, {a}, {b}, {'0' if first else d}")

class Stamps:
    def __init__(self, regs, role): self.regs = regs; self.n = 0; self.role = role
    def __call__(self, sets=(0,)):
        if not CFG["STAMP"] or not (sets is True or CFG["SET"] in sets): return []
        r = self.regs[self.n]; self.n += 1
        op = "s_memtime" if CFG["CYC"] else "s_memrealtime"
        return [I(f"{op} s[100:101]"), I("s_waitcnt lgkmcnt(0)"), I(f"s_mov_b32 s{r}, s100")]
    def dump(self, base, vtmp):
        if not CFG["STAMP"]: return []
        if CFG["AMP"]:
            a, b = divmod(CFG["AMP"], 100)
            if (base is None) or max(a, b) >= self.n or CFG["AMPROLE"] != self.role: return []
            lab = f"L_amp{self.role}"
            return [I(f"s_cmp_lg_u32 s2, {CFG['AMPWG']}"), I("s_cbranch_scc1 L_end"),
                    I(f"s_sub_u32 s10, s{self.regs[b]}, s{self.regs[a]}"), I("s_mul_i32 s10, s10, 10"), I("s_add_u32 s10, s10, 4000"),
                    I(lab + ":"), I("s_memrealtime s[100:101]"), I("s_waitcnt lgkmcnt(0)"), I(f"s_sub_u32 s100, s100, s{self.regs[0]}"),
                    I("s_cmp_lt_u32 s100, s10"), I(f"s_cbranch_scc1 {lab}")]
        L = [I("s_waitcnt vmcnt(0)")] + self(True)
        L += [I(f"v_mov_b32 v{vtmp}, 0")]
        for k in range(self.n): L.append(I(f"v_writelane_b32 v{vtmp}, s{self.regs[k]}, {k}"))
        L += [I("s_lshl_b32 s26, s2, 6"), I(f"s_add_u32 s26, s26, {base}"), I(f"s_cmp_eq_u32 {sWV}, 0"), I(f"s_cselect_b32 s26, s26, {OOB}"),
              I(f"v_lshlrev_b32 v{vtmp+1}, 2, v0"), I("v_cmp_gt_u32 vcc, 16, v0"), I("s_nop 4"), I("s_and_saveexec_b64 s[10:11], vcc"),
              I(f"buffer_store_dword v{vtmp}, v{vtmp+1}, {srd(SRD_M)}, s26 offen")]
        if CFG["STAMP"] == 2:
            L += [I("s_cmp_eq_u32 s2, 0"), I(f"s_cselect_b32 s26, 8, {OOB}"), I(f"s_cmp_eq_u32 {sWV}, 0"), I(f"s_cselect_b32 s26, s26, {OOB}"),
                  I(f"buffer_store_dword v{vtmp}, v{vtmp+1}, {srd(SRD_D)}, s26 offen")]
        return L

def sk_next(s):
    return [I(f"s_add_u32 {sK[s]}, {sK[s-1]}, 128"), I(f"s_cmp_eq_u32 {sK[s]}, 896"),
            I(f"s_cselect_b32 {sK[s]}, 0, {sK[s]}")]

def rot_small(a, b):
    G, GI, RX, RH = CFG["G"], CFG["GI"], CFG["RX"], CFG["RH"]
    if b is None: G, GI = CFG["GQ"], CFG["GIQ"]
    L = [I(f"s_add_u32 s27, {a}, {b}")] if b else [I(f"s_mov_b32 s27, {a}")]
    if G == 1: L = [I("s_mov_b32 s27, 0")]
    elif G == 2: L += [I("s_and_b32 s27, s27, 1")]
    elif G == 3: L += [I("s_mul_i32 s11, s27, 43"), I("s_lshr_b32 s11, s11, 7"), I("s_mul_i32 s11, s11, 3"), I("s_sub_u32 s27, s27, s11")]
    if G > 1 and GI != 1: L += [I(f"s_mul_i32 s27, s27, {GI}")]
    if RX: L += [I("s_bfe_u32 s11, s2, 0x20001"), I(f"s_mul_i32 s11, s11, {RX}"), I("s_add_u32 s27, s27, s11")]
    if RH: L += [I("s_and_b32 s11, s2, 1"), I(f"s_mul_i32 s11, s11, {RH}"), I("s_add_u32 s27, s27, s11")]
    if G == 7 or RX or RH:
        L += [I("s_mul_i32 s11, s27, 147"), I("s_lshr_b32 s11, s11, 10"), I("s_mul_i32 s11, s11, 7"), I("s_sub_u32 s27, s27, s11")]
    L += [I(f"s_lshl_b32 {sK[0]}, s27, 7")]
    return L

def blockify(seq):
    o, i = [], 0
    while i < len(seq):
        x = seq[i]
        j = i + 1
        while j < len(seq) and getattr(seq[j], "op", "").startswith(("s_cselect", "s_addc")): j += 1
        o.append(Block(seq[i:j]) if j > i + 1 else x)
        i = j
    return o

def direct(seq):
    o = []
    Sched(o).flush(Stream(seq))
    return o

def publish(tag, vrdy, vone, scnt, st="st"):
    return [Wait(vm=[st, "rdy"]), I(f"v_readfirstlane_b32 s10, v{vrdy}"), I(f"v_mov_b32 v{vone}, 1")] + spin_init() + [I("s_nop 0"),
            I("s_cmp_eq_u32 s10, 0"), I(f"s_cbranch_scc1 L_slow_{tag}"), I(f"L_back_{tag}:"),
            I("s_mov_b64 exec, 1"),
            I(f"buffer_atomic_add v{vone}, off, {srd(SRD_M)}, {scnt} sc1", "pub"),
            I("s_mov_b64 exec, -1")]

SPIN = "s11"
def spin_init(): return [I(f"s_mov_b32 {SPIN}, 0x100000")]
def spin_step(): return [I(f"s_sub_u32 {SPIN}, {SPIN}, 1"), I("s_cbranch_scc1 L_end")]

def slow(tag, vrdy):
    return [I(f"L_slow_{tag}:")] + spin_step() + [I(f"buffer_load_dword v{vrdy}, off, {srd(SRD_D)}, 0 sc1"), I("s_waitcnt vmcnt(0)"),
            I(f"v_readfirstlane_b32 s10, v{vrdy}"), I("s_nop 3"), I("s_cmp_eq_u32 s10, 0"), I(f"s_cbranch_scc1 L_slow_{tag}"),
            I(f"s_branch L_back_{tag}")]

def prologue():
    L = [I("s_cmp_ge_u32 s2, 256"), I("s_cbranch_scc1 L_end"),
         I("s_load_dwordx4 s[4:7], s[0:1], 0", "ka"), I("s_load_dwordx8 s[12:19], s[0:1], 32", "ka"),
         I("s_load_dwordx2 s[8:9], s[0:1], 16", "ka"), I("s_load_dwordx4 s[20:23], s[0:1], 64", "ka"),
         I("s_load_dwordx2 s[24:25], s[0:1], 80", "ka")]
    L += [I("v_lshrrev_b32 v1, 6, v0"), I("v_and_b32 v0, 63, v0"),
          I("s_bfe_u32 s10, s2, 0x20001"),
          I("v_readfirstlane_b32 s3, v1"),
          I("s_lshr_b32 s11, s2, 3"),
          I("s_and_b32 s27, s2, 1"),
          I("s_cmp_lt_u32 s11, 8"), I("s_cbranch_scc1 L_qkv"),
          I("s_mul_i32 s26, s10, 23"), I("s_add_u32 s26, s26, s11"), I("s_sub_u32 s26, s26, 8"),
          I("s_cmp_eq_u32 s11, 31"), I("s_cbranch_scc1 L_idle"), I("s_cmp_ge_u32 s26, 91"), I("s_cbranch_scc1 L_idle"),
          I(f"s_mul_i32 {sN2}, s27, 91"), I(f"s_add_u32 {sN2}, {sN2}, s26"),
          I("s_mul_i32 s11, s27, 7"), I("s_sub_u32 s10, 49, s11"),
          I("s_cmp_ge_u32 s26, s10"), I("s_cselect_b32 s10, s10, 0"), I(f"s_cselect_b32 {sC}, 7, 0"),
          I(f"s_cselect_b32 {sRB}, s27, 0"), I(f"s_cselect_b32 {sQB}, 1, 0"),
          I("s_sub_u32 s26, s26, s10"), I(f"s_sub_u32 {sRB}, s11, {sRB}"),
          I(f"s_cmp_eq_u32 {sQB}, s27"), I("s_cselect_b32 s10, 37, 43"), I("s_cselect_b32 s11, 7, 6"),
          I("s_mul_i32 s10, s10, s26"), I("s_lshr_b32 s10, s10, 8"), I(f"s_add_u32 {sC}, {sC}, s10"),
          I("s_mul_i32 s10, s10, s11"), I("s_sub_u32 s26, s26, s10"), I(f"s_add_u32 {sRB}, {sRB}, s26")]
    return L

def idle():
    L = [I("L_idle:"), I("v_lshlrev_b32 v1, 7, v0"), I("s_waitcnt lgkmcnt(0)")]
    if CFG["XF"]: L += mksrd(SRD_X, 18, 896) + [I(f"buffer_load_dword v20, off, {srd(SRD_X)}, 0")]
    L += [
         I(f"s_cmp_lg_u32 s2, {MASTER}"), I("s_cbranch_scc1 L_pre"), I(f"s_cmp_lg_u32 {sWV}, 0"), I("s_cbranch_scc1 L_pre"),
         I("v_mov_b32 v2, 0"), I("v_mov_b32 v3, 1")] + mksrd(SRD_M, 24, MISC_BYTES) + mksrd(SRD_D, 22, 256)
    L += [x for k in range(5) for x in (I(f"s_mov_b32 s27, {FLAG_OFF + 8192*k}"), I(f"buffer_store_dword v2, v1, {srd(SRD_M)}, s27 offen sc1"))]
    L += [I("s_waitcnt vmcnt(0)"), I("s_mov_b64 exec, 1"), I(f"buffer_store_dword v3, off, {srd(SRD_D)}, 0 sc1"), I("s_mov_b64 exec, -1"),
          I("L_pre:")]
    if CFG["TLB"]:
        L += srd_a() + mksrd(SRD_O, 20, X_BYTES) + mksrd(SRD_D, 22, 256)
        L += [I(f"s_mov_b32 s26, {NK*1024}"), I("v_mul_u32_u24 v12, s26, v0"), I(f"s_lshl_b32 s27, {sWV}, 5"), I("s_mul_i32 s27, s27, s26"),
              I(f"s_add_u32 s27, s27, {72*1024}"), I("s_movk_i32 s26, 28672"), I("v_mul_u32_u24 v13, s26, v0"),
              I(f"s_cmp_lt_u32 {sWV}, 2"), I("s_cbranch_scc0 L_tlb2"), I("s_lshl_b32 s27, s27, 1"), I(f"s_sub_u32 s27, s27, {72*1024}"),
              I(f"buffer_load_dword v14, v12, {srd(SRD_A)}, s27 offen"), I("s_branch L_tlb3"),
              I("L_tlb2:"), I(f"buffer_load_dword v16, v13, {srd(SRD_O)}, 0 offen"), I(f"buffer_load_dword v15, off, {srd(SRD_D)}, 0 offset:128"),
              I("L_tlb3:")]
    if CFG["PRE"]:
        L += [I("s_and_b32 s26, s2, 7"), I("s_and_b32 s27, s2, 1"), I("s_add_u32 s27, s27, 8"), I("s_cmp_eq_u32 s11, 31"), I("s_cselect_b32 s26, s26, s27"),
              I("s_lshl_b32 s26, s26, 2"), I(f"s_add_u32 s26, s26, {sWV}"), I("s_lshl_b32 s26, s26, 13")]
        L += mksrd(SRD_W2, 16, WG_BYTES) + mksrd(SRD_WO, 8, WO_BYTES)
        for k in range(7):
            if k == 2: L += [I(f"s_sub_u32 s26, s26, {2*327680}")]
            L += [I(f"buffer_load_dword v{4+k}, v1, {srd(SRD_WO if k < 2 else SRD_W2)}, s26 offen"), I("s_add_u32 s26, s26, 327680")]
    if CFG["IPF"]:
        L += [I("s_mov_b64 exec, 0")]
        for w in range(1, 4): L += [I(f"s_cmp_eq_u32 {sWV}, {w}"), I(f"s_cbranch_scc1 L_ip{w}_0")]
        L += [I("s_branch L_ip0_0")]
    return L

P1 = 4
FW_RING, FW_R = 0, 4
FX_RING = 65536
FX_SLOT = P1 * 2048
FX2 = 102400
NT2 = 10 - P1
assert FX_RING + 3 * FX_SLOT <= 98304 and FX2 + 4 * 14336 <= 163840
SL2 = 6
RED = 98304
FL_LATE, FL_O = 104 * 128, 208 * 128

def ffn():
    ST = Stamps(list(range(80, 93)) + [4, 5, 6], 0)
    vWd = [1, 2, 3, 4]; vXd = [5, 6]; vX2d = 8; vWr = [9, 10]; vXr = [11, 12, 13, 14]; vAst = 21
    vT = [16, 17, 18, 19]; vRdy = 20; vOne = 7; vHi = 22
    XB = 24
    ACC = 72; NSL = 3
    v2d = [176, 177, 178, 179]; v2r = [180, 181, 182, 183]
    W2V = 184
    sODD, sCE, sCL, sDX = "s93", "s26", "s27", "s68"
    def acc(T, ct): return ACC + (T % NSL) * 32 + ct * 16
    def wfr(k, ct): return (k * 2 + ct) * 4
    L = [I("L_ffn:")] + ST(True)
    if CFG["PAD"]: L += [I("s_memrealtime s[80:81]")]
    L += [I(f"s_mul_i32 {sROW0}, {sRB}, 160"), I(f"s_and_b32 {sODD}, {sC}, 1")]
    L += rot_small(sRB, sC)
    r4, p16, r8, p8 = 16, 17, 18, 19
    L += [I(f"v_lshrrev_b32 v{r4}, 4, v0"), I(f"v_and_b32 v{p16}, 15, v0"),
          I(f"v_lshrrev_b32 v{r8}, 3, v0"), I(f"v_and_b32 v{p8}, 7, v0"),
          I(f"s_and_b32 s10, {sWV}, 1"), I("s_mul_i32 s11, s10, 57344"),
          I(f"s_lshl_b32 s27, {sC}, 8"), I("s_add_u32 s11, s11, s27"),
          I("s_movk_i32 s27, 3584"), I(f"v_mul_u32_u24 v20, s27, v{r4}"), I("v_add_u32 v20, s11, v20"),
          I(f"v_lshlrev_b32 v21, 2, v{r4}"), I(f"v_xor_b32 v21, v21, v{p16}"),
          I(f"s_and_b32 s11, {sWV}, 2"), I("v_xor_b32 v21, s11, v21"),
          I(f"v_lshl_add_u32 v{vWd[0]}, v21, 4, v20")]
    for i in range(1, 4): L += [I(f"v_add_u32 v{vWd[i]}, {4*3584-1024}, v{vWd[i-1]}")]
    L += [I(f"s_lshl_b32 {sM0W}, {sWV}, 12"),
          I(f"s_lshr_b32 s11, {sWV}, 1"), I("s_sub_u32 s27, 4, s11"), I(f"s_cmp_eq_u32 {sODD}, 0"), I("s_cselect_b32 s11, s11, s27"),
          I("s_lshl_b32 s11, s11, 1"), I("s_add_u32 s11, s11, s10"), I("s_lshl_b32 s11, s11, 4"),
          I(f"s_add_u32 s11, s11, {sROW0}"), I("s_mul_i32 s11, s11, 896"),
          I(f"s_lshl_b32 {sM0X}, {sWV}, 11"), I(f"s_add_u32 {sM0X}, {sM0X}, {FX_RING}"),
          I("s_movk_i32 s27, 896"),
          I(f"v_mul_u32_u24 v20, s27, v{r8}"),
          I(f"v_xor_b32 v21, v{r4}, v{p8}"),
          I(f"v_lshl_add_u32 v22, v21, 4, v20"),
          I(f"v_add_u32 v{vXd[0]}, s11, v22"), I("v_xor_b32 v23, 64, v22"),
          I(f"s_add_u32 s11, s11, {8*896-1024}"), I(f"v_add_u32 v{vXd[1]}, s11, v23")]
    L += [Wait(lgkm="all")] + ST((4,))
    L += [I(f"s_cmp_lt_u32 {sWV}, 2"), I(f"s_cselect_b32 s{SRD_W}, s12, s14"), I(f"s_cselect_b32 s{SRD_W+1}, s13, s15"),
          I(f"s_mov_b32 s{SRD_W+2}, {WG_BYTES}"), I(f"s_mov_b32 s{SRD_W+3}, 0x20000")]

    def dmaW(u):
        s, e = divmod(u, 2)
        r = [I(f"s_add_u32 m0, {sM0W}, {FW_RING + (u % FW_R) * 16384}"), I(f"s_mul_i32 {sSOFF}, {sK[s]}, 1792")]
        if e: r += [I(f"s_add_u32 {sSOFF}, {sSOFF}, 114688")]
        for i in range(4):
            r.append(I(f"buffer_load_dwordx4 v{vWd[i]}, {srd(SRD_W)}, {sSOFF} offen offset:{1024*i} lds", f"W{u}"))
        return r
    def dmaX(s):
        r = [I(f"s_add_u32 m0, {sM0X}, {(s % 3) * FX_SLOT}")]
        for i in range(2):
            r.append(I(f"buffer_load_dwordx4 v{vXd[i]}, {srd(SRD_X)}, {sK[s]} offen offset:{1024*i} lds", f"X{s}"))
        return r
    def dmaX2(p):
        r = [I(f"s_add_u32 m0, {sT1}, {FX2 + (p % 2) * 28672}")]
        if p: r += [I(f"v_add_u32 v{vX2d}, {sDX}, v{vX2d}")]
        for s in range(7):
            r += [I(f"buffer_load_dwordx4 v{vX2d}, {srd(SRD_X)}, {sK[s]} offen lds", f"X2_{p}")]
            if s < 6: r += [I("s_add_u32 m0, m0, 4096")]
        return r
    if CFG["XF"]:
        L += mksrd(SRD_X, 4, X_BYTES) + [I("s_bitcmp1_b32 s2, 3"), I("s_cbranch_scc1 L_xf")]
        L += dmaW(0) + direct(dmaX(0)) + [I("L_xf_back:")] + ST((4,))
        xf_extra = [I("L_xf:")] + direct(dmaX(0)) + dmaW(0) + [I("s_branch L_xf_back")]
    else:
        L += dmaW(0) + mksrd(SRD_X, 4, X_BYTES) + direct(dmaX(0)) + ST((4,)); xf_extra = []
    L += [I(f"v_and_b32 v24, 1, v{r4}"), I(f"v_lshrrev_b32 v25, 5, v0"),
          I("v_bfe_u32 v20, v0, 2, 2"), I("v_lshl_add_u32 v27, v25, 3, v20"),
          I("v_lshl_add_u32 v20, v20, 1, v24"),
          I(f"s_lshl_b32 s11, {sWV}, 1"), I("v_xor_b32 v20, s11, v20"), I("v_lshlrev_b32 v20, 5, v20"),
          I("v_lshl_add_u32 v20, v27, 8, v20"), I("v_lshl_add_u32 v20, v24, 13, v20"),
          I("v_and_b32 v27, 3, v0"), I(f"v_lshl_add_u32 v{vWr[0]}, v27, 3, v20"), I(f"v_xor_b32 v{vWr[1]}, 32, v{vWr[0]}"),
          I("v_bfe_u32 v20, v0, 1, 3"), I("v_xor_b32 v20, v20, v25"), I("v_lshlrev_b32 v20, 4, v20"),
          I("v_and_b32 v27, 31, v0"), I("v_lshl_add_u32 v20, v27, 7, v20"), I(f"v_add_u32 v{vXr[0]}, {FX_RING}, v20")]
    for j in range(1, 4): L += [I(f"v_xor_b32 v{vXr[j]}, {32*j}, v{vXr[0]}")]
    for s in range(1, 7): L += sk_next(s)
    L += dmaW(1) + dmaW(2) + direct(dmaX(1)) + ST((4,))
    L0 = L; L = []
    L += srd_a() + mksrd(SRD_M, 24, MISC_BYTES) + mksrd(SRD_D, 22, 256)
    L += [I(f"s_mov_b32 {sNL2E}, {hex(f2u(-math.log2(math.e)))}"),
          I(f"s_and_b32 s11, {sWV}, 1"), I("s_lshl_b32 s27, s11, 6"), I("v_xor_b32 v23, s27, v22"),
          I(f"s_lshl_b32 s10, {sWV}, 3"), I(f"s_add_u32 s10, s10, {sROW0}"), I("s_add_u32 s10, s10, 64"), I("s_mul_i32 s10, s10, 896"),
          I(f"v_add_u32 v{vX2d}, s10, v23"), I(f"s_lshl_b32 {sT1}, {sWV}, 10"),
          I(f"s_mul_i32 s10, {sODD}, {64*896}"), I(f"s_sub_u32 {sDX}, {32*896}, s10"),
          I(f"s_lshl_b32 s10, {sODD}, 7"), I(f"s_add_u32 s10, s10, {sROW0}"),
          I(f"s_lshr_b32 s10, s10, 4"), I(f"s_mul_i32 s10, s10, {NK}"), I(f"s_lshl_b32 s11, {sC}, 2"),
          I("s_add_u32 s10, s10, s11"), I(f"s_add_u32 s10, s10, {sWV}"), I(f"s_lshl_b32 {sAST}, s10, 10"),
          I(f"s_mul_i32 s10, {sODD}, {4*NK*1024}"), I(f"s_sub_u32 {sT2}, {2*NK*1024}, s10"),
          I("v_lshlrev_b32 v15, 4, v0"),
          I(f"s_mov_b32 s10, {NK*1024}"), I(f"v_mul_u32_u24 v20, s10, v24"), I(f"v_lshl_add_u32 v20, v25, 8, v20"),
          I(f"v_lshl_add_u32 v26, v{p16}, 4, v20")]
    L += [I(f"s_mul_i32 {sRT}, {sN2}, 147"), I(f"s_lshr_b32 {sRT}, {sRT}, 10"),
          I(f"s_mul_i32 s10, {sRT}, 7"), I(f"s_sub_u32 {sNT}, {sN2}, s10"),
          I("s_movk_i32 s27, 896"), I(f"v_mul_u32_u24 v20, s27, v{r8}"),
          I(f"v_and_b32 v21, 6, v{r8}"), I(f"v_xor_b32 v21, v21, v{p8}"),
          I(f"v_lshl_add_u32 v20, v21, 4, v20"),
          I(f"s_lshl_b32 s10, {sNT}, 7"), I(f"v_add_u32 v{v2d[0]}, s10, v20")]
    for i in range(1, 4): L += [I(f"v_add_u32 v{v2d[i]}, {8*896-1024}, v{v2d[i-1]}")]
    L += [I(f"s_mul_i32 {sM02}, {sWV}, {SL2*4096}"),
          I("v_lshrrev_b32 v20, 2, v0"), I("v_bfe_u32 v21, v0, 3, 2"), I(f"v_xor_b32 v21, {sWV}, v21"),
          I("v_lshlrev_b32 v21, 5, v21"), I("v_lshl_add_u32 v21, v20, 7, v21"),
          I("v_and_b32 v20, 3, v0"), I("v_lshl_add_u32 v21, v20, 3, v21"),
          I(f"v_add_u32 v{v2r[0]}, {sM02}, v21")]
    for t in range(1, 4): L += [I(f"v_xor_b32 v{v2r[t]}, {32*t}, v{v2r[0]}")]
    L += [I(f"v_mov_b32 v{vAst}, v26"), I(f"v_lshlrev_b32 v{vHi}, 10, v25"), I(f"v_lshl_add_u32 v175, v25, 30, v{v2d[3]}")]
    L += mksrd(SRD_W2, 16, WG_BYTES) + mksrd(SRD_WO, 8, WO_BYTES) + mksrd(SRD_O, 20, X_BYTES)
    sPAR, sR0 = "s12", "s13"
    sWb, sAb = ["s14", "s15"], ["s18", "s19"]
    L += [I(f"s_and_b32 {sPAR}, {sRT}, 1"), I(f"s_bfe_u32 s10, {sRT}, 0x10001"), I("s_mul_i32 s10, s10, 3"),
          I(f"s_add_u32 {sR0}, {sNT}, s10"), I(f"s_sub_u32 s10, {sR0}, 7"), I(f"s_cmp_ge_u32 {sR0}, 7"), I(f"s_cselect_b32 {sR0}, s10, {sR0}"),
          I(f"s_mul_i32 s10, {sWV}, {32*896}"), I(f"s_mul_i32 s11, {sPAR}, {128*896}"),
          I(f"s_add_u32 {sWb[0]}, s10, s11"), I(f"s_sub_u32 s10, s10, s11"), I(f"s_add_u32 {sWb[1]}, s10, {128*896}"),
          I(f"s_mul_i32 {sAO}, {sRT}, {5*NK*1024}"), I(f"s_lshl_b32 s10, {sWV}, 10"), I(f"s_add_u32 {sAO}, {sAO}, s10"),
          I(f"s_lshl_b32 s11, {sPAR}, 12"), I(f"s_add_u32 {sAb[0]}, {sAO}, s11"), I(f"s_sub_u32 s10, {sAO}, s11"), I(f"s_add_u32 {sAb[1]}, s10, 4096"),
          I(f"s_mul_i32 {sCW}, {sR0}, {256*896}"), I(f"s_lshl_b32 {sCA}, {sR0}, 13"),
          I(f"s_lshl_b32 s10, {sRB}, 3"), I(f"s_add_u32 s10, s10, {sWV}"), I(f"s_lshl_b32 s11, {sODD}, 2"),
          I(f"s_add_u32 {sCE}, s10, s11"), I(f"s_lshl_b32 {sCE}, {sCE}, 7"), I(f"s_add_u32 {sCE}, {sCE}, {FLAG_OFF}"),
          I(f"s_xor_b32 {sCL}, {sCE}, 512"), I(f"s_add_u32 {sCL}, {sCL}, {FL_LATE}"),
          I(f"s_lshl_b32 s10, {sRT}, 2"), I(f"s_add_u32 s10, s10, {sWV}"), I("s_lshl_b32 s10, s10, 7"), I(f"s_add_u32 {sN2}, s10, {FLAG_OFF}")]
    sFE = sN2
    U1 = Stream(blockify(L)); L = L0

    def readsW(u):
        return [I(f"ds_read_b64_tr_b16 {aq(wfr(2*u+e, ct)+2*h, 2)}, v{vWr[ct]} offset:{FW_RING + (u%FW_R)*16384 + e*4096 + h*1024}", f"r{u}")
                for e in range(2) for ct in range(2) for h in range(2)]
    def xb1(u, e, T): return XB + (4 + (u % 2) * 4 + e * 2 + T) * 4
    def readsX(u):
        s, e1 = divmod(u, 2)
        return [I(f"ds_read_b128 {vq(xb1(u, e, T))}, v{vXr[2*e1+e]} offset:{(s%3)*FX_SLOT + T*4096}", f"r{u}") for e in range(2) for T in range(2)]
    def mm1(u):
        return [mfma32(vq(acc(T, ct), 16), aq(wfr(2*u+e, ct)), vq(xb1(u, e, T)), u == 0 and e == 0)
                for e in range(2) for T in range(2) for ct in range(2)]
    SC = Sched(L, units=6, ds=2, scal=3)
    dm = Stream(every=1)
    for u in range(14):
        if u == 0: L += ST((4,))
        L += [Wait(vm=[f"W{u}", f"X{u//2}"], lgkm="all")] + (ST((4,)) if u < 3 else []) + [I("s_barrier")]
        L += ST((0, 1) if u in (0, 7) else (1,))
        if u == 0:
            L += readsX(0) + readsW(0) + dmaW(3) + direct(dmaX(2))
            continue
        if u + 3 < 14: dm.add(dmaW(u + 3))
        if u % 2 == 0 and u // 2 + 2 < 7: dm.add(dmaX(u // 2 + 2))
        if u == 11: dm.add(dmaX2(0) + dmaX2(1) + [I(f"buffer_load_dword v{vRdy}, off, {srd(SRD_D)}, 0 sc1", "rdy")])
        rd = Stream(readsX(u) + readsW(u))
        SC.run(mm1(u - 1), [dm, rd, U1], flush=[rd] + ([dm] if u < 11 or u == 13 else []) + ([U1] if u == 10 else []))
    NF2 = 84
    def rd2(n):
        T, k = divmod(n, 28); s, j = divmod(k, 4)
        return I(f"ds_read_b128 {vq(XB + (n % 12)*4)}, v{vXr[j]} offset:{(T % 2)*28672 + s*4096}", f"q{n//4}")
    ORD = [14, 15, 16, 17] + list(range(14))
    def slot2(q): return ORD.index(q) % SL2
    def w2(q, t): return ("a", (q * 4 + t) * 4) if q < 16 else ("v", W2V + ((q - 16) * 4 + t) * 4)
    def dmaW2(q):
        r = [I(f"s_add_u32 m0, {sM02}, {slot2(q) * 4096}")]
        if q == 14: r += [I(f"s_mul_i32 {sSOFF}, {sWV}, {4*28*896}")]
        elif q > 14: r += [I(f"s_add_u32 {sSOFF}, {sSOFF}, {28*896}")]
        else:
            if q: r += [I(f"s_add_u32 {sCW}, {sCW}, {256*896}"), Block([I(f"s_cmp_eq_u32 {sCW}, {7*256*896}"), I(f"s_cselect_b32 {sCW}, 0, {sCW}")])]
            r += [I(f"s_add_u32 {sSOFF}, {sCW}, {sWb[q >= 7]}")]
        for i in range(4):
            r.append(I(f"buffer_load_dwordx4 v{175 if q >= 14 and i == 3 else v2d[i]}, {srd(SRD_W2 if q < 14 else SRD_WO)}, {sSOFF} offen offset:{1024*i} lds", f"V{q}"))
        return r
    def rdW2(q):
        r = []
        for t in range(4):
            k, n = w2(q, t)
            for h in range(2):
                r.append(I(f"ds_read_b64_tr_b16 {k}[{n+2*h}:{n+2*h+1}], v{v2r[t]} offset:{slot2(q)*4096 + h*(2048 if q >= 14 else 1024)}", f"w{q}"))
        return r
    L += [Wait(vm="X2_0", lgkm="all"), I("s_barrier")] + ST()
    L += [I(f"v_add_u32 v{vXr[j]}, {FX2 - FX_RING}, v{vXr[j]}") for j in range(4)]
    rd = Stream([rd2(n) for n in range(8)])
    SC.run(mm1(13), [rd], flush=[rd])
    SC.ds = 2
    def epi(T):
        r = []
        for ct in range(2):
            a0 = acc(T, ct)
            for pr in range(4):
                ga = a0 + 2*pr; gb = ga + 1; ua = ga + 8; ub = ua + 1
                ta, tb = vT[2*(pr&1)], vT[2*(pr&1)+1]
                r += [I(f"v_mul_f32 v{ta}, {sNL2E}, v{ga}"), I(f"v_mul_f32 v{tb}, {sNL2E}, v{gb}"),
                      I(f"v_exp_f32 v{ta}, v{ta}"), I(f"v_exp_f32 v{tb}, v{tb}"),
                      I(f"v_mul_f32 v{ga}, v{ga}, v{ua}"), I(f"v_mul_f32 v{gb}, v{gb}, v{ub}"),
                      I(f"v_add_f32 v{ta}, 1.0, v{ta}"), I(f"v_add_f32 v{tb}, 1.0, v{tb}"),
                      I(f"v_rcp_f32 v{ta}, v{ta}"), I(f"v_rcp_f32 v{tb}, v{tb}"),
                      I(f"v_mul_f32 v{ga}, v{ga}, v{ta}"), I(f"v_mul_f32 v{gb}, v{gb}, v{tb}"),
                      I(f"v_cvt_pk_bf16_f32 v{a0 + pr}, v{ga}, v{gb}")]
            r += [I(f"buffer_store_dwordx4 {vq(a0)}, v{vAst}, {srd(SRD_A)}, {sAST} offen offset:{512*ct} sc1", f"st{T}_{ct}")]
        if T < 4: r += [I(f"s_add_u32 {sAST}, {sAST}, {sT2}")]
        return r
    for_t = {}
    bk = Stream(ooo=10)
    def add_epi(T):
        e = epi(T)
        for x in e: for_t[id(x)] = T
        bk.add(e)
    SC.units = CFG["U2"]; SC.td = CFG["TD"]
    for T in range(2): add_epi(T)
    bk.hold = SC.g + 2
    side = Stream(every=CFG["EV2"])
    for q in (14, 15, 16, 17, 0, 1): side.add(dmaW2(q))
    late_side = []
    for k, q in enumerate((14, 15, 16, 17)):
        late_side += [Wait(vm=f"V{q}")] + rdW2(q)
        if k: late_side += [Wait(lgkm=f"w{q-1}")] + dmaW2(1 + k)
    late_side += [Wait(lgkm="w17")] + dmaW2(5)
    late_side += [I(f"v_add_u32 v{v2r[t]}, v{vHi}, v{v2r[t]}") for t in range(4)]
    state = {"pub": None}
    def seen(x):
        if x.tag == "st2_1": state["pub"] = SC.g + CFG["PUBD"]
    for b in range(21):
        if b == 5: L += [Wait(vm="X2_1"), I("s_barrier")]
        if b == 7:
            print("side at refill:", len(side))
            SC.flush(side); L += [I("s_barrier")]; side.add(dmaX2(2) + late_side); side.every = CFG['EV3']
        if b == 12: L += [Wait(vm="X2_2"), I("s_barrier")]
        L += [Wait(lgkm=f"q{b}")]
        reads = Stream([rd2(n) for n in range(4 * (b + 2), min(4 * (b + 3), NF2))], rate=0.5)
        reads.credit = 1.0
        for n in range(4 * b, 4 * b + 4):
            T2, k = divmod(n, 28); T = 2 + T2
            if k in (0, 14): L += ST((3,))
            if k == 0 and T == 4: print("side at last tile:", len(side))
            if k == 0 and T >= NSL:
                while any(for_t.get(id(x)) == T - NSL for x in bk.q): L.append(bk.q.pop(0))
            for ct in range(2):
                L.append(mfma32(vq(acc(T, ct), 16), aq(wfr(k, ct)), vq(XB + (n % 12) * 4), k == 0))
                SC.gap([reads, side, bk])
                if state["pub"] is None and any(x.tag == "st2_1" for x in L): state["pub"] = SC.g + CFG["PUBD"]
                if state["pub"] == SC.g:
                    L += publish("h", vRdy, vOne, sCE, "st2_1") + ST(); state["pub"] = "done"
            if T == 4 and k == 1:
                side.every = 2; SC.ds = 2
                side.add([Wait(vm="V0")] + rdW2(0))
                for q in range(1, 6):
                    side.add([Wait(vm=f"V{q}")] + rdW2(q) + [Wait(lgkm=f"w{q-1}")] + dmaW2(q + 5))
                side.add([Wait(lgkm="w5")] + dmaW2(11))
            if k == 27:
                if T == 4: bk.add([I("s_nop 7")])
                elif len(bk) < 14: SC.flush(bk); bk.hold = SC.g + 3
                add_epi(T)
        SC.flush(reads)
    print("side left:", len(side), "backlog after pass 2:", len(bk), "pub", state["pub"], SC.g)
    assert state["pub"] == "done"
    L += ST((0, 3))
    vF = 6
    L += [I(f"buffer_load_dword v{vF}, off, {srd(SRD_M)}, {sFE} sc1", "ef")]
    bq = fix_trans(pkify(bk.q))
    sq = direct(side.q); side.q = []
    ratio = len(sq) / max(1, len(bq) - 10)
    ac = 0.0
    for k, x in enumerate(bq):
        L.append(x)
        ac += ratio
        while ac >= 1.0 and sq:
            y = sq.pop(0); L.append(y); ac -= 1.0
            if y.kind == "salu" and y.op.startswith("s_cmp"): L.append(sq.pop(0))
    L += sq
    L += ST((0, 3))
    SC = Sched(L)
    vAl, vRw, vRr, vOut, vOf, vOu2 = 15, [1, 2, 3], 4, 5, 14, 7
    vS = [8, 9, 10, 11, 12]
    AC2 = 16
    ABUF = [216, 236, 96, 116, 136, 156]
    PF = CFG['PF']
    def ab(q, T): return ABUF[q % 6] + T * 4
    def ldA(q):
        if q < 14:
            r = []
            if q: r += [I(f"s_add_u32 {sCA}, {sCA}, 8192"), Block([I(f"s_cmp_eq_u32 {sCA}, {7*8192}"), I(f"s_cselect_b32 {sCA}, 0, {sCA}")])]
            r += [I(f"s_add_u32 {sT0}, {sCA}, {sAb[q >= 7]}")]
        elif q == 14:
            r = [I(f"s_mul_i32 {sCA}, {sWV}, 3072"), I(f"s_add_u32 {sCA}, {sCA}, {sAO}"), I(f"s_add_u32 {sCA}, {sCA}, {56*1024}"),
                 I(f"s_mov_b32 {sT0}, {sCA}")]
        else: r = [I(f"s_add_u32 {sT0}, {sCA}, {(q-14)*1024}")]
        for T in range(5):
            r.append(I(f"buffer_load_dwordx4 {vq(ab(q, T))}, v{vAl}, {srd(SRD_A)}, {sT0} offen sc1", f"A{q}"))
            if T < 4: r.append(I(f"s_add_u32 {sT0}, {sT0}, {NK*1024}"))
        return r
    def mm2(q):
        return [mfma(vq(AC2 + (T*4+t)*4), rq(w2(q, t)), vq(ab(q, T)), q == 0) for T in range(5) for t in range(4)]
    def check(tag, need, name):
        return [Wait(vm=tag), I(f"v_cmp_gt_u32 vcc, {need}, v{vF}")] + spin_init() + [I(f"s_cbranch_vccnz L_poll_{name}"), I(f"L_got_{name}:")]
    def poll(name, need, ld):
        return [I(f"L_poll_{name}:")] + spin_step() + [ld, I("s_waitcnt vmcnt(0)"), I(f"v_cmp_gt_u32 vcc, {need}, v{vF}"), I("s_nop 0"),
                I(f"s_cbranch_vccnz L_poll_{name}"), I(f"s_branch L_got_{name}")]
    L += check("ef", 7, "e") + ST((0, 2))
    L += direct(ldA(0) + ldA(1))
    L += [Wait(vm="st4_1"), I("s_mov_b64 exec, 1"), I(f"buffer_atomic_add v{vOne}, off, {srd(SRD_M)}, {sCL} sc1", "pub"), I("s_mov_b64 exec, -1")] + ST()
    L += [I(f"s_add_u32 {sFE}, {sFE}, {FL_LATE}")]
    for q in range(2, PF): L += direct(ldA(q))
    L += direct([Wait(vm="V7")] + rdW2(6) + rdW2(7))
    setup = [I(f"s_mul_i32 s10, {sRT}, 80"), I("s_add_u32 s11, s10, 79"), I("s_lshr_b32 s10, s10, 7"), I("s_lshr_b32 s11, s11, 7"),
             I("s_min_u32 s11, s11, 15"), I("s_lshl_b32 s10, s10, 9"), I("s_lshl_b32 s11, s11, 9"),
             I(f"v_mov_b32 v{vOf}, s11"), I(f"v_writelane_b32 v{vOf}, s10, 0"),
             I(f"s_lshl_b32 s27, {sWV}, 7"), I(f"s_add_u32 s27, s27, {FLAG_OFF + FL_O}"),
             I(f"s_mul_i32 s10, {sWV}, 15360"), I(f"s_add_u32 s10, s10, {RED}"), I(f"v_add_u32 v{vRr}, s10, v{vAl}")]
    for t in range(1, 4):
        setup += [I(f"s_xor_b32 s10, {sWV}, {t}"), I("s_mul_i32 s10, s10, 15360"), I(f"s_add_u32 s10, s10, {RED + (t-1)*5120}"),
                  I(f"v_add_u32 v{vRw[t-1]}, s10, v{vAl}")]
    setup += [I(f"s_mul_i32 s10, {sRT}, {80*896}"), I(f"s_lshl_b32 s11, {sNT}, 7"), I("s_add_u32 s10, s10, s11"),
              I(f"s_lshl_b32 s11, {sWV}, 5"), I("s_add_u32 s10, s10, s11"),
              I("v_and_b32 v13, 15, v0"), I("s_movk_i32 s11, 896"), I(f"v_mul_u32_u24 v{vOut}, s11, v13"), I(f"v_lshrrev_b32 v{vS[0]}, 4, v0"),
              I(f"v_lshl_add_u32 v{vOut}, v{vS[0]}, 3, v{vOut}"), I(f"v_add_u32 v{vOut}, s10, v{vOut}"),
              I("v_lshlrev_b32 v13, 2, v13"),
              I(f"v_and_b32 v{vS[0]}, 1, v{vS[0]}"), I(f"s_movk_i32 s11, {16*896-8}"), I(f"v_mad_u32_u24 v{vOu2}, v{vS[0]}, s11, v{vOut}"),
              I(f"s_lshl_b32 s26, {sWV}, 13"), I(f"s_mul_i32 s11, {sRT}, 320"), I("s_add_u32 s26, s26, s11")]
    ld_late = I(f"buffer_load_dword v{vF}, off, {srd(SRD_M)}, {sFE} sc1", "lf")
    ld_o = I(f"buffer_load_dword v{vF}, v{vOf}, {srd(SRD_M)}, s27 offen sc1", "of")
    for q in range(16):
        G, R, U = Stream(every=3), Stream(), Stream()
        if q == 7 - PF: L += check("lf", 7, "l") + ST()
        if q == 14 - PF: L += check("of", 4, "o") + ST()
        if q == 5 - PF: G.add([ld_late])
        if q == 12 - PF: G.add([ld_o])
        if CFG["OFAST"] and q + PF >= 14:
            if q + PF == 14: G.add(ldA(14) + ldA(15) + ldA(16)); G.every = 1
            if q + PF == 15: G.add(ldA(17)); G.every = 1
        elif q + PF < 18: G.add(ldA(q + PF))
        if q < 2: G.add([Wait(lgkm=f"w{6 + q}")] + dmaW2(12 + q)); G.every = 2
        if 2 <= q < 8: R.add([Wait(vm=f"V{q + 6}")] + rdW2(q + 6))
        if q == 5: U.add(setup[:20])
        if q == 6: U.add(setup[20:36])
        if q == 7: U.add(setup[36:])
        if q + PF == (16 if CFG["OFAST"] else 17):
            G.every = 2
            G.add([I(f"buffer_load_dword v{vS[T]}, v13, {srd(SRD_M)}, s26 offen offset:{64*T} sc1", "S") for T in range(5)])
        if q == 14: L += [I("s_barrier")]
        L += [Wait(vm=f"A{q}", lgkm=f"w{q}")]
        if q < 13: L += ST((2,))
        SC.run(mm2(q), [G, R, U], flush=[G, R, U])
    L += ST()
    a16, a17 = mm2(16), mm2(17)
    order = [(T, t) for t in (1, 2, 3, 0) for T in range(5)]
    main = []
    for (T, t) in order: main += [a16[T*4+t], a17[T*4+t]]
    L += [Wait(vm="A17")]
    pend = []
    for k, m in enumerate(main):
        L.append(m)
        if k % 2 == 1 and order[k // 2][1] != 0:
            T, t = order[k // 2]
            pend.append((k + 9, I(f"ds_write_b128 v{vRw[t-1]}, {vq(AC2 + (T*4+t)*4)} offset:{T*1024}", "rw")))
        while pend and pend[0][0] <= k:
            L.append(pend.pop(0)[1])
    L += [x for _, x in pend]
    L += [Wait(lgkm="all"), I("s_barrier")] + ST()
    RB = 96
    for T in range(5):
        for sl in range(3):
            L.append(I(f"ds_read_b128 {vq(RB + (sl*5+T)*4)}, v{vRr} offset:{sl*5120 + T*1024}", f"rr{T}"))
    if CFG["FULL"]:
        L += [I(f"v_and_b32 v{vRw[1]}, 15, v0"), I(f"v_lshrrev_b32 v{vRw[2]}, 5, v0"), I(f"s_lshl_b32 s10, {sWV}, 1"),
              I(f"v_add_u32 v{vRw[2]}, s10, v{vRw[2]}"), I(f"v_and_b32 v{vOu2}, 7, v0"), I(f"v_xor_b32 v{vRw[2]}, v{vRw[2]}, v{vOu2}"),
              I(f"v_lshlrev_b32 v{vRw[2]}, 4, v{vRw[2]}"), I(f"v_lshl_add_u32 v{vRw[2]}, v{vRw[1]}, 7, v{vRw[2]}"),
              I(f"v_bfe_u32 v{vRw[1]}, v0, 4, 1"),
              I(f"s_mul_i32 s10, {sWV}, 20"), I(f"v_lshrrev_b32 v{vOut}, 3, v0"), I(f"v_add_u32 v{vOut}, s10, v{vOut}"),
              I(f"v_xor_b32 v{vRw[0]}, v{vOut}, v{vOu2}"), I(f"v_and_b32 v{vRw[0]}, 7, v{vRw[0]}"), I(f"v_lshlrev_b32 v{vRw[0]}, 4, v{vRw[0]}"),
              I(f"v_lshl_add_u32 v{vRw[0]}, v{vOut}, 7, v{vRw[0]}"),
              I("s_movk_i32 s11, 896"), I(f"v_mul_u32_u24 v{vOut}, s11, v{vOut}"), I(f"v_lshl_add_u32 v{vOut}, v{vOu2}, 4, v{vOut}"),
              I(f"s_mul_i32 s10, {sRT}, {80*896}"), I(f"s_lshl_b32 s11, {sNT}, 7"), I("s_add_u32 s10, s10, s11"), I(f"v_add_u32 v{vOut}, s10, v{vOut}"),
              I(f"v_lshl_add_u32 v{vOu2}, v{vRw[1]}, 3, v{vRw[2]}")]
    L += [Wait(vm="S")]
    osc = " sc1" if CFG["OSC"] else ""
    for T in range(5):
        a = AC2 + T*16
        d = AC2 + (T & ~1)*16 + 4 + 2*(T & 1)
        F = []
        for r in range(4): F.append(I(f"v_add_f32 v{RB + (5+T)*4 + r}, v{RB + (5+T)*4 + r}, v{RB + (10+T)*4 + r}"))
        for r in range(4): F.append(I(f"v_add_f32 v{a+r}, v{a+r}, v{RB + T*4 + r}"))
        for r in range(4): F.append(I(f"v_add_f32 v{a+r}, v{a+r}, v{RB + (5+T)*4 + r}"))
        for r in range(4): F.append(I(f"v_mul_f32 v{a+r}, v{a+r}, v{vS[T]}"))
        L += [Wait(lgkm=f"rr{T}")] + pkify(F)
        L += [I(f"v_cvt_pk_bf16_f32 v{d}, v{a}, v{a+1}"), I(f"v_cvt_pk_bf16_f32 v{d+1}, v{a+2}, v{a+3}")]
        if CFG["FULL"]:
            L += [I(f"ds_write_b64 v{vOu2}, v[{d}:{d+1}] offset:{T*2048}", "fw")]
        elif T & 1:
            q4 = d - 2
            L += [I(f"s_mov_b32 s10, {(T-1)*16*896}"), I("s_nop 0"),
                  I(f"v_permlane16_swap_b32 v{q4}, v{q4+2}"), I(f"v_permlane16_swap_b32 v{q4+1}, v{q4+3}"),
                  I(f"buffer_store_dwordx4 {vq(q4)}, v{vOu2}, {srd(SRD_O)}, s10 offen" + osc, "out")]
        elif T == 4:
            L += [I(f"s_mov_b32 s10, {T*16*896}"), I(f"buffer_store_dwordx2 v[{d}:{d+1}], v{vOut}, {srd(SRD_O)}, s10 offen" + osc, "out")]
    if CFG["FULL"]:
        L += [Wait(lgkm="all"), I("s_barrier")]
        for p in range(3): L += [I(f"ds_read_b128 {vq(RB + 4*p)}, v{vRw[0]} offset:{p*1024}", f"fr{p}")]
        L += [I(f"s_mov_b32 s10, {8*896}"), I(f"s_mov_b32 s11, {16*896}")]
        for p in range(3):
            L += [Wait(lgkm=f"fr{p}")]
            if p == 2: L += [I("s_mov_b64 exec, 0xffffffff")]
            L += [I(f"buffer_store_dwordx4 {vq(RB + 4*p)}, v{vOut}, {srd(SRD_O)}, {('0', 's10', 's11')[p]} offen" + osc, "out")]
        L += [I("s_mov_b64 exec, -1")]
    L += ST.dump(65536, 16)
    if CFG["PAD"]:
        L += [I("L_pad:"), I("s_memrealtime s[82:83]"), I("s_waitcnt lgkmcnt(0)"), I("s_sub_u32 s82, s82, s80"),
              I(f"s_cmp_lt_u32 s82, {CFG['PAD']}"), I("s_cbranch_scc1 L_pad")]
    extra = xf_extra + slow("h", vRdy) + poll("e", 7, I(f"buffer_load_dword v{vF}, off, {srd(SRD_M)}, {sFE} sc1")) + \
            poll("l", 7, I(ld_late.text)) + poll("o", 4, I(ld_o.text))
    return L, extra

QW_RING, QW_SLOT = 0, 24576
QX_RING, QXA_SLOT, QXB, QXB_SLOT = 98304, 12288, 24576, 8192
QG = QX_RING + QXB + 2 * QXB_SLOT
assert QG + 4096 <= 163840

def qkv():
    ST = Stamps([40, 41, 42, 43, 44, 45, 46, 47, 48, 49, 50, 51], 1)
    vWd = [1, 2]; vXd = [3, 4]; vWr = [[5, 6], [7, 8]]; vXr = [9, 10]
    vQ1b, vQA, vQB_, vQH, vQ1 = 11, 12, 13, 14, [15, 16]
    vRdy = 47
    K0 = 48; K1 = K0 + 36; V0 = K1 + 36; V1 = V0 + 36; Q0 = V1 + 36; Q1 = Q0 + 32
    assert Q1 + 32 == 256
    N = CFG["LAG"]
    vXb = [27, 28]
    def wf(u, sec, t): return (u % (N + 2)) * 24 + (sec * 2 + t) * 4
    def xf(u, T): return 168 + (u % 2) * 20 + T * 4 if T < 5 else 208 + (u % 2) * 16 + (T - 5) * 4
    r4, p16, r8, p8 = 17, 18, 19, 20
    L = [I("L_qkv:")] + ST(True) + [I("s_lshl_b32 s10, s10, 1"), I(f"s_lshr_b32 {sJ}, {CFG['JMAP']}, s10"), I(f"s_and_b32 {sJ}, {sJ}, 3"),
         I(f"s_lshl_b32 {sQB}, s27, 3"), I(f"s_add_u32 {sQB}, {sQB}, s11")]
    L += rot_small(sQB, None)
    L += [I(f"v_lshrrev_b32 v{r4}, 4, v0"), I(f"v_and_b32 v{p16}, 15, v0"),
          I(f"v_lshrrev_b32 v{r8}, 3, v0"), I(f"v_and_b32 v{p8}, 7, v0"),
          I(f"s_mul_i32 s11, {sJ}, 224"), I(f"s_cmp_eq_u32 {sJ}, 3"), I("s_cselect_b32 s11, 640, s11"),
          I(f"s_mul_i32 s26, {sWV}, {8*2688}"), I("s_add_u32 s11, s11, s26"),
          I("s_movk_i32 s27, 2688"), I(f"v_mul_u32_u24 v21, s27, v{r4}"), I("v_add_u32 v21, s11, v21"),
          I(f"s_and_b32 s26, {sWV}, 1"), I("s_lshl_b32 s26, s26, 3"),
          I(f"v_lshlrev_b32 v22, 1, v{r4}"), I(f"v_sub_u32 v22, v{p16}, v22"), I("v_xor_b32 v22, s26, v22"),
          I("v_and_b32 v22, 15, v22"),
          I(f"v_lshl_add_u32 v{vWd[0]}, v22, 4, v21"),
          I(f"v_add_u32 v{vWd[1]}, {4*2688-1024}, v{vWd[0]}"),
          I(f"s_lshl_b32 {sM0W}, {sWV}, 11"),
          I("s_movk_i32 s27, 896"), I(f"v_mul_u32_u24 v21, s27, v{r8}"),
          I(f"v_xor_b32 v22, v{r4}, v{p8}"), I("v_lshl_add_u32 v21, v22, 4, v21"),
          I(f"s_lshl_b32 s26, {sWV}, 2"), I("s_lshr_b32 s26, 0x8630, s26"), I("s_and_b32 s26, s26, 15"),
          I("s_and_b32 s27, s26, 1"), I("s_lshl_b32 s27, s27, 6"),
          I(f"v_xor_b32 v{vXd[0]}, s27, v21"), I(f"v_xor_b32 v{vXd[1]}, 64, v{vXd[0]}"),
          I(f"v_mov_b32 v{vXb[0]}, v21"),
          I(f"s_lshl_b32 {sM0X}, s26, 10"), I(f"s_add_u32 {sM0X}, {sM0X}, {QX_RING}"),
          I("s_lshl_b32 s26, s26, 3"), I(f"s_lshl_b32 s27, {sQB}, 7"), I("s_add_u32 s26, s26, s27"),
          I("s_sub_u32 s26, s26, 16")]
    def xrow(i):
        r = [I(f"s_add_u32 s27, s26, {8*i}"), I(f"s_mul_i32 {sXROW[i]}, s27, 896")]
        if i < 2: r += [I("s_cmp_lt_i32 s27, 0"), I(f"s_cselect_b32 {sXROW[i]}, {OOB}, {sXROW[i]}")]
        if i == 2:
            r += [I(f"s_add_u32 {sXROW[3]}, {sM0X}, 2048"), I(f"s_lshl_b32 s27, {sWV}, 10"), I(f"s_add_u32 s27, s27, {QX_RING + 8192}"),
                  I(f"s_cmp_ge_u32 {sWV}, 2"), I(f"s_cselect_b32 {sXROW[i]}, {OOB}, {sXROW[i]}"), I(f"s_cselect_b32 {sXROW[3]}, s27, {sXROW[3]}")]
        return r
    def dmaW(u):
        s, e = divmod(u, 2)
        r = []
        for sec in range(3):
            r += [I(f"s_add_u32 m0, {sM0W}, {QW_RING + (u % 4) * QW_SLOT + sec * 8192}")]
            if sec == 0:
                r += [I(f"s_mul_i32 {sSOFF}, {sK[s]}, 1344")]
                if e: r += [I(f"s_add_u32 {sSOFF}, {sSOFF}, 86016")]
            else:
                r += [I(f"s_add_u32 {sSOFF}, {sSOFF}, 896")]
            for i in range(2):
                r.append(I(f"buffer_load_dwordx4 v{vWd[i]}, {srd(SRD_W)}, {sSOFF} offen offset:{1024*i} lds", f"W{u}"))
        return r
    def dmaX(s):
        r = []
        for i in range(3):
            r += [I(f"s_add_u32 m0, {sM0X if i < 2 else sXROW[3]}, {(s % 2) * QXA_SLOT + (i % 2) * 1024}"), I(f"s_add_u32 {sT0}, {sXROW[i]}, {sK[s]}"),
                  I(f"buffer_load_dwordx4 v{vXd[i % 2]}, {srd(SRD_X)}, {sT0} offen lds", f"X{s}")]
        return r
    def dmaXB(s):
        return [I(f"s_add_u32 m0, {sT3}, {(s % 2) * QXB_SLOT}"), I(f"s_add_u32 {sT0}, {sXROW[4]}, {sK[s]}")] + \
               [I(f"buffer_load_dwordx4 v{vXb[i]}, {srd(SRD_X)}, {sT0} offen offset:{1024*i} lds", f"Y{s}") for i in range(2)]
    for i in range(3): L += xrow(i)
    L += [I(f"s_lshl_b32 s26, {sWV}, 7"), I("v_lshl_add_u32 v23, v0, 1, s26")]
    L += [Wait(lgkm="all")]
    L += mksrd(SRD_W, 6, WQKV_BYTES) + dmaW(0)
    L += mksrd(SRD_X, 4, X_BYTES) + dmaX(0) + mksrd(SRD_M, 18, 896)
    L += [I(f"buffer_load_ushort v24, v23, {srd(SRD_M)}, 0 offen", "gw"),
          I(f"buffer_load_ushort v25, v23, {srd(SRD_M)}, 0 offen offset:512", "gw")]
    L += [I("v_bfe_u32 v21, v0, 2, 2"), I(f"v_lshl_add_u32 v22, v{r4}, 3, v21"),
          I(f"v_and_b32 v26, 1, v{r4}"), I("v_lshl_add_u32 v21, v26, 2, v21"),
          I("v_and_b32 v26, 3, v0"), I("v_lshlrev_b32 v29, 3, v26"), I("v_lshl_add_u32 v21, v21, 5, v29"),
          I(f"s_mul_i32 s26, {sWV}, 56"), I(f"s_cmp_eq_u32 {sJ}, 3"), I("s_cselect_b32 s27, 32, 0"),
          I("s_add_u32 s26, s26, s27"), I("v_add_u32 v21, s26, v21"),
          I("v_and_b32 v29, 0xff, v21"), I(f"v_lshl_add_u32 v{vWr[0][0]}, v22, 8, v29"),
          I("v_add_u32 v21, 32, v21"), I("v_and_b32 v29, 0xff, v21"), I(f"v_lshl_add_u32 v{vWr[0][1]}, v22, 8, v29"),
          I(f"v_add_u32 v{vWr[1][0]}, {2*QW_SLOT}, v{vWr[0][0]}"), I(f"v_add_u32 v{vWr[1][1]}, {2*QW_SLOT}, v{vWr[0][1]}"),
          I("v_cmp_eq_u32 vcc, 3, v26"),
          I(f"v_lshlrev_b32 v29, 3, v22"), I(f"v_add_u32 v29, {QG}, v29"),
          I(f"v_cndmask_b32 v{vQ1b}, v{vWr[0][1]}, v29, vcc"),
          I(f"v_mov_b32 v29, 1"), I(f"v_cndmask_b32 v{vQA}, v29, 0, vcc"),
          I(f"v_cndmask_b32 v{vQB_}, 0, v29, vcc"),
          I(f"v_mov_b32 v29, 0x400"), I(f"v_cndmask_b32 v{vQH}, v29, 32, vcc"),
          I(f"v_lshrrev_b32 v21, 1, v{p16}"), I(f"v_xor_b32 v21, v21, v{r4}"), I("v_lshlrev_b32 v21, 4, v21"),
          I(f"v_lshl_add_u32 v21, v{p16}, 7, v21"),
          I(f"v_add_u32 v{vXr[0]}, {QX_RING}, v21"), I(f"v_xor_b32 v{vXr[1]}, 64, v{vXr[0]}")]
    for s in range(1, 7): L += sk_next(s)
    L += dmaW(1)
    L += srd_a() + mksrd(SRD_D, 22, 256)
    L += [I(f"v_xor_b32 v{vXb[1]}, 64, v{vXb[0]}"), I(f"v_add_u32 v{vXb[1]}, {8*896-1024}, v{vXb[1]}"),
          I(f"s_lshl_b32 s26, {sQB}, 7"), I(f"s_lshl_b32 s27, {sWV}, 4"), I("s_add_u32 s26, s26, s27"), I("s_add_u32 s26, s26, 64"),
          I(f"s_mul_i32 {sXROW[4]}, s26, 896"), I(f"s_lshl_b32 {sT3}, {sWV}, 11"), I(f"s_add_u32 {sT3}, {sT3}, {QX_RING + QXB}")]
    L += [I("v_lshlrev_b32 v23, 2, v23"), I(f"v_add_u32 v23, {QG}, v23"),
          Wait(vm="gw"),
          I("ds_write_b16 v23, v24"), I("ds_write_b16 v23, v25 offset:2048")]
    def reads(u):
        s, e = divmod(u, 2)
        sl = u % 4
        a = [I(f"s_lshl_b32 {sT1}, {sK[s]}, 2")]
        if e: a += [I(f"s_add_u32 {sT1}, {sT1}, 256")]
        G = [a, [I(f"s_mov_b32 {sT2}, {sl * QW_SLOT}"), I(f"v_mad_u32_u24 v{vQ1[0]}, v{vQB_}, {sT1}, v{vQ1b}")],
             [I(f"v_mad_u32_u24 v{vQ1[0]}, v{vQA}, {sT2}, v{vQ1[0]}"), I(f"v_add_u32 v{vQ1[1]}, v{vQH}, v{vQ1[0]}")]]
        for T in range(5):
            G.append([I(f"ds_read_b128 {aq(xf(u, T))}, v{vXr[e]} offset:{(s % 2) * QXA_SLOT + T * 2048}", f"r{u}")])
        for sec in (1, 2, 0):
            for t in range(2):
                for h in range(2):
                    if sec == 0 and t == 1:
                        G.append([I(f"ds_read_b64_tr_b16 {aq(wf(u,sec,t)+2*h, 2)}, v{vQ1[h]}", f"r{u}")])
                    else:
                        G.append([I(f"ds_read_b64_tr_b16 {aq(wf(u,sec,t)+2*h, 2)}, v{vWr[sl//2][t]} offset:{(sl%2)*QW_SLOT + sec*8192 + h*1024}", f"r{u}")])
        return G
    def readsB(u):
        s, e = divmod(u, 2)
        return [I(f"ds_read_b128 {aq(xf(u, T))}, v{vXr[e]} offset:{QXB + (s % 2) * QXB_SLOT + (T - 5) * 2048}", f"rb{u}") for T in range(5, 9)]
    def mm(u, tiles):
        r = []
        for T in tiles:
            if T: r += [mfma(vq(Q0 + 4*(T-1)), aq(wf(u,0,0)), aq(xf(u,T)), u == 0), mfma(vq(Q1 + 4*(T-1)), aq(wf(u,0,1)), aq(xf(u,T)), u == 0)]
        for T in tiles:
            r += [mfma(vq(K0 + 4*T), aq(wf(u,1,0)), aq(xf(u,T)), u == 0), mfma(vq(K1 + 4*T), aq(wf(u,1,1)), aq(xf(u,T)), u == 0)]
        for T in tiles:
            r += [mfma(vq(V0 + 4*T), aq(xf(u,T)), aq(wf(u,2,0)), u == 0), mfma(vq(V1 + 4*T), aq(xf(u,T)), aq(wf(u,2,1)), u == 0)]
        return r
    i16, g4 = 18, 17
    sel = [21, 22, 23, 24]; vMq = 25; vSt = 26
    C = [I(f"v_and_b32 v38, 1, v{i16}"), I(f"v_cmp_eq_u32 {mODD}, 1, v38"),
         I(f"v_lshl_add_u32 v38, v{g4}, 2, v38"),
         I(f"v_cmp_le_u32 {mC0}, v38, v{i16}"), I("v_add_u32 v38, 2, v38"), I(f"v_cmp_le_u32 {mC1}, v38, v{i16}"),
         I(f"v_cmp_eq_u32 {mG3}, 3, v{g4}"),
         I("v_mov_b32 v39, 0x0c0c0100"), I("v_mov_b32 v40, 0x01000c0c"),
         I(f"v_cndmask_b32 v39, v39, v40, {mODD}"),
         I("v_mov_b32 v41, 0x0c0c0302"), I("v_mov_b32 v40, 0x03020c0c"),
         I(f"v_cndmask_b32 v41, v41, v40, {mODD}"),
         I("v_mov_b32 v40, 0x0c0c0c0c"),
         I(f"v_cndmask_b32 v{sel[0]}, v39, v40, {mC0}"), I(f"v_cndmask_b32 v{sel[1]}, v41, v40, {mC1}"),
         I(f"v_cndmask_b32 v{sel[2]}, v40, v39, {mC0}"), I(f"v_cndmask_b32 v{sel[3]}, v40, v41, {mC1}"),
         I(f"v_cndmask_b32 v{vMq}, -1, 0, {mG3}"),
         I(f"v_lshlrev_b32 v{vSt}, 4, v0"), I("v_lshlrev_b32 v44, 2, v0"),
         Block([I(f"s_cmp_eq_u32 {sQB}, 0"), I(f"s_cselect_b64 {mC0F}, {mC0}, -1"), I(f"s_cselect_b64 {mC1F}, {mC1}, -1")]),
         I(f"s_mov_b32 {sSCL}, {hex(f2u(28 ** -0.5 * math.log2(math.e)))}"),
         I(f"s_mov_b32 {sNL2E}, {hex(f2u(-math.log2(math.e)))}"),
         I(f"s_mul_i32 s26, {sQB}, {8*NK}"), I(f"s_lshl_b32 s27, {sJ}, 2"), I("s_add_u32 s26, s26, s27"),
         I(f"s_add_u32 s26, s26, {sWV}"), I("s_add_u32 s26, s26, 56"), I(f"s_lshl_b32 {sAST}, s26, 10"),
         I(f"s_lshl_b32 s26, {sJ}, 13"), I(f"s_lshl_b32 s27, {sQB}, 9"), I("s_add_u32 s26, s26, s27"),
         Block([I(f"s_cmp_eq_u32 {sWV}, 0"), I(f"s_cselect_b32 s26, s26, {OOB}")])]
    C += mksrd(SRD_M, 24, MISC_BYTES)
    VB0, VB1 = K1, V0
    TB = [V1, V1 + 8, Q1, Q1 + 8]
    def cvt(d, a): return I(f"v_cvt_pk_bf16_f32 v{d}, v{a}, v{a+1}")
    def sw(n, a, b): return I(f"v_permlane{n}_swap_b32 v{a}, v{b}")
    def packs(gr):
        Ts = range(0, 5) if gr == 0 else range(5, 9)
        q, k, v = [], [], []
        for T in Ts:
            if T:
                a, b = Q0 + 4*(T-1), Q1 + 4*(T-1)
                q += [cvt(a, a), cvt(a+1, a+2), cvt(a+2, b), cvt(a+3, b+2), I(f"v_and_b32 v{a+2}, v{vMq}, v{a+2}"), I(f"v_and_b32 v{a+3}, v{vMq}, v{a+3}")]
            a, b = K0 + 4*T, K1 + 4*T
            k += [cvt(a, a), cvt(a+1, a+2), cvt(a+2, b), cvt(a+3, b+2)]
        for T in Ts: v += [cvt(VB0 + 2*T, V0 + 4*T), cvt(VB0 + 2*T + 1, V0 + 4*T + 2)]
        for T in Ts: v += [cvt(VB1 + 2*T, V1 + 4*T), cvt(VB1 + 2*T + 1, V1 + 4*T + 2)]
        z0 = Q1 + 16*gr; z, g, o = 38, 40 + gr, 42
        zz = [sw(32, z0, z0 + 8), sw(32, z0 + 4, z0 + 12), sw(16, z0 + 8, z0 + 12), I(f"v_cvt_pk_bf16_f32 v{z}, v{z0+12}, v{z0+12}")]
        sig = [I(f"v_and_b32 v{z}, 0xffff0000, v{z}"),
               I(f"v_mul_f32 v{z}, {sNL2E}, v{z}"), I(f"v_exp_f32 v{z}, v{z}"), I(f"v_add_f32 v{z}, 1.0, v{z}"),
               I(f"v_rcp_f32 v{g}, v{z}"), I(f"v_cvt_pk_bf16_f32 v{g}, v{g}, v{g}"), I(f"v_and_b32 v{g}, 0xffff0000, v{g}"),
               I(f"v_sub_f32 v{o}, 1.0, v{g}"), I(f"v_cvt_pk_bf16_f32 v{o}, v{o}, v{o}"), I(f"v_and_b32 v{o}, 0xffff0000, v{o}"),
               I(f"v_max_f32 v{o}, {hex(f2u(1e-30))}, v{o}"), I(f"v_rcp_f32 v{z}, v{o}"),
               I(f"buffer_store_dword v{o}, v44, {srd(SRD_M)}, s26 offen offset:{256*gr} sc1", "st"), I(f"v_mul_f32 v{g}, v{g}, v{z}")]
        return q, k, v, zz, sig
    def reduce4(op, m, mid):
        return [sw(32, m[0], m[2]), sw(32, m[1], m[3]), I(f"{op} v{m[0]}, v{m[0]}, v{m[2]}"), I(f"{op} v{m[1]}, v{m[1]}, v{m[3]}"),
                sw(16, m[0], m[1]), I(f"{op} v{m[0]}, v{m[0]}, v{m[1]}")] + mid + \
               [I(f"v_mov_b32 v{m[1]}, v{m[0]}"), sw(16, m[0], m[1]), I(f"v_mov_b32 v{m[2]}, v{m[0]}"), I(f"v_mov_b32 v{m[3]}, v{m[1]}"),
                sw(32, m[0], m[2]), sw(32, m[1], m[3])]
    def att(gr, pk):
        r = []
        for k, b in enumerate(TB):
            T = 1 + 4*gr + k; q = Q0 + 4*(T-1)
            r += [mfma(vq(b), vq(K0 + 4*(T-1)), vq(q), True), mfma(vq(b + 4), vq(K0 + 4*T), vq(q), True)]
        for k, b in enumerate(TB):
            c = b + 4
            r += [I(f"v_cndmask_b32 v{b}, v{b}, v{b+1}, {mODD}"), I(f"v_cndmask_b32 v{b+1}, v{b+2}, v{b+3}, {mODD}"),
                  I(f"v_cndmask_b32 v{c}, v{c}, v{c+1}, {mODD}"), I(f"v_cndmask_b32 v{c+1}, v{c+2}, v{c+3}, {mODD}"),
                  I(f"v_cndmask_b32 v{b}, v{b}, v{c}, {mC0}"), I(f"v_cndmask_b32 v{b+1}, v{b+1}, v{c+1}, {mC1}")]
            if gr == 0 and k == 0:
                r += [I(f"v_mov_b32 v{b+3}, {hex(f2u(-1e30))}"),
                      I(f"v_cndmask_b32 v{b}, v{b+3}, v{b}, {mC0F}"), I(f"v_cndmask_b32 v{b+1}, v{b+3}, v{b+1}, {mC1F}")]
            r += [I(f"v_max_f32 v{b+2}, v{b}, v{b+1}")]
        m = [b + 2 for b in TB]
        r += reduce4("v_max_f32", m, [I(f"v_mul_f32 v{m[0]}, {sSCL}, v{m[0]}")])
        for b in TB:
            if pk: r += [I(f"v_pk_fma_f32 v[{b}:{b+1}], v[{b}:{b+1}], s[92:93], v[{b+2}:{b+3}] op_sel_hi:[1,0,0] neg_lo:[0,0,1] neg_hi:[0,0,1]")]
            else: r += [I(f"v_fma_f32 v{b+j}, v{b+j}, {sSCL}, -v{b+2}") for j in range(2)]
        for b in TB: r += [I(f"v_exp_f32 v{b}, v{b}"), I(f"v_exp_f32 v{b+1}, v{b+1}")]
        for b in TB: r += [I(f"v_add_f32 v{b+2}, v{b}, v{b+1}")]
        red = reduce4("v_add_f32", m, [I(f"v_rcp_f32 v{m[0]}, v{m[0]}"), I(f"v_mul_f32 v{m[0]}, v{m[0]}, v{40 + gr}")])
        r += red[:7]; r2 = red[7:]
        for b in TB:
            x = [I(f"v_mul_f32 v{b+j}, v{b+j}, v{b+2}") for j in range(2)]
            r2 += pkify(x) if pk else x
        for b in TB: r2 += [cvt(b + 3, b)]
        for b in TB: r2 += [I(f"v_perm_b32 v{b+4+j}, v{b+3}, v{b+3}, v{sel[j]}") for j in range(4)]
        r3 = []
        for k, b in enumerate(TB):
            T = 1 + 4*gr + k
            r3 += [mfma(vq(b), vq(VB0 + 2*(T-1)), vq(b + 4), True), mfma(vq(Q0 + 4*(T-1)), vq(VB1 + 2*(T-1)), vq(b + 4), True)]
        for k, b in enumerate(TB):
            o1 = Q0 + 4*(4*gr + k)
            r3 += [cvt(b, b), cvt(b+1, b+2), cvt(b+2, o1), cvt(b+3, o1+2),
                   I(f"buffer_store_dwordx4 {vq(b)}, v{vSt}, {srd(SRD_A)}, {sAST} offen sc1", "st"), I(f"s_add_u32 {sAST}, {sAST}, {NK*1024}")]
        return r, r2, r3
    SC = Sched(L); SC.safe = True
    X = Stream()
    for t in range(15 + N):
        tags = ([f"W{t}", f"X{t//2}"] if t < 14 else []) + ([f"Y{(t-N)//2}"] if 0 <= t - N < 14 else [])
        L += [Wait(vm=tags or None, lgkm="all")] + ([I("s_barrier")] if t < 14 + N else [])
        if t in (0, 2, 7, 14): L += ST((0, 1, 2))
        elif t in (1, 3, 4, 5, 6, 9): L += ST((1,))
        G = Stream(every=CFG["EVQ"])
        if t % 2 == 0 and t // 2 + 1 < 7: G.add(dmaX(t // 2 + 1))
        if t + 2 < 14: G.add(dmaW(t + 2))
        if (t - N) % 2 == 0 and 0 <= (t - N + 2) // 2 < 7: G.add(dmaXB((t - N + 2) // 2))
        if t == 12: G.add([I(f"buffer_load_dword v{vRdy}, off, {srd(SRD_D)}, 0 sc1", "rdy")])
        R = ([x for g in reads(t) for x in g] if t < 14 else []) + (readsB(t - N) if 0 <= t - N < 14 else [])
        if t == 0:
            L += R; SC.flush(G)
            continue
        main = (mm(t - 1, range(5)) if t < 15 else []) + (mm(t - 1 - N, range(5, 9)) if 0 <= t - 1 - N < 14 else [])
        if len(main) < 40: G.every = 3
        R = Stream(R, rate=min(1.0, 1.15 * len(R) / len(main)))
        U = Stream(C if t == 12 else [])
        if t == 14:
            q, k, v, zz, sig = packs(0); a1, a2, a3 = att(0, False)
            X.add(q + zz + k + v + sig + a1 + a2 + a3)
        if t == 14 + N:
            print("attention A left:", len(X))
            emit_safe(L, X.q); X.q = []
            q, k, v, zz, sig = packs(1)
            X.add(q + k + zz)
        SC.run(main, [G, R, U, X], flush=[G, R, U])
    L += ST()
    emit_safe(L, X.q)
    a1, a2, a3 = att(1, True)
    fill = []
    while v or sig:
        fill += v[:1] + sig[:1]; v = v[1:]; sig = sig[1:]
    emit_safe(L, a1, fill); emit_safe(L, fill); emit_safe(L, a2); emit_safe(L, a3)
    L += ST()
    L += [I(f"s_lshl_b32 s26, {sQB}, 2"), I(f"s_add_u32 s26, s26, {sJ}"), I("s_lshl_b32 s26, s26, 7"), I(f"s_add_u32 s26, s26, {FLAG_OFF + FL_O}")]
    L += publish("o", vRdy, 1, "s26") + ST() + ST.dump(65536, 2)
    return L, slow("o", vRdy)

def isize(x):
    if x.kind in ("label", "directive"): return 0
    if x.kind in ("mfma", "ds", "vmem", "smem"): return 8
    t = x.text.split(";")[0]
    lit = False
    for tok in re.findall(r"(?<![\w\[:.])(-?0x[0-9a-f]+|-?\d+)(?![\w.\]:])", t.split(None, 1)[1] if " " in t.strip() else ""):
        v = int(tok, 0)
        if v > 64 or v < -16: lit = True
    op = x.op
    if op in ("s_movk_i32", "s_nop", "s_waitcnt", "s_barrier") or op.startswith(("s_cbranch", "s_branch")): return 4
    if op.startswith("s_"): return 8 if lit else 4
    if op.startswith(("v_cvt_pk", "v_pk_", "v_perm_b32", "v_mad", "v_lshl_add", "v_bfe", "v_writelane", "v_fma")): return 8
    if op.startswith("v_cndmask") and "vcc" not in t: return 8
    if op.startswith("v_cmp") and "vcc" not in t: return 8
    return 8 if lit else 4

def add_pads(regions):
    spots = []
    for seq, start in regions:
        since = 10 ** 9
        for i in range(start, len(seq) - 1):
            x, y = seq[i], seq[i + 1]
            since += isize(x)
            free = x.kind == "mfma" and not is_scalar(y)
            any_ok = y.kind in ("valu", "trans", "ds", "vmem", "mfma") and x.kind != "label"
            if (since >= CFG["IST"] - 40 and free) or (since >= CFG["IST"] and any_ok):
                spots.append((id(seq), i + 1)); since = 4
    per = -(-len(spots) // 4)
    ins = {}
    for k, sp in enumerate(spots):
        w, n = divmod(k, per)
        last = n == per - 1 or k == len(spots) - 1
        ins[sp] = [I(f"L_ip{w}_{n}:"), I(f"s_cbranch_execz {'L_end' if last else f'L_ip{w}_{n+1}'}")]
    out = []
    for seq, start in regions:
        o = []
        for i, x in enumerate(seq):
            o += ins.get((id(seq), i), [])
            o.append(x)
        out.append(o)
    print("pads:", len(spots))
    return out

def main():
    for n in range(84): assert (n * 43) >> 8 == n // 6
    for n in range(64): assert (n * 79) >> 10 == n // 13 and (n * 37) >> 8 == n // 7
    for n in range(30): assert (n * 43) >> 7 == n // 3
    for n in range(182): assert (n * 147) >> 10 == n // 7
    pro = prologue()
    def path(role):
        full = resolve(pro + role)
        return full[len(pro):], full
    fr, fx = ffn()
    qr, qx = qkv()
    f, ff = path(fr)
    q, qf = path(qr)
    if CFG["IPF"]:
        nb = lambda seq, k: [i for i, x in enumerate(seq) if x.kind == "barrier"][k]
        f, q = add_pads([(f, nb(f, CFG["IPF0"])), (q, nb(q, CFG["IPQ0"]))])
        ff, qf = pro + f, pro + q
    probs = []
    for nm, s in (("ffn", ff), ("qkv", qf), ("idle", pro + idle()), ("fx", fx), ("qx", qx)):
        probs += check_hazards(s, nm) + check_pending(s, nm) + check_scc(s, nm)
    for p in probs: print("HAZARD", p, file=sys.stderr)
    ref = open(f"cdna_kernels/{NAME}.s.ref").read()
    out = ref.split("; @launch")[0]
    out += "; @launch grid=(256,1,1) block=(256,1,1) lds=163840\n"
    out += f'.amdgcn_target "amdgcn-amd-amdhsa--gfx950"\n.text\n.globl {NAME}_kernel\n.p2align 8\n.type {NAME}_kernel,@function\n{NAME}_kernel:\n'
    out += render(pro) + "\n" + render(f) + "\n    s_endpgm\n" + render(fx) + "\n" + render(q) + "\n    s_endpgm\n" + render(qx) + "\n"
    out += render(idle()) + "\nL_end:\n    s_endpgm\n"
    out += f""".section .rodata,"a"
.p2align 6
.amdhsa_kernel {NAME}_kernel
  .amdhsa_next_free_vgpr 512
  .amdhsa_next_free_sgpr 102
  .amdhsa_accum_offset 256
  .amdhsa_group_segment_fixed_size 0
  .amdhsa_kernarg_size 88
  .amdhsa_user_sgpr_count 2
  .amdhsa_user_sgpr_kernarg_segment_ptr 1
  .amdhsa_system_sgpr_workgroup_id_x 1
.end_amdhsa_kernel
"""
    open(sys.argv[1], "w").write(out)
    print("instr counts: ffn", len(f), "qkv", len(q), "hazards", len(probs))

main()
```

```python
import re

TRANS = ("v_exp_f32", "v_log_f32", "v_rcp_f32", "v_rsq_f32", "v_sqrt_f32", "v_sin_f32", "v_cos_f32")


def _expand(tok):
    tok = tok.strip()
    tok = tok.lstrip("-")
    if tok.startswith("abs(") and tok.endswith(")"):
        tok = tok[4:-1]
    if tok.startswith("|") and tok.endswith("|"):
        tok = tok[1:-1]
    m = re.fullmatch(r"([vas])\[(\d+):(\d+)\]", tok)
    if m:
        return [f"{m.group(1)}{i}" for i in range(int(m.group(2)), int(m.group(3)) + 1)]
    m = re.fullmatch(r"([vas])(\d+)", tok)
    if m:
        return [tok]
    if tok in ("vcc", "exec", "m0", "scc"):
        return [tok]
    if tok in ("vcc_lo", "vcc_hi"):
        return ["vcc"]
    if tok in ("exec_lo", "exec_hi"):
        return ["exec"]
    return []


class Ins:
    def __init__(self, text, tag=None):
        self.text = text
        self.tag = tag
        self.kind = "other"
        self.w = set()
        self.r = set()
        self.srcc = set()
        self.states = 1
        self.cost = 1
        self._parse()

    def _parse(self):
        t = self.text.split(";")[0].strip()
        if t.endswith(":"):
            self.kind = "label"
            self.states = 0
            self.cost = 0
            return
        if t.startswith("."):
            self.kind = "directive"
            self.states = 0
            self.cost = 0
            return
        parts = t.split(None, 1)
        op = parts[0]
        self.op = op
        rest = parts[1] if len(parts) > 1 else ""
        rest = re.sub(r"\s(op_sel|op_sel_hi|neg_lo|neg_hi):\[[0-9,]*\]", "", rest)
        ops = [x.strip() for x in rest.split(",")] if rest else []
        if ops:
            ops[-1] = ops[-1].split()[0] if ops[-1].split() else ""
        mods = rest.split()
        E = lambda xs: set(r for x in xs for r in _expand(x))
        if op == "s_nop":
            self.kind = "nop"
            self.states = int(ops[0]) + 1
            self.cost = self.states
        elif op == "s_waitcnt":
            self.kind = "wait"
        elif op == "s_barrier":
            self.kind = "barrier"
        elif op.startswith("s_cbranch") or op in ("s_branch", "s_endpgm", "s_setpc_b64"):
            self.kind = "branch"
        elif op.startswith("s_load") or op in ("s_memtime", "s_memrealtime"):
            self.kind = "smem"
            self.w = E(ops[:1])
            self.r = E(ops[1:])
        elif op.startswith("s_cmp") or op.startswith("s_bitcmp"):
            self.kind = "salu"
            self.r = E(ops)
            self.w = {"scc"}
        elif op in ("s_sleep", "s_setprio"):
            self.kind = "salu"
        elif op.startswith("s_"):
            self.kind = "salu"
            self.w = E(ops[:1])
            self.r = E(ops[1:])
            if "saveexec" in op:
                self.w |= {"exec"}
        elif op.startswith("v_mfma"):
            self.kind = "mfma"
            self.w = E(ops[:1])
            self.r = E(ops[1:])
            self.srcc = E(ops[3:4])
            self.cost = 2
        elif op.startswith("v_permlane"):
            self.kind = "perm"
            self.w = E(ops[:2])
            self.r = E(ops[:2])
        elif op.startswith("v_cmp"):
            self.kind = "valu"
            self.w = E(ops[:1])
            self.r = E(ops[1:])
        elif op.startswith("v_readfirstlane") or op.startswith("v_readlane"):
            self.kind = "valu"
            self.w = E(ops[:1])
            self.r = E(ops[1:])
        elif op.startswith("v_"):
            base = op.replace("_e32", "").replace("_e64", "")
            self.kind = "trans" if base in TRANS else "valu"
            if self.kind == "trans":
                self.cost = 2
            self.w = E(ops[:1])
            self.r = E(ops[1:])
            if base.startswith("v_fmac") or "_dpp" in op:
                self.r |= E(ops[:1])
            if "_co_" in op:
                self.w |= E(ops[1:2])
        elif op.startswith("ds_read") or op.startswith("ds_bpermute") or op.startswith("ds_swizzle"):
            self.kind = "ds"
            self.w = E(ops[:1])
            self.r = E(ops[1:])
        elif op.startswith("ds_write"):
            self.kind = "ds"
            self.r = E(ops)
        elif op.startswith("buffer_load") or op.startswith("global_load"):
            self.kind = "vmem"
            if "lds" in mods:
                self.r = E(ops) | {"m0"}
                self.lds_dma = True
            else:
                self.w = E(ops[:1])
                self.r = E(ops[1:])
        elif op.startswith("buffer_store") or op.startswith("global_store"):
            self.kind = "vmem"
            self.r = E(ops)
            self.store = True
            if op.startswith("buffer_store"):
                self.sdata = E(ops[:1])
            else:
                self.sdata = E(ops[1:2])
            self.wide = op.endswith("x4") or op.endswith("x3")
        elif op.startswith("buffer_atomic") or op.startswith("global_atomic"):
            self.kind = "vmem"
            self.r = E(ops)
            if "sc0" in mods:
                self.w = E(ops[:1])
        elif op.startswith("buffer_inv") or op.startswith("buffer_wbl2"):
            self.kind = "vmem"
        else:
            raise ValueError("unparsed instruction: " + self.text)


class Wait:
    kind = "pwait"
    tag = None
    cost = 1
    states = 1

    def __init__(self, vm=None, lgkm=None):
        self.vm = vm
        self.lgkm = lgkm


def I(text, tag=None):
    return Ins(text, tag)


def resolve(seq):
    vmq, lq = [], []
    out = []
    for x in seq:
        if isinstance(x, Wait):
            parts = []
            for name, q, tag, mx in (("vmcnt", vmq, x.vm, 63), ("lgkmcnt", lq, x.lgkm, 15)):
                if tag is None:
                    continue
                if tag == "all":
                    n = 0
                    done = len(q)
                else:
                    tags = tag if isinstance(tag, (list, tuple, set)) else [tag]
                    idx = [i for i, t in enumerate(q) if t in tags]
                    if not idx:
                        continue
                    n = len(q) - 1 - max(idx)
                    done = max(idx) + 1
                    if n > mx:
                        n = mx
                        done = len(q) - mx
                del q[:done]
                parts.append(f"{name}({n})")
            if parts:
                out.append(Ins("s_waitcnt " + " ".join(parts)))
            continue
        if x.kind == "vmem":
            vmq.append(x.tag)
        elif x.kind == "ds":
            lq.append(x.tag)
        elif x.kind == "smem":
            lq.append(x.tag)
        elif x.kind == "wait":
            m = re.search(r"vmcnt\((\d+)\)", x.text)
            if m:
                n = int(m.group(1))
                if len(vmq) > n:
                    del vmq[: len(vmq) - n]
            m = re.search(r"lgkmcnt\((\d+)\)", x.text)
            if m:
                n = int(m.group(1))
                if len(lq) > n:
                    del lq[: len(lq) - n]
        out.append(x)
    return out


def isv(r):
    return r[0] in "va" and r[1:].isdigit()


def iss(r):
    return (r[0] == "s" and r[1:].isdigit()) or r in ("vcc",)


def check_hazards(seq, name=""):
    probs = []
    n = len(seq)
    for i, a in enumerate(seq):
        if a.kind in ("label", "directive", "nop", "wait", "barrier", "branch", "other"):
            continue
        rules = []
        VAL = ("valu", "trans", "perm")
        if a.kind in VAL:
            wv = {r for r in a.w if isv(r)}
            ws = {r for r in a.w if iss(r)}
            if wv:
                rules.append((lambda b, wv=wv: b.kind == "mfma" and b.r & wv, 2, "valu->mfma"))
                rules.append((lambda b, wv=wv: b.kind == "perm" and b.r & wv, 2, "valu->permlane"))
                rules.append((lambda b, wv=wv: b.kind == "valu" and "_dpp" in b.op and b.r & wv, 2, "valu->dpp"))
                rules.append((lambda b, wv=wv: b.kind == "valu" and ("readfirstlane" in b.op or "readlane" in b.op) and b.r & wv, 1, "valu->readlane"))
            if a.kind == "trans":
                rules.append((lambda b, wv=wv: b.kind in ("valu", "perm") and b.r & wv, 1, "trans->valu"))
            if ws:
                rules.append((lambda b, ws=ws: b.kind in VAL and b.r & ws, 2, "valu sgpr->valu"))
                rules.append((lambda b, ws=ws: b.kind == "vmem" and b.r & ws, 5, "valu sgpr->vmem"))
            if "exec" in a.w:
                rules.append((lambda b: b.kind in ("mfma", "perm"), 4, "valu exec->mfma/perm"))
        if a.kind == "mfma":
            passes = 4 if "16x16x32" in a.op else 8
            nd = {4: 8, 8: 12}[passes]
            rules.append((lambda b, w=a.w: b.kind in VAL + ("vmem", "ds") and ((b.r | b.w) & w), nd, "mfma->valu/mem"))
            rules.append((lambda b, w=a.w: b.kind == "mfma" and ((b.r - b.srcc) & w), nd, "mfma->mfma AB"))
            rules.append((lambda b, w=a.w: b.kind == "mfma" and (b.srcc & w) and b.srcc != w, {4: 6, 8: 10}[passes], "mfma->mfma C partial"))
            rules.append((lambda b, w=a.w: b.kind == "mfma" and (b.w & w) and not (b.srcc & w), {4: 6, 8: 10}[passes], "mfma WAW"))
            if a.srcc:
                rules.append((lambda b, c=a.srcc: b.kind in VAL and (b.w & c), {4: 3, 8: 7}[passes], "mfma srcC WAR"))
        if a.kind == "salu" and "m0" in a.w:
            rules.append((lambda b: b.kind == "vmem" and getattr(b, "lds_dma", False), 1, "m0->dma"))
        if a.kind == "vmem" and getattr(a, "store", False) and a.wide:
            rules.append((lambda b, d=a.sdata: b.kind in VAL and (b.w & d), 2, "store data WAR"))
            rules.append((lambda b, d=a.sdata: b.kind in ("ds", "vmem", "mfma") and (b.w & d), 1, "store data WAR"))
        if not rules:
            continue
        mx = max(r[1] for r in rules)
        dist = 0
        j = i + 1
        while j < n and dist < mx:
            b = seq[j]
            for pred, need, what in rules:
                if dist < need and b.kind not in ("label", "directive") and pred(b):
                    probs.append(f"{name}: {what}: need {need} got {dist}: [{i}] {a.text}  ->  [{j}] {b.text}")
            dist += b.states
            j += 1
    return probs


def check_pending(seq, name=""):
    probs = []
    vmq, lq = [], []
    for i, x in enumerate(seq):
        if x.kind == "wait":
            m = re.search(r"vmcnt\((\d+)\)", x.text)
            if m:
                nn = int(m.group(1))
                if len(vmq) > nn:
                    del vmq[: len(vmq) - nn]
            m = re.search(r"lgkmcnt\((\d+)\)", x.text)
            if m:
                nn = int(m.group(1))
                if len(lq) > nn:
                    del lq[: len(lq) - nn]
            continue
        if x.kind in ("label", "directive", "nop", "barrier", "branch"):
            continue
        for q in (vmq, lq):
            for (j, w) in q:
                if w & (x.r | x.w):
                    probs.append(f"{name}: pending load [{j}] {seq[j].text} touched by [{i}] {x.text}")
        if x.kind == "vmem":
            vmq.append((i, set(x.w)))
        elif x.kind in ("ds", "smem"):
            lq.append((i, set(x.w)))
    return probs


def interleave(main, fill, per_gap=2, start=0, spread=True):
    out = []
    fill = list(fill)
    total = sum(f.cost for f in fill)
    ngaps = max(1, len(main) - start)
    rate = min(per_gap, total / ngaps) if spread else per_gap
    credit = 0.0
    k = 0
    for i, m in enumerate(main):
        out.append(m)
        if i < start:
            continue
        credit += rate
        while k < len(fill) and (fill[k].cost <= credit + 1e-9 or fill[k].cost == 0):
            out.append(fill[k])
            credit -= fill[k].cost
            k += 1
        if credit > per_gap:
            credit = per_gap
    return out, fill[k:]


def render(seq):
    L = []
    for x in seq:
        if x.kind in ("label", "directive"):
            L.append(x.text)
        else:
            L.append("    " + x.text)
    return "\n".join(L)


def weave(main, streams):
    at = [[] for _ in main]
    tail = []
    for groups, start, end in streams:
        n = len(groups)
        if n == 0:
            continue
        end = min(end, len(main))
        for k, g in enumerate(groups):
            pos = start + (k * (end - start)) // n
            at[pos].append(g)
    out = []
    for m, gs in zip(main, at):
        out.append(m)
        for g in gs:
            out += g
    return out


def dma_groups(seq):
    groups, cur = [], []
    for x in seq:
        cur.append(x)
        if x.kind == "vmem" :
            groups.append(cur)
            cur = []
    if cur:
        groups[-1] += cur
    return groups


class Stream:
    def __init__(self, items=(), every=1, rate=None, ooo=0):
        self.q = list(items)
        self.ooo = ooo
        self.every = every
        self.last = -10 ** 9
        self.rate = rate
        self.credit = 0.0

    def add(self, items):
        self.q += list(items)

    def __len__(self):
        return len(self.q)


def is_scalar(x):
    return x.kind in ("salu", "wait", "pwait", "nop", "barrier", "branch", "label", "after")


class Block:
    kind = "block"
    cost = 0
    tag = None
    def __init__(self, items): self.items = list(items)


class Sched:
    def __init__(self, out, units=2, ds=1, scal=1):
        self.out = out
        self.g = 0
        self.lock = None
        self.units = units
        self.ds = ds
        self.scal = scal
        self.td = 1
        self.safe = False

    def gap(self, streams, on_emit=None):
        out = self.out
        emit = []
        m0 = False
        nsc = 0
        for s in streams:
            while s.q and nsc < self.scal:
                if s.q[0].kind == "block":
                    b = s.q.pop(0)
                    emit += b.items
                    nsc += len(b.items)
                elif s.q[0].kind == "after":
                    break
                elif is_scalar(s.q[0]):
                    x = s.q.pop(0)
                    assert not (x.kind == "salu" and x.op.startswith("s_cmp")), "put s_cmp pairs into a Block"
                    emit.append(x)
                    nsc += 1
                else:
                    break
        m0 = bool(emit) and emit[-1].kind == "salu" and "m0" in emit[-1].w
        units, ds, vm = self.units - max(0, nsc - 1), self.ds, 1
        nfront = len(emit)
        valu_seen = False
        for s in streams:
            if self.g < getattr(s, "hold", 0):
                continue
            if s.rate is not None:
                s.credit = min(s.credit + s.rate, 2.0)
            while s.q and not is_scalar(s.q[0]) and s.q[0].kind != "block":
                x = s.q[0]
                if x.kind == "mfma":
                    break
                c = 2 if x.kind in ("trans", "perm") else 1
                if c > units or (x.kind == "ds" and not ds):
                    break
                if self.safe and deficit(out + emit, x) > 0:
                    break
                if x.kind in ("ds", "vmem") and valu_seen:
                    break
                if s.rate is not None and s.credit < 1.0 - 1e-9:
                    break
                if x.kind == "vmem":
                    if not vm or self.g - s.last < s.every:
                        break
                    if m0 and getattr(x, "lds_dma", False) and len(emit) == nfront:
                        break
                    vm = 0
                    s.last = self.g
                if x.kind == "ds":
                    ds -= 1
                if x.kind in ("valu", "trans", "perm"):
                    if any(y.kind == "trans" and (y.w & x.r) for y in emit[-self.td:]):
                        break
                    valu_seen = True
                s.q.pop(0)
                emit.append(x)
                units -= c
                if s.rate is not None:
                    s.credit -= 1.0
        for s in streams:
            k = 1
            if self.g < getattr(s, "hold", 0):
                continue
            while units > 0 and s.ooo and k < min(s.ooo, len(s.q)):
                x = s.q[k]
                skipped = s.q[:k]
                if any(y.kind not in ("valu", "trans", "vmem", "salu") for y in skipped):
                    break
                last = emit[-1] if emit else None
                if (x.kind == "valu" or (x.kind == "trans" and units >= 2)) and not any((y.w & (x.r | x.w)) or (y.r & x.w) for y in skipped) \
                        and not any(y.kind == "trans" and (y.w & x.r) for y in emit[-self.td:]):
                    emit.append(s.q.pop(k))
                    units -= 2 if x.kind == "trans" else 1
                else:
                    k += 1
        for x in emit:
            out.append(x)
            if on_emit:
                on_emit(x)
        self.g += 1
        for s in streams:
            if s.q and s.q[0].kind == "mfma" and deficit(out, s.q[0]) <= 0:
                out.append(s.q.pop(0))
                self.gap(streams, on_emit)
                break

    def run(self, main, streams, flush=()):
        for m in main:
            self.out.append(m)
            self.gap(streams)
        for s in flush:
            self.flush(s)

    def flush(self, s):
        prev_m0 = False
        for x in s.q:
            if x.kind == "block":
                self.out += x.items
                continue
            if prev_m0 and getattr(x, "lds_dma", False):
                self.out.append(Ins("s_nop 0"))
            self.out.append(x)
            prev_m0 = x.kind == "salu" and "m0" in x.w
        s.q = []
        if self.lock is s:
            self.lock = None


def check_scc(seq, name=""):
    probs = []
    NOSCC = ("s_mov", "s_movk", "s_mul_i32", "s_cselect", "s_nop", "s_waitcnt", "s_barrier", "s_sleep", "s_setprio", "s_getreg", "s_mul_hi")
    last = None
    for x in seq:
        if x.kind == "label":
            last = None
            continue
        op = getattr(x, "op", "")
        if op.startswith("s_cselect") or op.startswith("s_cbranch_scc") or op.startswith("s_addc"):
            ok = last is not None and (last.op.startswith("s_cmp") or last.op.startswith("s_bitcmp") or
                                       (op.startswith("s_addc") and last.op == "s_add_u32") or
                                       (op.startswith("s_cbranch") and last.op == "s_sub_u32" and "L_end" in x.text))
            if not ok:
                probs.append(f"{name}: scc consumer {x.text} after {last.text if last else None}")
        if x.kind == "salu" and not op.startswith(NOSCC):
            last = x
    return probs


def pkify(seq):
    def parse(x):
        if x.kind != "valu" or x.op not in ("v_mul_f32", "v_add_f32"):
            return None
        o = [t.strip() for t in x.text.split(None, 1)[1].split(",")]
        return x.op, o
    def num(t):
        m = re.fullmatch(r"v(\d+)", t)
        return int(m.group(1)) if m else None
    out, i = [], 0
    while i < len(seq):
        a = parse(seq[i]) if i + 1 < len(seq) else None
        b = parse(seq[i + 1]) if a else None
        done = False
        if a and b and a[0] == b[0]:
            d0, d1 = num(a[1][0]), num(b[1][0])
            if d0 is not None and d0 % 2 == 0 and d1 == d0 + 1 and not (seq[i].w & seq[i + 1].r):
                srcs, sel, selhi = [], [], []
                for p, q in zip(a[1][1:], b[1][1:]):
                    n0, n1 = num(p), num(q)
                    if n0 is not None and n1 == n0 + 1 and n0 % 2 == 0:
                        srcs.append(f"v[{n0}:{n1}]"); sel.append(0); selhi.append(1)
                    elif p == q and n0 is not None:
                        e = n0 & ~1
                        srcs.append(f"v[{e}:{e+1}]"); sel.append(n0 & 1); selhi.append(n0 & 1)
                    elif p == q and re.fullmatch(r"s\d+", p) and int(p[1:]) % 2 == 0:
                        srcs.append(f"s[{p[1:]}:{int(p[1:])+1}]"); sel.append(0); selhi.append(0)
                    elif p == q and p in ("1.0", "2.0", "0.5"):
                        srcs.append(p); sel.append(0); selhi.append(0)
                    else:
                        srcs = None
                        break
                if srcs:
                    op = a[0].replace("v_", "v_pk_")
                    out.append(Ins(f"{op} v[{d0}:{d1}], {srcs[0]}, {srcs[1]} op_sel:[{sel[0]},{sel[1]}] op_sel_hi:[{selhi[0]},{selhi[1]}]"))
                    i += 2
                    done = True
        if not done:
            out.append(seq[i])
            i += 1
    return out


def fix_trans(seq):
    seq = list(seq)
    i = 0
    while i + 1 < len(seq):
        a, b = seq[i], seq[i + 1]
        if a.kind == "trans" and b.kind in ("valu", "perm") and (a.w & b.r):
            moved = False
            for k in range(i + 2, min(i + 8, len(seq))):
                x = seq[k]
                if x.kind not in ("valu", "trans"):
                    break
                between = seq[i + 1:k]
                if not (a.w & x.r) and not any((y.w & (x.r | x.w)) or (y.r & x.w) for y in between):
                    seq.insert(i + 1, seq.pop(k))
                    moved = True
                    break
            if not moved:
                seq.insert(i + 1, Ins("s_nop 0"))
        i += 1
    return seq


_VAL = ("valu", "trans", "perm")


def need(a, b):
    if a.kind in ("label", "directive", "nop", "wait", "pwait", "barrier", "branch", "other", "block"):
        return 0
    if b.kind in ("label", "directive", "nop", "wait", "pwait", "barrier", "branch", "other", "block"):
        return 0
    n = 0
    if a.kind in _VAL:
        wv = {r for r in a.w if isv(r)}
        ws = {r for r in a.w if iss(r)}
        if wv & b.r:
            if b.kind in ("mfma", "perm"):
                n = max(n, 2)
            if b.kind == "valu" and ("readfirstlane" in b.op or "readlane" in b.op):
                n = max(n, 1)
            if a.kind == "trans" and b.kind in ("valu", "perm"):
                n = max(n, 1)
        if ws & b.r:
            n = max(n, 5 if b.kind == "vmem" else 2 if b.kind in _VAL else 0)
    if a.kind == "mfma":
        p4 = "16x16x32" in a.op
        if b.kind in _VAL + ("vmem", "ds") and ((b.r | b.w) & a.w):
            n = max(n, 8 if p4 else 12)
        if b.kind == "mfma":
            if (b.r - b.srcc) & a.w:
                n = max(n, 8 if p4 else 12)
            if ((b.srcc & a.w) and b.srcc != a.w) or ((b.w & a.w) and not (b.srcc & a.w)):
                n = max(n, 6 if p4 else 10)
        if b.kind in _VAL and (b.w & a.srcc):
            n = max(n, 3 if p4 else 7)
    if a.kind == "salu" and "m0" in a.w and getattr(b, "lds_dma", False):
        n = max(n, 1)
    if a.kind == "vmem" and getattr(a, "store", False) and a.wide and (b.w & a.sdata):
        n = max(n, 2 if b.kind in _VAL else 1)
    return n


def deficit(hist, x):
    d, worst = 0, 0
    for a in reversed(hist[-16:]):
        if a.kind == "pwait":
            continue
        worst = max(worst, need(a, x) - d)
        d += a.states
        if d >= 12:
            break
    return worst


def emit_safe(out, seq, fill=None):
    for x in seq:
        while True:
            m = deficit(out, x)
            if m <= 0:
                break
            if fill and deficit(out, fill[0]) <= 0:
                out.append(fill.pop(0))
            else:
                out.append(Ins(f"s_nop {m - 1}"))
        out.append(x)
```

```python
import sys, os, math, struct, re
sys.path.insert(0, os.path.dirname(os.path.abspath(__file__)))
from asmlib import *

NAME = "gated_mix__sliding_local_dilated__swiglu_ffn__prompt"
CFG = dict(ROT=2, P1=4, STAMP=0, PUB=3, PF=4, PAD=0, CYC=0, SET=0, G=2, GI=4, GQ=7, GIQ=2, JMAP=0xc9, LA=16, FLA=9, SQ=0, BK=0, PLQ=1, LAG=5, FULL=1, U2=6, TD=2, EV3=2, AMP=0, AMPROLE=1, AMPWG=18, XF=0, OFAST=0, TLB=1, LAQ=2, QD=0, IPF=0, IST=208, IPF0=9, IPQ0=4, RX=0, RH=2, PRE=1, OSC=1, EV1=3, EV2=2, EVQ=3, PUBD=24)
for a in sys.argv[2:]:
    k, v = a.split("=")
    CFG[k] = int(v, 0)
ROT, P1 = CFG["ROT"], CFG["P1"]

def f2u(x):
    return struct.unpack("<I", struct.pack("<f", x))[0]

S, D, F = 2048, 448, 1792
X_BYTES = S * D * 2
WQKV_BYTES = D * 3 * D * 2
WO_BYTES = D * D * 2
WG_BYTES = D * F * 2
NK = 73
A_OFF = 131072
A_BYTES = 128 * NK * 1024
MISC_BYTES = 131072
FLAG_OFF = 81920
OOB = 0x40000000
MASTER = 248

sWV = "s3"
SRD_X, SRD_W, SRD_A, SRD_O, SRD_W2, SRD_WO, SRD_M, SRD_D = 28, 32, 36, 40, 44, 48, 52, 96
def srd(n): return f"s[{n}:{n+3}]"
sK = [f"s{56+i}" for i in range(7)]
sROW0, sC, sT0, sT1, sT2, sT3 = "s63", "s64", "s65", "s66", "s67", "s68"
sM0W, sM0X, sSOFF, sAST, sNL2E = "s69", "s70", "s71", "s73", "s72"
sXROW = [f"s{74+i}" for i in range(5)]
sJ = "s79"
mODD, mC0, mC1, mC0F, mC1F, mG3 = "s[80:81]", "s[82:83]", "s[84:85]", "s[86:87]", "s[88:89]", "s[90:91]"
sSCL, sQB, sN2, sRB = "s92", "s93", "s94", "s95"
sRT, sNT, sAO, sCW, sCA, sM02 = "s74", "s75", "s76", "s77", "s78", "s79"

def vq(n, k=4): return f"v[{n}:{n+k-1}]"
def aq(n, k=4): return f"a[{n}:{n+k-1}]"
def rq(r, k=4): return f"{r[0]}[{r[1]}:{r[1]+k-1}]"

def mksrd(n, lo, size):
    return [I(f"s_mov_b32 s{n}, s{lo}"), I(f"s_mov_b32 s{n+1}, s{lo+1}"),
            I(f"s_mov_b32 s{n+2}, {size}"), I(f"s_mov_b32 s{n+3}, 0x20000")]

def srd_a():
    return [I(f"s_add_u32 s{SRD_A}, s24, {A_OFF}"), I(f"s_addc_u32 s{SRD_A+1}, s25, 0"),
            I(f"s_mov_b32 s{SRD_A+2}, {A_BYTES}"), I(f"s_mov_b32 s{SRD_A+3}, 0x20000")]

def mfma32(d, a, b, first):
    return I(f"v_mfma_f32_32x32x16_bf16 {d}, {a}, {b}, {'0' if first else d}")

def mfma(d, a, b, first):
    return I(f"v_mfma_f32_16x16x32_bf16 {d}, {a}, {b}, {'0' if first else d}")

class Stamps:
    def __init__(self, regs, role): self.regs = regs; self.n = 0; self.role = role
    def __call__(self, sets=(0,)):
        if not CFG["STAMP"] or not (sets is True or CFG["SET"] in sets): return []
        r = self.regs[self.n]; self.n += 1
        op = "s_memtime" if CFG["CYC"] else "s_memrealtime"
        return [I(f"{op} s[100:101]"), I("s_waitcnt lgkmcnt(0)"), I(f"s_mov_b32 s{r}, s100")]
    def dump(self, base, vtmp):
        if not CFG["STAMP"]: return []
        if CFG["AMP"]:
            a, b = divmod(CFG["AMP"], 100)
            if (base is None) or max(a, b) >= self.n or CFG["AMPROLE"] != self.role: return []
            lab = f"L_amp{self.role}"
            return [I(f"s_cmp_lg_u32 s2, {CFG['AMPWG']}"), I("s_cbranch_scc1 L_end"),
                    I(f"s_sub_u32 s10, s{self.regs[b]}, s{self.regs[a]}"), I("s_mul_i32 s10, s10, 10"), I("s_add_u32 s10, s10, 4000"),
                    I(lab + ":"), I("s_memrealtime s[100:101]"), I("s_waitcnt lgkmcnt(0)"), I(f"s_sub_u32 s100, s100, s{self.regs[0]}"),
                    I("s_cmp_lt_u32 s100, s10"), I(f"s_cbranch_scc1 {lab}")]
        L = [I("s_waitcnt vmcnt(0)")] + self(True)
        L += [I(f"v_mov_b32 v{vtmp}, 0")]
        for k in range(self.n): L.append(I(f"v_writelane_b32 v{vtmp}, s{self.regs[k]}, {k}"))
        L += [I("s_lshl_b32 s26, s2, 6"), I(f"s_add_u32 s26, s26, {base}"), I(f"s_cmp_eq_u32 {sWV}, 0"), I(f"s_cselect_b32 s26, s26, {OOB}"),
              I(f"v_lshlrev_b32 v{vtmp+1}, 2, v0"), I("v_cmp_gt_u32 vcc, 16, v0"), I("s_nop 4"), I("s_and_saveexec_b64 s[10:11], vcc"),
              I(f"buffer_store_dword v{vtmp}, v{vtmp+1}, {srd(SRD_M)}, s26 offen")]
        if CFG["STAMP"] == 2:
            L += [I("s_cmp_eq_u32 s2, 0"), I(f"s_cselect_b32 s26, 8, {OOB}"), I(f"s_cmp_eq_u32 {sWV}, 0"), I(f"s_cselect_b32 s26, s26, {OOB}"),
                  I(f"buffer_store_dword v{vtmp}, v{vtmp+1}, {srd(SRD_D)}, s26 offen")]
        return L

def sk_next(s):
    return [I(f"s_add_u32 {sK[s]}, {sK[s-1]}, 128"), I(f"s_cmp_eq_u32 {sK[s]}, 896"),
            I(f"s_cselect_b32 {sK[s]}, 0, {sK[s]}")]

def rot_small(a, b):
    G, GI, RX, RH = CFG["G"], CFG["GI"], CFG["RX"], CFG["RH"]
    if b is None: G, GI = CFG["GQ"], CFG["GIQ"]
    L = [I(f"s_add_u32 s27, {a}, {b}")] if b else [I(f"s_mov_b32 s27, {a}")]
    if G == 1: L = [I("s_mov_b32 s27, 0")]
    elif G == 2: L += [I("s_and_b32 s27, s27, 1")]
    elif G == 3: L += [I("s_mul_i32 s11, s27, 43"), I("s_lshr_b32 s11, s11, 7"), I("s_mul_i32 s11, s11, 3"), I("s_sub_u32 s27, s27, s11")]
    if G > 1 and GI != 1: L += [I(f"s_mul_i32 s27, s27, {GI}")]
    if RX: L += [I("s_bfe_u32 s11, s2, 0x20001"), I(f"s_mul_i32 s11, s11, {RX}"), I("s_add_u32 s27, s27, s11")]
    if RH: L += [I("s_and_b32 s11, s2, 1"), I(f"s_mul_i32 s11, s11, {RH}"), I("s_add_u32 s27, s27, s11")]
    if G == 7 or RX or RH:
        L += [I("s_mul_i32 s11, s27, 147"), I("s_lshr_b32 s11, s11, 10"), I("s_mul_i32 s11, s11, 7"), I("s_sub_u32 s27, s27, s11")]
    L += [I(f"s_lshl_b32 {sK[0]}, s27, 7")]
    return L

def blockify(seq):
    o, i = [], 0
    while i < len(seq):
        x = seq[i]
        j = i + 1
        while j < len(seq) and getattr(seq[j], "op", "").startswith(("s_cselect", "s_addc")): j += 1
        o.append(Block(seq[i:j]) if j > i + 1 else x)
        i = j
    return o

def direct(seq):
    o = []
    Sched(o).flush(Stream(seq))
    return o

def publish(tag, vrdy, vone, scnt, st="st"):
    return [Wait(vm=[st, "rdy"]), I(f"v_readfirstlane_b32 s10, v{vrdy}"), I(f"v_mov_b32 v{vone}, 1")] + spin_init() + [I("s_nop 0"),
            I("s_cmp_eq_u32 s10, 0"), I(f"s_cbranch_scc1 L_slow_{tag}"), I(f"L_back_{tag}:"),
            I("s_mov_b64 exec, 1"),
            I(f"buffer_atomic_add v{vone}, off, {srd(SRD_M)}, {scnt} sc1", "pub"),
            I("s_mov_b64 exec, -1")]

SPIN = "s9"
def spin_init(): return [I(f"s_mov_b32 {SPIN}, 0x100000")]
def spin_step(): return [I(f"s_sub_u32 {SPIN}, {SPIN}, 1"), I("s_cbranch_scc1 L_end")]

def slow(tag, vrdy):
    return [I(f"L_slow_{tag}:")] + spin_step() + [I(f"buffer_load_dword v{vrdy}, off, {srd(SRD_D)}, 0 sc1"), I("s_waitcnt vmcnt(0)"),
            I(f"v_readfirstlane_b32 s10, v{vrdy}"), I("s_nop 3"), I("s_cmp_eq_u32 s10, 0"), I(f"s_cbranch_scc1 L_slow_{tag}"),
            I(f"s_branch L_back_{tag}")]

def prologue():
    L = [I("s_cmp_ge_u32 s2, 256"), I("s_cbranch_scc1 L_end"),
         I("s_load_dwordx4 s[4:7], s[0:1], 0", "ka"), I("s_load_dwordx8 s[12:19], s[0:1], 32", "ka"),
         I("s_load_dwordx2 s[8:9], s[0:1], 16", "ka"), I("s_load_dwordx4 s[20:23], s[0:1], 64", "ka"),
         I("s_load_dwordx2 s[24:25], s[0:1], 80", "ka")]
    L += [I("v_lshrrev_b32 v1, 6, v0"), I("v_and_b32 v0, 63, v0"),
          I("s_bfe_u32 s10, s2, 0x20001"),
          I("v_readfirstlane_b32 s3, v1"),
          I("s_lshr_b32 s11, s2, 3"),
          I("s_and_b32 s27, s2, 1"),
          I("s_cmp_lt_u32 s11, 8"), I("s_cbranch_scc1 L_qkv"),
          I("s_mul_i32 s26, s10, 23"), I("s_add_u32 s26, s26, s11"), I("s_sub_u32 s26, s26, 8"),
          I("s_cmp_eq_u32 s11, 31"), I("s_cbranch_scc1 L_idle"), I("s_cmp_ge_u32 s26, 91"), I("s_cbranch_scc1 L_idle"),
          I(f"s_mul_i32 {sN2}, s27, 91"), I(f"s_add_u32 {sN2}, {sN2}, s26"),
          I("s_mul_i32 s11, s27, 7"), I("s_sub_u32 s10, 49, s11"),
          I("s_cmp_ge_u32 s26, s10"), I("s_cselect_b32 s10, s10, 0"), I(f"s_cselect_b32 {sC}, 7, 0"),
          I(f"s_cselect_b32 {sRB}, s27, 0"), I(f"s_cselect_b32 {sQB}, 1, 0"),
          I("s_sub_u32 s26, s26, s10"), I(f"s_sub_u32 {sRB}, s11, {sRB}"),
          I(f"s_cmp_eq_u32 {sQB}, s27"), I("s_cselect_b32 s10, 37, 43"), I("s_cselect_b32 s11, 7, 6"),
          I("s_mul_i32 s10, s10, s26"), I("s_lshr_b32 s10, s10, 8"), I(f"s_add_u32 {sC}, {sC}, s10"),
          I("s_mul_i32 s10, s10, s11"), I("s_sub_u32 s26, s26, s10"), I(f"s_add_u32 {sRB}, {sRB}, s26")]
    return L

def idle():
    L = [I("L_idle:"), I("v_lshlrev_b32 v1, 7, v0"), I("s_waitcnt lgkmcnt(0)")]
    if CFG["XF"]: L += mksrd(SRD_X, 18, 896) + [I(f"buffer_load_dword v20, off, {srd(SRD_X)}, 0")]
    L += [
         I(f"s_cmp_lg_u32 s2, {MASTER}"), I("s_cbranch_scc1 L_pre"), I(f"s_cmp_lg_u32 {sWV}, 0"), I("s_cbranch_scc1 L_pre"),
         I("v_mov_b32 v2, 0"), I("v_mov_b32 v3, 1")] + mksrd(SRD_M, 24, MISC_BYTES) + mksrd(SRD_D, 22, 256)
    L += [x for k in range(5) for x in (I(f"s_mov_b32 s27, {FLAG_OFF + 8192*k}"), I(f"buffer_store_dword v2, v1, {srd(SRD_M)}, s27 offen sc1"))]
    L += [I("s_waitcnt vmcnt(0)"), I("s_mov_b64 exec, 1"), I(f"buffer_store_dword v3, off, {srd(SRD_D)}, 0 sc1"), I("s_mov_b64 exec, -1"),
          I("L_pre:")]
    if CFG["TLB"]:
        L += srd_a() + mksrd(SRD_O, 20, X_BYTES) + mksrd(SRD_D, 22, 256)
        L += [I(f"s_mov_b32 s26, {NK*1024}"), I("v_mul_u32_u24 v12, s26, v0"), I(f"s_lshl_b32 s27, {sWV}, 5"), I("s_mul_i32 s27, s27, s26"),
              I(f"s_add_u32 s27, s27, {72*1024}"), I("s_movk_i32 s26, 28672"), I("v_mul_u32_u24 v13, s26, v0"),
              I(f"s_cmp_lt_u32 {sWV}, 2"), I("s_cbranch_scc0 L_tlb2"), I("s_lshl_b32 s27, s27, 1"), I(f"s_sub_u32 s27, s27, {72*1024}"),
              I(f"buffer_load_dword v14, v12, {srd(SRD_A)}, s27 offen"), I("s_branch L_tlb3"),
              I("L_tlb2:"), I(f"buffer_load_dword v16, v13, {srd(SRD_O)}, 0 offen"), I(f"buffer_load_dword v15, off, {srd(SRD_D)}, 0 offset:128"),
              I("L_tlb3:")]
    if CFG["PRE"]:
        L += [I("s_and_b32 s26, s2, 7"), I("s_and_b32 s27, s2, 1"), I("s_add_u32 s27, s27, 8"), I("s_cmp_eq_u32 s11, 31"), I("s_cselect_b32 s26, s26, s27"),
              I("s_lshl_b32 s26, s26, 2"), I(f"s_add_u32 s26, s26, {sWV}"), I("s_lshl_b32 s26, s26, 13")]
        L += mksrd(SRD_W2, 16, WG_BYTES) + mksrd(SRD_WO, 8, WO_BYTES)
        for k in range(7):
            if k == 2: L += [I(f"s_sub_u32 s26, s26, {2*327680}")]
            L += [I(f"buffer_load_dword v{4+k}, v1, {srd(SRD_WO if k < 2 else SRD_W2)}, s26 offen"), I("s_add_u32 s26, s26, 327680")]
    if CFG["IPF"]:
        L += [I("s_mov_b64 exec, 0")]
        for w in range(1, 4): L += [I(f"s_cmp_eq_u32 {sWV}, {w}"), I(f"s_cbranch_scc1 L_ip{w}_0")]
        L += [I("s_branch L_ip0_0")]
    return L

P1 = 4
FW_RING, FW_R = 0, 4
FX_RING = 65536
FX_SLOT = P1 * 2048
FX2 = 102400
NT2 = 10 - P1
assert FX_RING + 3 * FX_SLOT <= 98304 and FX2 + 4 * 14336 <= 163840
SL2 = 6
RED = 98304
FL_LATE, FL_O = 104 * 128, 208 * 128

def ffn():
    ST = Stamps(list(range(80, 93)) + [4, 5, 6], 0)
    vWd = [1, 2, 3, 4]; vXd = [5, 6]; vX2d = 8; vWr = [9, 10]; vXr = [11, 12, 13, 14]; vAst = 21
    vT = [16, 17, 18, 19]; vRdy = 20; vOne = 7; vHi = 22
    XB = 24
    ACC = 72; NSL = 3
    v2d = [176, 177, 178, 179]; v2r = [180, 181, 182, 183]
    W2V = 184
    sODD, sCE, sCL, sDX = "s93", "s26", "s27", "s68"
    def acc(T, ct): return ACC + (T % NSL) * 32 + ct * 16
    def wfr(k, ct): return (k * 2 + ct) * 4
    L = [I("L_ffn:")] + ST(True)
    if CFG["PAD"]: L += [I("s_memrealtime s[80:81]")]
    L += [I(f"s_mul_i32 {sROW0}, {sRB}, 160"), I(f"s_and_b32 {sODD}, {sC}, 1")]
    L += rot_small(sRB, sC)
    r4, p16, r8, p8 = 16, 17, 18, 19
    L += [I(f"v_lshrrev_b32 v{r4}, 4, v0"), I(f"v_and_b32 v{p16}, 15, v0"),
          I(f"v_lshrrev_b32 v{r8}, 3, v0"), I(f"v_and_b32 v{p8}, 7, v0"),
          I(f"s_and_b32 s10, {sWV}, 1"), I("s_mul_i32 s11, s10, 57344"),
          I(f"s_lshl_b32 s27, {sC}, 8"), I("s_add_u32 s11, s11, s27"),
          I("s_movk_i32 s27, 3584"), I(f"v_mul_u32_u24 v20, s27, v{r4}"), I("v_add_u32 v20, s11, v20"),
          I(f"v_lshlrev_b32 v21, 2, v{r4}"), I(f"v_xor_b32 v21, v21, v{p16}"),
          I(f"s_and_b32 s11, {sWV}, 2"), I("v_xor_b32 v21, s11, v21"),
          I(f"v_lshl_add_u32 v{vWd[0]}, v21, 4, v20")]
    for i in range(1, 4): L += [I(f"v_add_u32 v{vWd[i]}, {4*3584-1024}, v{vWd[i-1]}")]
    L += [I(f"s_lshl_b32 {sM0W}, {sWV}, 12"),
          I(f"s_lshr_b32 s11, {sWV}, 1"), I("s_sub_u32 s27, 4, s11"), I(f"s_cmp_eq_u32 {sODD}, 0"), I("s_cselect_b32 s11, s11, s27"),
          I("s_lshl_b32 s11, s11, 1"), I("s_add_u32 s11, s11, s10"), I("s_lshl_b32 s11, s11, 4"),
          I(f"s_add_u32 s11, s11, {sROW0}"), I("s_mul_i32 s11, s11, 896"),
          I(f"s_lshl_b32 {sM0X}, {sWV}, 11"), I(f"s_add_u32 {sM0X}, {sM0X}, {FX_RING}"),
          I("s_movk_i32 s27, 896"),
          I(f"v_mul_u32_u24 v20, s27, v{r8}"),
          I(f"v_xor_b32 v21, v{r4}, v{p8}"),
          I(f"v_lshl_add_u32 v22, v21, 4, v20"),
          I(f"v_add_u32 v{vXd[0]}, s11, v22"), I("v_xor_b32 v23, 64, v22"),
          I(f"s_add_u32 s11, s11, {8*896-1024}"), I(f"v_add_u32 v{vXd[1]}, s11, v23")]
    L += [Wait(lgkm="all")] + ST((4,))
    L += [I(f"s_cmp_lt_u32 {sWV}, 2"), I(f"s_cselect_b32 s{SRD_W}, s12, s14"), I(f"s_cselect_b32 s{SRD_W+1}, s13, s15"),
          I(f"s_mov_b32 s{SRD_W+2}, {WG_BYTES}"), I(f"s_mov_b32 s{SRD_W+3}, 0x20000")]

    def dmaW(u):
        s, e = divmod(u, 2)
        r = [I(f"s_add_u32 m0, {sM0W}, {FW_RING + (u % FW_R) * 16384}"), I(f"s_mul_i32 {sSOFF}, {sK[s]}, 1792")]
        if e: r += [I(f"s_add_u32 {sSOFF}, {sSOFF}, 114688")]
        for i in range(4):
            r.append(I(f"buffer_load_dwordx4 v{vWd[i]}, {srd(SRD_W)}, {sSOFF} offen offset:{1024*i} lds", f"W{u}"))
        return r
    def dmaX(s):
        r = [I(f"s_add_u32 m0, {sM0X}, {(s % 3) * FX_SLOT}")]
        for i in range(2):
            r.append(I(f"buffer_load_dwordx4 v{vXd[i]}, {srd(SRD_X)}, {sK[s]} offen offset:{1024*i} lds", f"X{s}"))
        return r
    def dmaX2(p):
        r = [I(f"s_add_u32 m0, {sT1}, {FX2 + (p % 2) * 28672}")]
        if p: r += [I(f"v_add_u32 v{vX2d}, {sDX}, v{vX2d}")]
        for s in range(7):
            r += [I(f"buffer_load_dwordx4 v{vX2d}, {srd(SRD_X)}, {sK[s]} offen lds", f"X2_{p}")]
            if s < 6: r += [I("s_add_u32 m0, m0, 4096")]
        return r
    if CFG["XF"]:
        L += mksrd(SRD_X, 4, X_BYTES) + [I("s_bitcmp1_b32 s2, 3"), I("s_cbranch_scc1 L_xf")]
        L += dmaW(0) + direct(dmaX(0)) + [I("L_xf_back:")] + ST((4,))
        xf_extra = [I("L_xf:")] + direct(dmaX(0)) + dmaW(0) + [I("s_branch L_xf_back")]
    else:
        L += dmaW(0) + mksrd(SRD_X, 4, X_BYTES) + direct(dmaX(0)) + ST((4,)); xf_extra = []
    L += [I(f"v_and_b32 v24, 1, v{r4}"), I(f"v_lshrrev_b32 v25, 5, v0"),
          I("v_bfe_u32 v20, v0, 2, 2"), I("v_lshl_add_u32 v27, v25, 3, v20"),
          I("v_lshl_add_u32 v20, v20, 1, v24"),
          I(f"s_lshl_b32 s11, {sWV}, 1"), I("v_xor_b32 v20, s11, v20"), I("v_lshlrev_b32 v20, 5, v20"),
          I("v_lshl_add_u32 v20, v27, 8, v20"), I("v_lshl_add_u32 v20, v24, 13, v20"),
          I("v_and_b32 v27, 3, v0"), I(f"v_lshl_add_u32 v{vWr[0]}, v27, 3, v20"), I(f"v_xor_b32 v{vWr[1]}, 32, v{vWr[0]}"),
          I("v_bfe_u32 v20, v0, 1, 3"), I("v_xor_b32 v20, v20, v25"), I("v_lshlrev_b32 v20, 4, v20"),
          I("v_and_b32 v27, 31, v0"), I("v_lshl_add_u32 v20, v27, 7, v20"), I(f"v_add_u32 v{vXr[0]}, {FX_RING}, v20")]
    for j in range(1, 4): L += [I(f"v_xor_b32 v{vXr[j]}, {32*j}, v{vXr[0]}")]
    for s in range(1, 7): L += sk_next(s)
    L += dmaW(1) + dmaW(2) + direct(dmaX(1)) + ST((4,))
    L0 = L; L = []
    L += srd_a() + mksrd(SRD_M, 24, MISC_BYTES) + mksrd(SRD_D, 22, 256)
    L += [I(f"s_mov_b32 {sNL2E}, {hex(f2u(-math.log2(math.e)))}"),
          I(f"s_and_b32 s11, {sWV}, 1"), I("s_lshl_b32 s27, s11, 6"), I("v_xor_b32 v23, s27, v22"),
          I(f"s_lshl_b32 s10, {sWV}, 3"), I(f"s_add_u32 s10, s10, {sROW0}"), I("s_add_u32 s10, s10, 64"), I("s_mul_i32 s10, s10, 896"),
          I(f"v_add_u32 v{vX2d}, s10, v23"), I(f"s_lshl_b32 {sT1}, {sWV}, 10"),
          I(f"s_mul_i32 s10, {sODD}, {64*896}"), I(f"s_sub_u32 {sDX}, {32*896}, s10"),
          I(f"s_lshl_b32 s10, {sODD}, 7"), I(f"s_add_u32 s10, s10, {sROW0}"),
          I(f"s_lshr_b32 s10, s10, 4"), I(f"s_mul_i32 s10, s10, {NK}"), I(f"s_lshl_b32 s11, {sC}, 2"),
          I("s_add_u32 s10, s10, s11"), I(f"s_add_u32 s10, s10, {sWV}"), I(f"s_lshl_b32 {sAST}, s10, 10"),
          I(f"s_mul_i32 s10, {sODD}, {4*NK*1024}"), I(f"s_sub_u32 {sT2}, {2*NK*1024}, s10"),
          I("v_lshlrev_b32 v15, 4, v0"),
          I(f"s_mov_b32 s10, {NK*1024}"), I(f"v_mul_u32_u24 v20, s10, v24"), I(f"v_lshl_add_u32 v20, v25, 8, v20"),
          I(f"v_lshl_add_u32 v26, v{p16}, 4, v20")]
    L += [I(f"s_mul_i32 {sRT}, {sN2}, 147"), I(f"s_lshr_b32 {sRT}, {sRT}, 10"),
          I(f"s_mul_i32 s10, {sRT}, 7"), I(f"s_sub_u32 {sNT}, {sN2}, s10"),
          I("s_movk_i32 s27, 896"), I(f"v_mul_u32_u24 v20, s27, v{r8}"),
          I(f"v_and_b32 v21, 6, v{r8}"), I(f"v_xor_b32 v21, v21, v{p8}"),
          I(f"v_lshl_add_u32 v20, v21, 4, v20"),
          I(f"s_lshl_b32 s10, {sNT}, 7"), I(f"v_add_u32 v{v2d[0]}, s10, v20")]
    for i in range(1, 4): L += [I(f"v_add_u32 v{v2d[i]}, {8*896-1024}, v{v2d[i-1]}")]
    L += [I(f"s_mul_i32 {sM02}, {sWV}, {SL2*4096}"),
          I("v_lshrrev_b32 v20, 2, v0"), I("v_bfe_u32 v21, v0, 3, 2"), I(f"v_xor_b32 v21, {sWV}, v21"),
          I("v_lshlrev_b32 v21, 5, v21"), I("v_lshl_add_u32 v21, v20, 7, v21"),
          I("v_and_b32 v20, 3, v0"), I("v_lshl_add_u32 v21, v20, 3, v21"),
          I(f"v_add_u32 v{v2r[0]}, {sM02}, v21")]
    for t in range(1, 4): L += [I(f"v_xor_b32 v{v2r[t]}, {32*t}, v{v2r[0]}")]
    L += [I(f"v_mov_b32 v{vAst}, v26"), I(f"v_lshlrev_b32 v{vHi}, 10, v25"), I(f"v_lshl_add_u32 v175, v25, 30, v{v2d[3]}")]
    L += mksrd(SRD_W2, 16, WG_BYTES) + mksrd(SRD_WO, 8, WO_BYTES) + mksrd(SRD_O, 20, X_BYTES)
    sPAR, sR0 = "s12", "s13"
    sWb, sAb = ["s14", "s15"], ["s18", "s19"]
    L += [I(f"s_and_b32 {sPAR}, {sRT}, 1"), I(f"s_bfe_u32 s10, {sRT}, 0x10001"), I("s_mul_i32 s10, s10, 3"),
          I(f"s_add_u32 {sR0}, {sNT}, s10"), I(f"s_sub_u32 s10, {sR0}, 7"), I(f"s_cmp_ge_u32 {sR0}, 7"), I(f"s_cselect_b32 {sR0}, s10, {sR0}"),
          I(f"s_mul_i32 s10, {sWV}, {32*896}"), I(f"s_mul_i32 s11, {sPAR}, {128*896}"),
          I(f"s_add_u32 {sWb[0]}, s10, s11"), I(f"s_sub_u32 s10, s10, s11"), I(f"s_add_u32 {sWb[1]}, s10, {128*896}"),
          I(f"s_mul_i32 {sAO}, {sRT}, {5*NK*1024}"), I(f"s_lshl_b32 s10, {sWV}, 10"), I(f"s_add_u32 {sAO}, {sAO}, s10"),
          I(f"s_lshl_b32 s11, {sPAR}, 12"), I(f"s_add_u32 {sAb[0]}, {sAO}, s11"), I(f"s_sub_u32 s10, {sAO}, s11"), I(f"s_add_u32 {sAb[1]}, s10, 4096"),
          I(f"s_mul_i32 {sCW}, {sR0}, {256*896}"), I(f"s_lshl_b32 {sCA}, {sR0}, 13"),
          I(f"s_lshl_b32 s10, {sRB}, 3"), I(f"s_add_u32 s10, s10, {sWV}"), I(f"s_lshl_b32 s11, {sODD}, 2"),
          I(f"s_add_u32 {sCE}, s10, s11"), I(f"s_lshl_b32 {sCE}, {sCE}, 7"), I(f"s_add_u32 {sCE}, {sCE}, {FLAG_OFF}"),
          I(f"s_xor_b32 {sCL}, {sCE}, 512"), I(f"s_add_u32 {sCL}, {sCL}, {FL_LATE}"),
          I(f"s_lshl_b32 s10, {sRT}, 2"), I(f"s_add_u32 s10, s10, {sWV}"), I("s_lshl_b32 s10, s10, 7"), I(f"s_add_u32 {sN2}, s10, {FLAG_OFF}")]
    sFE = sN2
    U1 = Stream(blockify(L)); L = L0

    def readsW(u):
        return [I(f"ds_read_b64_tr_b16 {aq(wfr(2*u+e, ct)+2*h, 2)}, v{vWr[ct]} offset:{FW_RING + (u%FW_R)*16384 + e*4096 + h*1024}", f"r{u}")
                for e in range(2) for ct in range(2) for h in range(2)]
    def xb1(u, e, T): return XB + (4 + (u % 2) * 4 + e * 2 + T) * 4
    def readsX(u):
        s, e1 = divmod(u, 2)
        return [I(f"ds_read_b128 {vq(xb1(u, e, T))}, v{vXr[2*e1+e]} offset:{(s%3)*FX_SLOT + T*4096}", f"r{u}") for e in range(2) for T in range(2)]
    def mm1(u):
        return [mfma32(vq(acc(T, ct), 16), aq(wfr(2*u+e, ct)), vq(xb1(u, e, T)), u == 0 and e == 0)
                for e in range(2) for T in range(2) for ct in range(2)]
    SC = Sched(L, units=6, ds=2, scal=3)
    dm = Stream(every=1)
    for u in range(14):
        if u == 0: L += ST((4,))
        L += [Wait(vm=[f"W{u}", f"X{u//2}"], lgkm="all")] + (ST((4,)) if u < 3 else []) + [I("s_barrier")]
        L += ST((0, 1) if u in (0, 7) else (1,))
        if u == 0:
            L += readsX(0) + readsW(0) + dmaW(3) + direct(dmaX(2))
            continue
        if u + 3 < 14: dm.add(dmaW(u + 3))
        if u % 2 == 0 and u // 2 + 2 < 7: dm.add(dmaX(u // 2 + 2))
        if u == 11: dm.add(dmaX2(0) + dmaX2(1) + [I(f"buffer_load_dword v{vRdy}, off, {srd(SRD_D)}, 0 sc1", "rdy")])
        rd = Stream(readsX(u) + readsW(u))
        SC.run(mm1(u - 1), [dm, rd, U1], flush=[rd] + ([dm] if u < 11 or u == 13 else []) + ([U1] if u == 10 else []))
    NF2 = 84
    def rd2(n):
        T, k = divmod(n, 28); s, j = divmod(k, 4)
        return I(f"ds_read_b128 {vq(XB + (n % 12)*4)}, v{vXr[j]} offset:{(T % 2)*28672 + s*4096}", f"q{n//4}")
    ORD = [14, 15, 16, 17] + list(range(14))
    def slot2(q): return ORD.index(q) % SL2
    def w2(q, t): return ("a", (q * 4 + t) * 4) if q < 16 else ("v", W2V + ((q - 16) * 4 + t) * 4)
    def dmaW2(q):
        r = [I(f"s_add_u32 m0, {sM02}, {slot2(q) * 4096}") if q not in (12, 13) else I(f"s_add_u32 m0, {sM0W}, {131072 + (q - 12) * 16384}")]
        if q == 14: r += [I(f"s_mul_i32 {sSOFF}, {sWV}, {4*28*896}")]
        elif q > 14: r += [I(f"s_add_u32 {sSOFF}, {sSOFF}, {28*896}")]
        else:
            if 0 < q < 12: r += [I(f"s_add_u32 {sCW}, {sCW}, {256*896}"), Block([I(f"s_cmp_eq_u32 {sCW}, {7*256*896}"), I(f"s_cselect_b32 {sCW}, 0, {sCW}")])]
            r += [I(f"s_add_u32 {sSOFF}, {sCW}, {sWb[q >= 7]}")]
        for i in range(4):
            r.append(I(f"buffer_load_dwordx4 v{175 if q >= 14 and i == 3 else v2d[i]}, {srd(SRD_W2 if q < 14 else SRD_WO)}, {sSOFF} offen offset:{1024*i} lds", f"V{q}"))
        return r
    def rdW2(q):
        r = []
        for t in range(4):
            k, n = w2(q, t)
            for h in range(2):
                so = slot2(q) * 4096 if q not in (12, 13) else (q - 12) * 16384
                r.append(I(f"ds_read_b64_tr_b16 {k}[{n+2*h}:{n+2*h+1}], v{v2r[t]} offset:{so + h*(2048 if q >= 14 else 1024)}", f"w{q}"))
        if q == 12:
            r = [I(f"s_mul_i32 s10, {sWV}, 20480"), I("s_sub_u32 s10, 131072, s10")] + [I(f"v_add_u32 v{v2r[t]}, s10, v{v2r[t]}") for t in range(4)] + r
        return r
    L += [Wait(vm="X2_0", lgkm="all"), I("s_barrier")] + ST()
    L += [I(f"v_add_u32 v{vXr[j]}, {FX2 - FX_RING}, v{vXr[j]}") for j in range(4)]
    rd = Stream([rd2(n) for n in range(8)])
    SC.run(mm1(13), [rd], flush=[rd])
    SC.ds = 2
    def epi(T):
        r = []
        for ct in range(2):
            a0 = acc(T, ct)
            for pr in range(4):
                ga = a0 + 2*pr; gb = ga + 1; ua = ga + 8; ub = ua + 1
                ta, tb = vT[2*(pr&1)], vT[2*(pr&1)+1]
                r += [I(f"v_mul_f32 v{ta}, {sNL2E}, v{ga}"), I(f"v_mul_f32 v{tb}, {sNL2E}, v{gb}"),
                      I(f"v_exp_f32 v{ta}, v{ta}"), I(f"v_exp_f32 v{tb}, v{tb}"),
                      I(f"v_mul_f32 v{ga}, v{ga}, v{ua}"), I(f"v_mul_f32 v{gb}, v{gb}, v{ub}"),
                      I(f"v_add_f32 v{ta}, 1.0, v{ta}"), I(f"v_add_f32 v{tb}, 1.0, v{tb}"),
                      I(f"v_rcp_f32 v{ta}, v{ta}"), I(f"v_rcp_f32 v{tb}, v{tb}"),
                      I(f"v_mul_f32 v{ga}, v{ga}, v{ta}"), I(f"v_mul_f32 v{gb}, v{gb}, v{tb}"),
                      I(f"v_cvt_pk_bf16_f32 v{a0 + pr}, v{ga}, v{gb}")]
            r += [I(f"buffer_store_dwordx4 {vq(a0)}, v{vAst}, {srd(SRD_A)}, {sAST} offen offset:{512*ct} sc1", f"st{T}_{ct}")]
        if T < 4: r += [I(f"s_add_u32 {sAST}, {sAST}, {sT2}")]
        return r
    for_t = {}
    bk = Stream(ooo=10)
    def add_epi(T):
        e = epi(T)
        for x in e: for_t[id(x)] = T
        bk.add(e)
    SC.units = CFG["U2"]; SC.td = CFG["TD"]
    for T in range(2): add_epi(T)
    bk.hold = SC.g + 2
    side = Stream(every=CFG["EV2"])
    for q in (14, 15, 16, 17, 0, 1): side.add(dmaW2(q))
    late_side = []
    for k, q in enumerate((14, 15, 16, 17)):
        late_side += [Wait(vm=f"V{q}")] + rdW2(q)
        if k: late_side += [Wait(lgkm=f"w{q-1}")] + dmaW2(1 + k)
    late_side += [Wait(lgkm="w17")] + dmaW2(5)
    late_side += [I(f"v_add_u32 v{v2r[t]}, v{vHi}, v{v2r[t]}") for t in range(4)]
    class After:
        kind = "after"; tag = None; cost = 0
        def __init__(self, t): self.t = t
    side2 = Stream()
    state = {"pub": None}
    def seen(x):
        if x.tag == "st2_1": state["pub"] = SC.g + CFG["PUBD"]
    for b in range(21):
        if b == 5: L += [Wait(vm="X2_1"), I("s_barrier")]
        if b == 7:
            print("side at refill:", len(side))
            SC.flush(side); L += [I("s_barrier")]; side.add(dmaX2(2) + late_side); side.every = CFG['EV3']
        if b == 12: L += [Wait(vm="X2_2"), I("s_barrier")]
        if b == 14: L += [I("s_barrier")]
        L += [Wait(lgkm=f"q{b}")]
        reads = Stream([rd2(n) for n in range(4 * (b + 2), min(4 * (b + 3), NF2))], rate=0.5)
        reads.credit = 1.0
        for n in range(4 * b, 4 * b + 4):
            T2, k = divmod(n, 28); T = 2 + T2
            if k in (0, 14): L += ST((3,))
            if k == 0 and T == 4: print("side at last tile:", len(side))
            if k == 0 and T >= NSL:
                while any(for_t.get(id(x)) == T - NSL for x in bk.q): L.append(bk.q.pop(0))
            for ct in range(2):
                L.append(mfma32(vq(acc(T, ct), 16), aq(wfr(k, ct)), vq(XB + (n % 12) * 4), k == 0))
                while side.q and isinstance(side.q[0], After) and not any(x.tag == side.q[0].t for x in side2.q): side.q.pop(0)
                SC.gap([reads] + ([] if side.q and isinstance(side.q[0], After) else [side]) + ([] if any(x is late_side[-1] for x in side.q) else [side2]) + [bk])
                if state["pub"] is None and any(x.tag == "st2_1" for x in L): state["pub"] = SC.g + CFG["PUBD"]
                if state["pub"] == SC.g:
                    L += publish("h", vRdy, vOne, sCE, "st2_1") + ST(); state["pub"] = "done"
            if T == 4 and k == 1:
                side.every = 2; SC.ds = 2
                side2 = Stream([Wait(vm="V0")] + rdW2(0))
                for q in range(1, 6): side2.add([Wait(vm=f"V{q}")] + rdW2(q))
                side.add(dmaW2(12))
                for q in range(6, 12):
                    side.add([After(f"w{q-6}"), Wait(lgkm=f"w{q-6}")] + dmaW2(q) + (dmaW2(13) if q == 6 else []))
            if k == 27:
                if T == 4: bk.add([I("s_nop 9")])
                elif len(bk) < 14: SC.flush(bk); bk.hold = SC.g + 3
                add_epi(T)
        SC.flush(reads)
    print("side left:", len(side), len(side2), "backlog after pass 2:", len(bk), "pub", state["pub"], SC.g)
    assert state["pub"] == "done"
    L += ST((0, 3))
    vF = 6
    L += [I(f"buffer_load_dword v{vF}, off, {srd(SRD_M)}, {sFE} sc1", "ef")]
    bq = fix_trans(pkify(bk.q))
    sq = direct(side2.q + [x for x in side.q if not isinstance(x, After)]); side.q = []
    ratio = len(sq) / max(1, len(bq) - 10) * CFG["BK"] / 100
    ac = 0.0
    for k, x in enumerate(bq):
        L.append(x)
        ac += ratio
        while ac >= 1.0 and sq:
            y = sq.pop(0); L.append(y); ac -= 1.0
            if y.kind == "salu" and y.op.startswith("s_cmp"): L.append(sq.pop(0))
    if CFG["SQ"] == 0: L += sq
    L += ST((0, 3))
    SC = Sched(L)
    vAl, vRw, vRr, vOut, vOf, vOu2 = 15, [1, 2, 3], 4, 5, 14, 7
    vS = [8, 9, 10, 11, 12]
    AC2 = 16
    ABUF = [216, 236, 96, 116, 136, 156]
    PF = CFG['PF']
    def ab(q, T): return ABUF[q % 6] + T * 4
    def ldA(q):
        if q < 14:
            r = []
            if q: r += [I(f"s_add_u32 {sCA}, {sCA}, 8192"), Block([I(f"s_cmp_eq_u32 {sCA}, {7*8192}"), I(f"s_cselect_b32 {sCA}, 0, {sCA}")])]
            r += [I(f"s_add_u32 {sT0}, {sCA}, {sAb[q >= 7]}")]
        elif q == 14:
            r = [I(f"s_mul_i32 {sCA}, {sWV}, 3072"), I(f"s_add_u32 {sCA}, {sCA}, {sAO}"), I(f"s_add_u32 {sCA}, {sCA}, {56*1024}"),
                 I(f"s_mov_b32 {sT0}, {sCA}")]
        else: r = [I(f"s_add_u32 {sT0}, {sCA}, {(q-14)*1024}")]
        for T in range(5):
            r.append(I(f"buffer_load_dwordx4 {vq(ab(q, T))}, v{vAl}, {srd(SRD_A)}, {sT0} offen sc1", f"A{q}_{T}"))
            if T < 4: r.append(I(f"s_add_u32 {sT0}, {sT0}, {NK*1024}"))
        return r
    def mm2(q):
        return [mfma(vq(AC2 + (T*4+t)*4), rq(w2(q, t)), vq(ab(q, T)), q == 0) for T in range(5) for t in range(4)]
    def check(tag, need, name):
        return [Wait(vm=tag), I(f"v_cmp_gt_u32 vcc, {need}, v{vF}")] + spin_init() + [I(f"s_cbranch_vccnz L_poll_{name}"), I(f"L_got_{name}:")]
    def poll(name, need, ld):
        return [I(f"L_poll_{name}:")] + spin_step() + [ld, I("s_waitcnt vmcnt(0)"), I(f"v_cmp_gt_u32 vcc, {need}, v{vF}"), I("s_nop 0"),
                I(f"s_cbranch_vccnz L_poll_{name}"), I(f"s_branch L_got_{name}")]
    L += check("ef", 7, "e") + ST((0, 2))
    LA = CFG["LA"]
    units = []
    for q in range(18): units += dma_groups(ldA(q))
    assert len(units) == 90
    L += direct([x for g in units[:5] for x in g])
    L += [Wait(vm="st4_1"), I("s_mov_b64 exec, 1"), I(f"buffer_atomic_add v{vOne}, off, {srd(SRD_M)}, {sCL} sc1", "pub"), I("s_mov_b64 exec, -1")] + ST()
    L += [I(f"s_add_u32 {sFE}, {sFE}, {FL_LATE}")]
    L += direct([x for g in units[5:LA] for x in g])
    L += direct([Wait(vm="V7")] + rdW2(6) + rdW2(7))
    setup = [I(f"s_mul_i32 s10, {sRT}, 80"), I("s_add_u32 s11, s10, 79"), I("s_lshr_b32 s10, s10, 7"), I("s_lshr_b32 s11, s11, 7"),
             I("s_min_u32 s11, s11, 15"), I("s_lshl_b32 s10, s10, 9"), I("s_lshl_b32 s11, s11, 9"),
             I(f"v_mov_b32 v{vOf}, s11"), I(f"v_writelane_b32 v{vOf}, s10, 0"),
             I(f"s_lshl_b32 s27, {sWV}, 7"), I(f"s_add_u32 s27, s27, {FLAG_OFF + FL_O}"),
             I(f"s_mul_i32 s10, {sWV}, 15360"), I(f"s_add_u32 s10, s10, {RED}"), I(f"v_add_u32 v{vRr}, s10, v{vAl}")]
    for t in range(1, 4):
        setup += [I(f"s_xor_b32 s10, {sWV}, {t}"), I("s_mul_i32 s10, s10, 15360"), I(f"s_add_u32 s10, s10, {RED + (t-1)*5120}"),
                  I(f"v_add_u32 v{vRw[t-1]}, s10, v{vAl}")]
    vFw, vFr, t1, t2, t3 = 176, 177, 178, 179, 8
    setup += [I("v_and_b32 v13, 15, v0"), I(f"v_lshrrev_b32 v{t2}, 5, v0"), I(f"s_lshl_b32 s10, {sWV}, 1"),
              I(f"v_add_u32 v{t2}, s10, v{t2}"), I(f"v_and_b32 v{t3}, 7, v0"), I(f"v_xor_b32 v{t2}, v{t2}, v{t3}"),
              I(f"v_lshlrev_b32 v{t2}, 4, v{t2}"), I(f"v_lshl_add_u32 v{t2}, v13, 7, v{t2}"),
              I(f"v_bfe_u32 v{t1}, v0, 4, 1"), I(f"v_lshl_add_u32 v{vFw}, v{t1}, 3, v{t2}"),
              I(f"s_mul_i32 s10, {sWV}, 20"), I(f"v_lshrrev_b32 v{vOut}, 3, v0"), I(f"v_add_u32 v{vOut}, s10, v{vOut}"),
              I(f"v_xor_b32 v{vFr}, v{vOut}, v{t3}"), I(f"v_and_b32 v{vFr}, 7, v{vFr}"), I(f"v_lshlrev_b32 v{vFr}, 4, v{vFr}"),
              I(f"v_lshl_add_u32 v{vFr}, v{vOut}, 7, v{vFr}"),
              I("s_movk_i32 s11, 896"), I(f"v_mul_u32_u24 v{vOut}, s11, v{vOut}"), I(f"v_lshl_add_u32 v{vOut}, v{t3}, 4, v{vOut}"),
              I(f"s_mul_i32 s10, {sRT}, {80*896}"), I(f"s_lshl_b32 s11, {sNT}, 7"), I("s_add_u32 s10, s10, s11"), I(f"v_add_u32 v{vOut}, s10, v{vOut}"),
              I("v_lshlrev_b32 v13, 2, v13"),
              I(f"s_lshl_b32 s26, {sWV}, 13"), I(f"s_mul_i32 s11, {sRT}, 320"), I("s_add_u32 s26, s26, s11")]
    ld_late = I(f"buffer_load_dword v{vF}, off, {srd(SRD_M)}, {sFE} sc1", "lf")
    ld_o = I(f"buffer_load_dword v{vF}, v{vOf}, {srd(SRD_M)}, s27 offen sc1", "of")
    G = Stream(every=2)
    for q in range(16):
        R, U = Stream(), Stream()
        if q < 4: R.add([Wait(vm=f"V{q + 8}")] + rdW2(q + 8))
        if q in (8, 9): R.add([Wait(vm=f"V{q + 4}")] + rdW2(q + 4))
        if q == 4: U.add(setup[:20])
        if q == 5: U.add(setup[20:40])
        if q == 6: U.add(setup[40:])
        if q == 14: L += [I("s_barrier")]
        m = mm2(q)
        for T in range(5):
            u = 5 * q + T + LA
            if u == 35: SC.flush(G); L += check("lf", 7, "l") + ST()
            if u == 70: SC.flush(G); L += check("of", 4, "o") + ST()
            if u == 35 - CFG["FLA"]: G.add([ld_late])
            if u == 70 - CFG["FLA"]: G.add([ld_o])
            if u < 90: G.add(units[u])
            elif u < 95: G.add([I(f"buffer_load_dword v{vS[u-90]}, v13, {srd(SRD_M)}, s26 offen offset:{64*(u-90)} sc1", "S")])
            L += [Wait(vm=f"A{q}_{T}", lgkm=f"w{q}" if T == 0 else None)]
            if q < 13 and T == 0: L += ST((2,))
            SC.run(m[4*T:4*T+4], [G, R, U], flush=[R, U] if T == 4 else [])
    for u in range(80 + LA, 95):
        G.add(units[u] if u < 90 else [I(f"buffer_load_dword v{vS[u-90]}, v13, {srd(SRD_M)}, s26 offen offset:{64*(u-90)} sc1", "S")])
    SC.flush(G)
    L += ST()
    a16, a17 = mm2(16), mm2(17)
    order = [(T, t) for t in (1, 2, 3, 0) for T in range(5)]
    main = []
    for (T, t) in order: main += [a16[T*4+t], a17[T*4+t]]
    L += [Wait(vm="A17_4")]
    pend = []
    for k, m in enumerate(main):
        L.append(m)
        if k % 2 == 1 and order[k // 2][1] != 0:
            T, t = order[k // 2]
            pend.append((k + 9, I(f"ds_write_b128 v{vRw[t-1]}, {vq(AC2 + (T*4+t)*4)} offset:{T*1024}", "rw")))
        while pend and pend[0][0] <= k:
            L.append(pend.pop(0)[1])
    L += [x for _, x in pend]
    L += [Wait(lgkm="all"), I("s_barrier")] + ST()
    RB = 96
    for T in range(5):
        for sl in range(3):
            L.append(I(f"ds_read_b128 {vq(RB + (sl*5+T)*4)}, v{vRr} offset:{sl*5120 + T*1024}", f"rr{T}"))
    L += [Wait(vm="S")]
    osc = " sc1" if CFG["OSC"] else ""
    for T in range(5):
        a = AC2 + T*16
        d = AC2 + (T & ~1)*16 + 4 + 2*(T & 1)
        F = []
        for r in range(4): F.append(I(f"v_add_f32 v{RB + (5+T)*4 + r}, v{RB + (5+T)*4 + r}, v{RB + (10+T)*4 + r}"))
        for r in range(4): F.append(I(f"v_add_f32 v{a+r}, v{a+r}, v{RB + T*4 + r}"))
        for r in range(4): F.append(I(f"v_add_f32 v{a+r}, v{a+r}, v{RB + (5+T)*4 + r}"))
        for r in range(4): F.append(I(f"v_mul_f32 v{a+r}, v{a+r}, v{vS[T]}"))
        L += [Wait(lgkm=f"rr{T}")] + pkify(F)
        L += [I(f"v_cvt_pk_bf16_f32 v{d}, v{a}, v{a+1}"), I(f"v_cvt_pk_bf16_f32 v{d+1}, v{a+2}, v{a+3}")]
        L += [I(f"ds_write_b64 v{vFw}, v[{d}:{d+1}] offset:{T*2048}", "fw")]
    L += [I(f"s_mov_b32 s10, {8*896}"), I(f"s_mov_b32 s11, {16*896}"), Wait(lgkm="all"), I("s_barrier")]
    for p in range(3): L += [I(f"ds_read_b128 {vq(RB + 4*p)}, v{vFr} offset:{p*1024}", f"fr{p}")]
    for p in range(3):
        L += [Wait(lgkm=f"fr{p}")]
        if p == 2: L += [I("s_mov_b64 exec, 0xffffffff")]
        L += [I(f"buffer_store_dwordx4 {vq(RB + 4*p)}, v{vOut}, {srd(SRD_O)}, {('0', 's10', 's11')[p]} offen" + osc, "out")]
    if CFG["STAMP"]: L += [I("s_mov_b64 exec, -1")]
    L += ST.dump(65536, 16)
    if CFG["PAD"]:
        L += [I("L_pad:"), I("s_memrealtime s[82:83]"), I("s_waitcnt lgkmcnt(0)"), I("s_sub_u32 s82, s82, s80"),
              I(f"s_cmp_lt_u32 s82, {CFG['PAD']}"), I("s_cbranch_scc1 L_pad")]
    extra = xf_extra + slow("h", vRdy) + poll("e", 7, I(f"buffer_load_dword v{vF}, off, {srd(SRD_M)}, {sFE} sc1")) + \
            poll("l", 7, I(ld_late.text)) + poll("o", 4, I(ld_o.text))
    return L, extra

QW_RING, QW_SLOT = 0, 24576
QX_RING, QXA_SLOT, QXB, QXB_SLOT = 98304, 12288, 24576, 8192
QG = QX_RING + QXB + 2 * QXB_SLOT
assert QG + 4096 <= 163840

def qkv():
    ST = Stamps([40, 41, 42, 43, 44, 45, 46, 47, 48, 49, 50, 51], 1)
    vWd = [1, 2]; vXd = [3, 4]; vWr = [[5, 6], [7, 8]]; vXr = [9, 10]
    vQ1b, vQA, vQB_, vQH, vQ1 = 11, 12, 13, 14, [15, 16]
    vRdy = 47
    K0 = 48; K1 = K0 + 36; V0 = K1 + 36; V1 = V0 + 36; Q0 = V1 + 36; Q1 = Q0 + 32
    assert Q1 + 32 == 256
    N = CFG["LAG"]
    vXb = [27, 28]
    def wf(u, sec, t): return (u % (N + 2)) * 24 + (sec * 2 + t) * 4
    def xf(u, T): return 168 + (u % 2) * 20 + T * 4 if T < 5 else 208 + (u % 2) * 16 + (T - 5) * 4
    r4, p16, r8, p8 = 17, 18, 19, 20
    L = [I("L_qkv:")] + ST(True) + [I("s_lshl_b32 s10, s10, 1"), I(f"s_lshr_b32 {sJ}, {CFG['JMAP']}, s10"), I(f"s_and_b32 {sJ}, {sJ}, 3"),
         I(f"s_lshl_b32 {sQB}, s27, 3"), I(f"s_add_u32 {sQB}, {sQB}, s11")]
    L += rot_small(sQB, None)
    L += [I(f"v_lshrrev_b32 v{r4}, 4, v0"), I(f"v_and_b32 v{p16}, 15, v0"),
          I(f"v_lshrrev_b32 v{r8}, 3, v0"), I(f"v_and_b32 v{p8}, 7, v0"),
          I(f"s_mul_i32 s11, {sJ}, 224"), I(f"s_cmp_eq_u32 {sJ}, 3"), I("s_cselect_b32 s11, 640, s11"),
          I(f"s_mul_i32 s26, {sWV}, {8*2688}"), I("s_add_u32 s11, s11, s26"),
          I("s_movk_i32 s27, 2688"), I(f"v_mul_u32_u24 v21, s27, v{r4}"), I("v_add_u32 v21, s11, v21"),
          I(f"s_and_b32 s26, {sWV}, 1"), I("s_lshl_b32 s26, s26, 3"),
          I(f"v_lshlrev_b32 v22, 1, v{r4}"), I(f"v_sub_u32 v22, v{p16}, v22"), I("v_xor_b32 v22, s26, v22"),
          I("v_and_b32 v22, 15, v22"),
          I(f"v_lshl_add_u32 v{vWd[0]}, v22, 4, v21"),
          I(f"v_add_u32 v{vWd[1]}, {4*2688-1024}, v{vWd[0]}"),
          I(f"s_lshl_b32 {sM0W}, {sWV}, 11"),
          I("s_movk_i32 s27, 896"), I(f"v_mul_u32_u24 v21, s27, v{r8}"),
          I(f"v_xor_b32 v22, v{r4}, v{p8}"), I("v_lshl_add_u32 v21, v22, 4, v21"),
          I(f"s_lshl_b32 s26, {sWV}, 2"), I("s_lshr_b32 s26, 0x8630, s26"), I("s_and_b32 s26, s26, 15"),
          I("s_and_b32 s27, s26, 1"), I("s_lshl_b32 s27, s27, 6"),
          I(f"v_xor_b32 v{vXd[0]}, s27, v21"), I(f"v_xor_b32 v{vXd[1]}, 64, v{vXd[0]}"),
          I(f"v_mov_b32 v{vXb[0]}, v21"),
          I(f"s_lshl_b32 {sM0X}, s26, 10"), I(f"s_add_u32 {sM0X}, {sM0X}, {QX_RING}"),
          I("s_lshl_b32 s26, s26, 3"), I(f"s_lshl_b32 s27, {sQB}, 7"), I("s_add_u32 s26, s26, s27"),
          I("s_sub_u32 s26, s26, 16")]
    def xrow(i):
        r = [I(f"s_add_u32 s27, s26, {8*i}"), I(f"s_mul_i32 {sXROW[i]}, s27, 896")]
        if i < 2: r += [I("s_cmp_lt_i32 s27, 0"), I(f"s_cselect_b32 {sXROW[i]}, {OOB}, {sXROW[i]}")]
        if i == 2:
            r += [I(f"s_add_u32 {sXROW[3]}, {sM0X}, 2048"), I(f"s_lshl_b32 s27, {sWV}, 10"), I(f"s_add_u32 s27, s27, {QX_RING + 8192}"),
                  I(f"s_cmp_ge_u32 {sWV}, 2"), I(f"s_cselect_b32 {sXROW[i]}, {OOB}, {sXROW[i]}"), I(f"s_cselect_b32 {sXROW[3]}, s27, {sXROW[3]}")]
        return r
    def dmaW(u):
        s, e = divmod(u, 2)
        r = []
        for sec in range(3):
            r += [I(f"s_add_u32 m0, {sM0W}, {QW_RING + (u % 4) * QW_SLOT + sec * 8192}")]
            if sec == 0:
                r += [I(f"s_mul_i32 {sSOFF}, {sK[s]}, 1344")]
                if e: r += [I(f"s_add_u32 {sSOFF}, {sSOFF}, 86016")]
            else:
                r += [I(f"s_add_u32 {sSOFF}, {sSOFF}, 896")]
            for i in range(2):
                r.append(I(f"buffer_load_dwordx4 v{vWd[i]}, {srd(SRD_W)}, {sSOFF} offen offset:{1024*i} lds", f"W{u}"))
        return r
    def dmaX(s):
        r = []
        for i in range(3):
            r += [I(f"s_add_u32 m0, {sM0X if i < 2 else sXROW[3]}, {(s % 2) * QXA_SLOT + (i % 2) * 1024}"), I(f"s_add_u32 {sT0}, {sXROW[i]}, {sK[s]}"),
                  I(f"buffer_load_dwordx4 v{vXd[i % 2]}, {srd(SRD_X)}, {sT0} offen lds", f"X{s}")]
        return r
    def dmaXB(s):
        return [I(f"s_add_u32 m0, {sT3}, {(s % 2) * QXB_SLOT}"), I(f"s_add_u32 {sT0}, {sXROW[4]}, {sK[s]}")] + \
               [I(f"buffer_load_dwordx4 v{vXb[i]}, {srd(SRD_X)}, {sT0} offen offset:{1024*i} lds", f"Y{s}") for i in range(2)]
    for i in range(3): L += xrow(i)
    L += [I(f"s_lshl_b32 s26, {sWV}, 7"), I("v_lshl_add_u32 v23, v0, 1, s26")]
    L += [Wait(lgkm="all")]
    L += mksrd(SRD_W, 6, WQKV_BYTES) + dmaW(0)
    L += mksrd(SRD_X, 4, X_BYTES) + dmaX(0) + mksrd(SRD_M, 18, 896)
    L += [I(f"buffer_load_ushort v24, v23, {srd(SRD_M)}, 0 offen", "gw"),
          I(f"buffer_load_ushort v25, v23, {srd(SRD_M)}, 0 offen offset:512", "gw")]
    L += [I("v_bfe_u32 v21, v0, 2, 2"), I(f"v_lshl_add_u32 v22, v{r4}, 3, v21"),
          I(f"v_and_b32 v26, 1, v{r4}"), I("v_lshl_add_u32 v21, v26, 2, v21"),
          I("v_and_b32 v26, 3, v0"), I("v_lshlrev_b32 v29, 3, v26"), I("v_lshl_add_u32 v21, v21, 5, v29"),
          I(f"s_mul_i32 s26, {sWV}, 56"), I(f"s_cmp_eq_u32 {sJ}, 3"), I("s_cselect_b32 s27, 32, 0"),
          I("s_add_u32 s26, s26, s27"), I("v_add_u32 v21, s26, v21"),
          I("v_and_b32 v29, 0xff, v21"), I(f"v_lshl_add_u32 v{vWr[0][0]}, v22, 8, v29"),
          I("v_add_u32 v21, 32, v21"), I("v_and_b32 v29, 0xff, v21"), I(f"v_lshl_add_u32 v{vWr[0][1]}, v22, 8, v29"),
          I(f"v_add_u32 v{vWr[1][0]}, {2*QW_SLOT}, v{vWr[0][0]}"), I(f"v_add_u32 v{vWr[1][1]}, {2*QW_SLOT}, v{vWr[0][1]}"),
          I("v_cmp_eq_u32 vcc, 3, v26"),
          I(f"v_lshlrev_b32 v29, 3, v22"), I(f"v_add_u32 v29, {QG}, v29"),
          I(f"v_cndmask_b32 v{vQ1b}, v{vWr[0][1]}, v29, vcc"),
          I(f"v_mov_b32 v29, 1"), I(f"v_cndmask_b32 v{vQA}, v29, 0, vcc"),
          I(f"v_cndmask_b32 v{vQB_}, 0, v29, vcc"),
          I(f"v_mov_b32 v29, 0x400"), I(f"v_cndmask_b32 v{vQH}, v29, 32, vcc"),
          I(f"v_lshrrev_b32 v21, 1, v{p16}"), I(f"v_xor_b32 v21, v21, v{r4}"), I("v_lshlrev_b32 v21, 4, v21"),
          I(f"v_lshl_add_u32 v21, v{p16}, 7, v21"),
          I(f"v_add_u32 v{vXr[0]}, {QX_RING}, v21"), I(f"v_xor_b32 v{vXr[1]}, 64, v{vXr[0]}")]
    for s in range(1, 7): L += sk_next(s)
    L += dmaW(1)
    L += srd_a() + mksrd(SRD_D, 22, 256)
    L += [I(f"v_xor_b32 v{vXb[1]}, 64, v{vXb[0]}"), I(f"v_add_u32 v{vXb[1]}, {8*896-1024}, v{vXb[1]}"),
          I(f"s_lshl_b32 s26, {sQB}, 7"), I(f"s_lshl_b32 s27, {sWV}, 4"), I("s_add_u32 s26, s26, s27"), I("s_add_u32 s26, s26, 64"),
          I(f"s_mul_i32 {sXROW[4]}, s26, 896"), I(f"s_lshl_b32 {sT3}, {sWV}, 11"), I(f"s_add_u32 {sT3}, {sT3}, {QX_RING + QXB}")]
    L += [I("v_lshlrev_b32 v23, 2, v23"), I(f"v_add_u32 v23, {QG}, v23"),
          Wait(vm="gw"),
          I("ds_write_b16 v23, v24"), I("ds_write_b16 v23, v25 offset:2048")]
    def reads(u):
        s, e = divmod(u, 2)
        sl = u % 4
        a = [I(f"s_lshl_b32 {sT1}, {sK[s]}, 2")]
        if e: a += [I(f"s_add_u32 {sT1}, {sT1}, 256")]
        G = [a, [I(f"s_mov_b32 {sT2}, {sl * QW_SLOT}"), I(f"v_mad_u32_u24 v{vQ1[0]}, v{vQB_}, {sT1}, v{vQ1b}")],
             [I(f"v_mad_u32_u24 v{vQ1[0]}, v{vQA}, {sT2}, v{vQ1[0]}"), I(f"v_add_u32 v{vQ1[1]}, v{vQH}, v{vQ1[0]}")]]
        for T in range(5):
            G.append([I(f"ds_read_b128 {aq(xf(u, T))}, v{vXr[e]} offset:{(s % 2) * QXA_SLOT + T * 2048}", f"r{u}")])
        for sec in (1, 2, 0):
            for t in range(2):
                for h in range(2):
                    if sec == 0 and t == 1:
                        G.append([I(f"ds_read_b64_tr_b16 {aq(wf(u,sec,t)+2*h, 2)}, v{vQ1[h]}", f"r{u}")])
                    else:
                        G.append([I(f"ds_read_b64_tr_b16 {aq(wf(u,sec,t)+2*h, 2)}, v{vWr[sl//2][t]} offset:{(sl%2)*QW_SLOT + sec*8192 + h*1024}", f"r{u}")])
        return G
    def readsB(u):
        s, e = divmod(u, 2)
        return [I(f"ds_read_b128 {aq(xf(u, T))}, v{vXr[e]} offset:{QXB + (s % 2) * QXB_SLOT + (T - 5) * 2048}", f"rb{u}") for T in range(5, 9)]
    def mm(u, tiles):
        r = []
        for T in tiles:
            if T: r += [mfma(vq(Q0 + 4*(T-1)), aq(wf(u,0,0)), aq(xf(u,T)), u == 0), mfma(vq(Q1 + 4*(T-1)), aq(wf(u,0,1)), aq(xf(u,T)), u == 0)]
        for T in tiles:
            r += [mfma(vq(K0 + 4*T), aq(wf(u,1,0)), aq(xf(u,T)), u == 0), mfma(vq(K1 + 4*T), aq(wf(u,1,1)), aq(xf(u,T)), u == 0)]
        for T in tiles:
            r += [mfma(vq(V0 + 4*T), aq(xf(u,T)), aq(wf(u,2,0)), u == 0), mfma(vq(V1 + 4*T), aq(xf(u,T)), aq(wf(u,2,1)), u == 0)]
        return r
    i16, g4 = 18, 17
    sel = [21, 22, 23, 24]; vMq = 25; vSt = 26
    C = [I(f"v_and_b32 v38, 1, v{i16}"), I(f"v_cmp_eq_u32 {mODD}, 1, v38"),
         I(f"v_lshl_add_u32 v38, v{g4}, 2, v38"),
         I(f"v_cmp_le_u32 {mC0}, v38, v{i16}"), I("v_add_u32 v38, 2, v38"), I(f"v_cmp_le_u32 {mC1}, v38, v{i16}"),
         I(f"v_cmp_eq_u32 {mG3}, 3, v{g4}"),
         I("v_mov_b32 v39, 0x0c0c0100"), I("v_mov_b32 v40, 0x01000c0c"),
         I(f"v_cndmask_b32 v39, v39, v40, {mODD}"),
         I("v_mov_b32 v41, 0x0c0c0302"), I("v_mov_b32 v40, 0x03020c0c"),
         I(f"v_cndmask_b32 v41, v41, v40, {mODD}"),
         I("v_mov_b32 v40, 0x0c0c0c0c"),
         I(f"v_cndmask_b32 v{sel[0]}, v39, v40, {mC0}"), I(f"v_cndmask_b32 v{sel[1]}, v41, v40, {mC1}"),
         I(f"v_cndmask_b32 v{sel[2]}, v40, v39, {mC0}"), I(f"v_cndmask_b32 v{sel[3]}, v40, v41, {mC1}"),
         I(f"v_cndmask_b32 v{vMq}, -1, 0, {mG3}"),
         I(f"v_lshlrev_b32 v{vSt}, 4, v0"), I("v_lshlrev_b32 v44, 2, v0"),
         Block([I(f"s_cmp_eq_u32 {sQB}, 0"), I(f"s_cselect_b64 {mC0F}, {mC0}, -1"), I(f"s_cselect_b64 {mC1F}, {mC1}, -1")]),
         I(f"s_mov_b32 {sSCL}, {hex(f2u(28 ** -0.5 * math.log2(math.e)))}"),
         I(f"s_mov_b32 {sNL2E}, {hex(f2u(-math.log2(math.e)))}"),
         I(f"s_mul_i32 s26, {sQB}, {8*NK}"), I(f"s_lshl_b32 s27, {sJ}, 2"), I("s_add_u32 s26, s26, s27"),
         I(f"s_add_u32 s26, s26, {sWV}"), I("s_add_u32 s26, s26, 56"), I(f"s_lshl_b32 {sAST}, s26, 10"),
         I(f"s_lshl_b32 s26, {sJ}, 13"), I(f"s_lshl_b32 s27, {sQB}, 9"), I("s_add_u32 s26, s26, s27"),
         Block([I(f"s_cmp_eq_u32 {sWV}, 0"), I(f"s_cselect_b32 s26, s26, {OOB}")])]
    C += mksrd(SRD_M, 24, MISC_BYTES)
    VB0, VB1 = K1, V0
    TB = [V1, V1 + 8, Q1, Q1 + 8]
    def cvt(d, a): return I(f"v_cvt_pk_bf16_f32 v{d}, v{a}, v{a+1}")
    def sw(n, a, b): return I(f"v_permlane{n}_swap_b32 v{a}, v{b}")
    def packs(gr):
        Ts = range(0, 5) if gr == 0 else range(5, 9)
        q, k, v = [], [], []
        for T in Ts:
            if T:
                a, b = Q0 + 4*(T-1), Q1 + 4*(T-1)
                q += [cvt(a, a), cvt(a+1, a+2), cvt(a+2, b), cvt(a+3, b+2), I(f"v_and_b32 v{a+2}, v{vMq}, v{a+2}"), I(f"v_and_b32 v{a+3}, v{vMq}, v{a+3}")]
            a, b = K0 + 4*T, K1 + 4*T
            k += [cvt(a, a), cvt(a+1, a+2), cvt(a+2, b), cvt(a+3, b+2)]
        for T in Ts: v += [cvt(VB0 + 2*T, V0 + 4*T), cvt(VB0 + 2*T + 1, V0 + 4*T + 2)]
        for T in Ts: v += [cvt(VB1 + 2*T, V1 + 4*T), cvt(VB1 + 2*T + 1, V1 + 4*T + 2)]
        z0 = Q1 + 16*gr; z, g, o = 38, 40 + gr, 42
        zz = [sw(32, z0, z0 + 8), sw(32, z0 + 4, z0 + 12), sw(16, z0 + 8, z0 + 12), I(f"v_cvt_pk_bf16_f32 v{z}, v{z0+12}, v{z0+12}")]
        sig = [I(f"v_and_b32 v{z}, 0xffff0000, v{z}"),
               I(f"v_mul_f32 v{z}, {sNL2E}, v{z}"), I(f"v_exp_f32 v{z}, v{z}"), I(f"v_add_f32 v{z}, 1.0, v{z}"),
               I(f"v_rcp_f32 v{g}, v{z}"), I(f"v_cvt_pk_bf16_f32 v{g}, v{g}, v{g}"), I(f"v_and_b32 v{g}, 0xffff0000, v{g}"),
               I(f"v_sub_f32 v{o}, 1.0, v{g}"), I(f"v_cvt_pk_bf16_f32 v{o}, v{o}, v{o}"), I(f"v_and_b32 v{o}, 0xffff0000, v{o}"),
               I(f"v_max_f32 v{o}, {hex(f2u(1e-30))}, v{o}"), I(f"v_rcp_f32 v{z}, v{o}"),
               I(f"buffer_store_dword v{o}, v44, {srd(SRD_M)}, s26 offen offset:{256*gr} sc1", "st"), I(f"v_mul_f32 v{g}, v{g}, v{z}")]
        return q, k, v, zz, sig
    def reduce4(op, m, mid):
        return [sw(32, m[0], m[2]), sw(32, m[1], m[3]), I(f"{op} v{m[0]}, v{m[0]}, v{m[2]}"), I(f"{op} v{m[1]}, v{m[1]}, v{m[3]}"),
                sw(16, m[0], m[1]), I(f"{op} v{m[0]}, v{m[0]}, v{m[1]}")] + mid + \
               [I(f"v_mov_b32 v{m[1]}, v{m[0]}"), sw(16, m[0], m[1]), I(f"v_mov_b32 v{m[2]}, v{m[0]}"), I(f"v_mov_b32 v{m[3]}, v{m[1]}"),
                sw(32, m[0], m[2]), sw(32, m[1], m[3])]
    def att(gr, pk):
        r = []
        for k, b in enumerate(TB):
            T = 1 + 4*gr + k; q = Q0 + 4*(T-1)
            r += [mfma(vq(b), vq(K0 + 4*(T-1)), vq(q), True), mfma(vq(b + 4), vq(K0 + 4*T), vq(q), True)]
        for k, b in enumerate(TB):
            c = b + 4
            r += [I(f"v_cndmask_b32 v{b}, v{b}, v{b+1}, {mODD}"), I(f"v_cndmask_b32 v{b+1}, v{b+2}, v{b+3}, {mODD}"),
                  I(f"v_cndmask_b32 v{c}, v{c}, v{c+1}, {mODD}"), I(f"v_cndmask_b32 v{c+1}, v{c+2}, v{c+3}, {mODD}"),
                  I(f"v_cndmask_b32 v{b}, v{b}, v{c}, {mC0}"), I(f"v_cndmask_b32 v{b+1}, v{b+1}, v{c+1}, {mC1}")]
            if gr == 0 and k == 0:
                r += [I(f"v_mov_b32 v{b+3}, {hex(f2u(-1e30))}"),
                      I(f"v_cndmask_b32 v{b}, v{b+3}, v{b}, {mC0F}"), I(f"v_cndmask_b32 v{b+1}, v{b+3}, v{b+1}, {mC1F}")]
            r += [I(f"v_max_f32 v{b+2}, v{b}, v{b+1}")]
        m = [b + 2 for b in TB]
        r += reduce4("v_max_f32", m, [I(f"v_mul_f32 v{m[0]}, {sSCL}, v{m[0]}")])
        for b in TB:
            if pk: r += [I(f"v_pk_fma_f32 v[{b}:{b+1}], v[{b}:{b+1}], s[92:93], v[{b+2}:{b+3}] op_sel_hi:[1,0,0] neg_lo:[0,0,1] neg_hi:[0,0,1]")]
            else: r += [I(f"v_fma_f32 v{b+j}, v{b+j}, {sSCL}, -v{b+2}") for j in range(2)]
        for b in TB: r += [I(f"v_exp_f32 v{b}, v{b}"), I(f"v_exp_f32 v{b+1}, v{b+1}")]
        for b in TB: r += [I(f"v_add_f32 v{b+2}, v{b}, v{b+1}")]
        red = reduce4("v_add_f32", m, [I(f"v_rcp_f32 v{m[0]}, v{m[0]}"), I(f"v_mul_f32 v{m[0]}, v{m[0]}, v{40 + gr}")])
        r += red[:7]; r2 = red[7:]
        for b in TB:
            x = [I(f"v_mul_f32 v{b+j}, v{b+j}, v{b+2}") for j in range(2)]
            r2 += pkify(x) if pk else x
        for b in TB: r2 += [cvt(b + 3, b)]
        for b in TB: r2 += [I(f"v_perm_b32 v{b+4+j}, v{b+3}, v{b+3}, v{sel[j]}") for j in range(4)]
        r3 = []
        for k, b in enumerate(TB):
            T = 1 + 4*gr + k
            r3 += [mfma(vq(b), vq(VB0 + 2*(T-1)), vq(b + 4), True), mfma(vq(Q0 + 4*(T-1)), vq(VB1 + 2*(T-1)), vq(b + 4), True)]
        for k, b in enumerate(TB):
            o1 = Q0 + 4*(4*gr + k)
            r3 += [cvt(b, b), cvt(b+1, b+2), cvt(b+2, o1), cvt(b+3, o1+2),
                   I(f"buffer_store_dwordx4 {vq(b)}, v{vSt}, {srd(SRD_A)}, {sAST} offen sc1", "st"), I(f"s_add_u32 {sAST}, {sAST}, {NK*1024}")]
        return r, r2, r3
    SC = Sched(L); SC.safe = True
    X = Stream()
    for t in range(15 + N):
        tags = ([f"W{t}", f"X{t//2}"] if t < 14 else []) + ([f"Y{(t-N)//2}"] if 0 <= t - N < 14 else [])
        L += [Wait(vm=tags or None, lgkm="all")] + ([I("s_barrier")] if t < 14 + N else [])
        if t in (0, 2, 7, 14): L += ST((0, 1, 2))
        elif t in (1, 3, 4, 5, 6, 9): L += ST((1,))
        G = Stream(every=CFG["EVQ"])
        if t % 2 == 0 and t // 2 + 1 < 7: G.add(dmaX(t // 2 + 1))
        if t + 2 < 14: G.add(dmaW(t + 2))
        if (t - N) % 2 == 0 and 0 <= (t - N + 2) // 2 < 7: G.add(dmaXB((t - N + 2) // 2))
        if t == 12: G.add([I(f"buffer_load_dword v{vRdy}, off, {srd(SRD_D)}, 0 sc1", "rdy")])
        R = ([x for g in reads(t) for x in g] if t < 14 else []) + (readsB(t - N) if 0 <= t - N < 14 else [])
        if t == 0:
            L += R; SC.flush(G)
            continue
        main = (mm(t - 1, range(5)) if t < 15 else []) + (mm(t - 1 - N, range(5, 9)) if 0 <= t - 1 - N < 14 else [])
        if len(main) < 40: G.every = 3
        R = Stream(R, rate=min(1.0, 1.15 * len(R) / len(main)))
        U = Stream(C if t == 12 else [])
        if t == 14:
            q, k, v, zz, sig = packs(0); a1, a2, a3 = att(0, False)
            X.add(q + zz + k + v + sig + a1 + a2 + a3)
        if t == 14 + N:
            print("attention A left:", len(X))
            emit_safe(L, X.q); X.q = []
            q, k, v, zz, sig = packs(1)
            X.add(q + k + zz)
        SC.run(main, [G, R, U, X], flush=[G, R, U])
    L += ST()
    emit_safe(L, X.q)
    a1, a2, a3 = att(1, True)
    fill = []
    while v or sig:
        fill += v[:1] + sig[:1]; v = v[1:]; sig = sig[1:]
    emit_safe(L, a1, fill); emit_safe(L, fill); emit_safe(L, a2); emit_safe(L, a3)
    L += ST()
    L += [I(f"s_lshl_b32 s26, {sQB}, 2"), I(f"s_add_u32 s26, s26, {sJ}"), I("s_lshl_b32 s26, s26, 7"), I(f"s_add_u32 s26, s26, {FLAG_OFF + FL_O}")]
    L += publish("o", vRdy, 1, "s26") + ST() + ST.dump(65536, 2)
    return L, slow("o", vRdy)

def isize(x):
    if x.kind in ("label", "directive"): return 0
    if x.kind in ("mfma", "ds", "vmem", "smem"): return 8
    t = x.text.split(";")[0]
    lit = False
    for tok in re.findall(r"(?<![\w\[:.])(-?0x[0-9a-f]+|-?\d+)(?![\w.\]:])", t.split(None, 1)[1] if " " in t.strip() else ""):
        v = int(tok, 0)
        if v > 64 or v < -16: lit = True
    op = x.op
    if op in ("s_movk_i32", "s_nop", "s_waitcnt", "s_barrier") or op.startswith(("s_cbranch", "s_branch")): return 4
    if op.startswith("s_"): return 8 if lit else 4
    if op.startswith(("v_cvt_pk", "v_pk_", "v_perm_b32", "v_mad", "v_lshl_add", "v_bfe", "v_writelane", "v_fma")): return 8
    if op.startswith("v_cndmask") and "vcc" not in t: return 8
    if op.startswith("v_cmp") and "vcc" not in t: return 8
    return 8 if lit else 4

def add_pads(regions):
    spots = []
    for seq, start in regions:
        since = 10 ** 9
        for i in range(start, len(seq) - 1):
            x, y = seq[i], seq[i + 1]
            since += isize(x)
            free = x.kind == "mfma" and not is_scalar(y)
            any_ok = y.kind in ("valu", "trans", "ds", "vmem", "mfma") and x.kind != "label"
            if (since >= CFG["IST"] - 40 and free) or (since >= CFG["IST"] and any_ok):
                spots.append((id(seq), i + 1)); since = 4
    per = -(-len(spots) // 4)
    ins = {}
    for k, sp in enumerate(spots):
        w, n = divmod(k, per)
        last = n == per - 1 or k == len(spots) - 1
        ins[sp] = [I(f"L_ip{w}_{n}:"), I(f"s_cbranch_execz {'L_end' if last else f'L_ip{w}_{n+1}'}")]
    out = []
    for seq, start in regions:
        o = []
        for i, x in enumerate(seq):
            o += ins.get((id(seq), i), [])
            o.append(x)
        out.append(o)
    print("pads:", len(spots))
    return out

def main():
    for n in range(84): assert (n * 43) >> 8 == n // 6
    for n in range(64): assert (n * 79) >> 10 == n // 13 and (n * 37) >> 8 == n // 7
    for n in range(30): assert (n * 43) >> 7 == n // 3
    for n in range(182): assert (n * 147) >> 10 == n // 7
    pro = prologue()
    def path(role):
        full = resolve(pro + role)
        return full[len(pro):], full
    fr, fx = ffn()
    qr, qx = qkv()
    f, ff = path(fr)
    q, qf = path(qr)
    if CFG["IPF"]:
        nb = lambda seq, k: [i for i, x in enumerate(seq) if x.kind == "barrier"][k]
        f, q = add_pads([(f, nb(f, CFG["IPF0"])), (q, nb(q, CFG["IPQ0"]))])
        ff, qf = pro + f, pro + q
    probs = []
    for nm, s in (("ffn", ff), ("qkv", qf), ("idle", pro + idle()), ("fx", fx), ("qx", qx)):
        probs += check_hazards(s, nm) + check_pending(s, nm) + check_scc(s, nm)
    ORD = [14, 15, 16, 17] + list(range(14))
    lq, vq_, seen = [], [], set()
    for x in ff:
        if x.kind == "wait":
            for nm, q_ in (("lgkmcnt", lq), ("vmcnt", vq_)):
                m = re.search(nm + r"\((\d+)\)", x.text)
                if m and len(q_) > int(m.group(1)): del q_[:len(q_) - int(m.group(1))]
        elif x.kind in ("ds", "smem"):
            lq.append(x.tag); seen.add(x.tag)
            if x.tag and re.fullmatch(r"w\d+", x.tag) and ("V" + x.tag[1:] in vq_ or "V" + x.tag[1:] not in seen):
                probs.append(f"read {x.tag} before its DMA completed")
        elif x.kind == "vmem":
            vq_.append(x.tag); seen.add(x.tag)
            if x.tag and re.fullmatch(r"V\d+", x.tag):
                k = ORD.index(int(x.tag[1:]))
                if SL2 <= k < 16 and (f"w{ORD[k - SL2]}" in lq or f"w{ORD[k - SL2]}" not in seen): probs.append(f"slot refill {x.tag} too early")
    for p in probs: print("HAZARD", p, file=sys.stderr)
    ref = open(f"cdna_kernels/{NAME}.s.ref").read()
    out = ref.split("; @launch")[0]
    out += "; @launch grid=(256,1,1) block=(256,1,1) lds=163840\n"
    out += f'.amdgcn_target "amdgcn-amd-amdhsa--gfx950"\n.text\n.globl {NAME}_kernel\n.p2align 8\n.type {NAME}_kernel,@function\n{NAME}_kernel:\n'
    out += render(pro) + "\n" + render(f) + "\n    s_endpgm\n" + render(fx) + "\n" + render(q) + "\n    s_endpgm\n" + render(qx) + "\n"
    out += render(idle()) + "\nL_end:\n    s_endpgm\n"
    out += f""".section .rodata,"a"
.p2align 6
.amdhsa_kernel {NAME}_kernel
  .amdhsa_next_free_vgpr 512
  .amdhsa_next_free_sgpr 102
  .amdhsa_accum_offset 256
  .amdhsa_group_segment_fixed_size 0
  .amdhsa_kernarg_size 88
  .amdhsa_user_sgpr_count 2
  .amdhsa_user_sgpr_kernarg_segment_ptr 1
  .amdhsa_system_sgpr_workgroup_id_x 1
.end_amdhsa_kernel
"""
    open(sys.argv[1], "w").write(out)
    print("instr counts: ffn", len(f), "qkv", len(q), "hazards", len(probs))

main()
```
